```python
import torch

def _softmax(x, axis=-1):
    return torch.softmax(x, dim=axis)
def _gelu(x):
    return torch.nn.functional.gelu(x, approximate="tanh")
def _silu(x):
    return torch.nn.functional.silu(x)
def _sigmoid(x):
    return torch.sigmoid(x)
def _layernorm(x, axis=-1, eps=1e-5):
    m = x.mean(dim=axis, keepdim=True)
    v = x.var(dim=axis, keepdim=True, unbiased=False)
    return (x - m) / torch.sqrt(v + eps)
def _scatter_add(tgt, idx, src, axis=0):
    return tgt.clone().index_add_(axis, idx, src)
def _segment_sum(src, seg, n):
    out = torch.zeros((n,) + src.shape[1:], dtype=src.dtype)
    return out.index_add_(0, seg, src)
def _pad(x, pw):
    flat = tuple(v for pair in reversed(pw) for v in pair)
    return torch.nn.functional.pad(x, flat)

kernel_name = 'standalone__deep_cross_pnn__recsys'

def setup_inputs():

    _w = (lambda a: (lambda t: t.to(torch.bfloat16) if t.is_floating_point() else t)(torch.as_tensor(a)))
    B, F, D, V = 16384, 100, 128, min(1000, 100000)
    H = 4 * D
    return {
        "idx": _w((lambda lo, hi, *s: torch.randint(lo, hi, s))(0, V, B, F).to(torch.int64)),
        "table": _w((lambda *s: torch.randn(*s, dtype=torch.bfloat16) * 1.6)(V, D) * (D ** -0.5)),
        "w_p": _w((lambda *s: torch.randn(*s, dtype=torch.bfloat16) * 0.05)(F * F) * ((F * F) ** -0.5)),
        "w1": _w((lambda *s: torch.randn(*s, dtype=torch.bfloat16) * 1.6)(F * D, H) * ((F * D) ** -0.5)),
        "b1": _w((lambda *s: torch.randn(*s, dtype=torch.bfloat16) * 12.8)(H) * 0.01),
        "w2": _w((lambda *s: torch.randn(*s, dtype=torch.bfloat16) * 0.05)(H) * (H ** -0.5)),
        "b2": _w((lambda *s: torch.randn(*s, dtype=torch.bfloat16) * 1.6)(1) * 0.01),
    }

def reference(idx, table, w_p, w1, b1, w2, b2):
    emb = table[idx]
    B = emb.shape[0]; F = emb.shape[1]; D = emb.shape[2]
    ip = torch.einsum('bid,bjd->bij', emb, emb)
    ip = ip.reshape(B, F * F)
    logit_p = ip @ w_p
    z = emb.reshape(B, F * D)
    h = _gelu(z @ w1 + b1)
    logit_d = h @ w2 + b2
    return logit_p + logit_d
```

```python
import sys, struct

B, F, D, V, H = 16384, 100, 128, 1000, 512
WS_BYTES = 268435456
WS_P = 0
SLICE_BYTES = F * V * 16
WS_SCHED = 0x6400000
WS_PART = 0x6800000
WS_PNN = 0x6C00000

def f32bits(x):
    return struct.unpack("<I", struct.pack("<f", x))[0]

class Asm:
    def __init__(self):
        self.lines = []
    def __call__(self, s=""):
        for l in s.split("\n"):
            self.lines.append("    " + l.strip() if l.strip() and not l.strip().endswith(":") else l.strip())
    def label(self, s):
        self.lines.append(s + ":")
    def text(self):
        return "\n".join(self.lines) + "\n"

def kernel_header(a, name):
    a.lines.append(f".globl {name}")
    a.lines.append(".p2align 8")
    a.lines.append(f".type {name},@function")
    a.label(name)

def kernel_desc(name, vgpr, sgpr=96, accum=None):
    if accum is None:
        accum = (vgpr + 3) // 4 * 4
    return f""".p2align 6
.amdhsa_kernel {name}
  .amdhsa_next_free_vgpr {vgpr}
  .amdhsa_next_free_sgpr {sgpr}
  .amdhsa_accum_offset {accum}
  .amdhsa_group_segment_fixed_size 0
  .amdhsa_kernarg_size 80
  .amdhsa_user_sgpr_count 2
  .amdhsa_user_sgpr_kernarg_segment_ptr 1
  .amdhsa_system_sgpr_workgroup_id_x 1
.end_amdhsa_kernel
"""

def srd(a, d, base, nbytes):
    a(f"s_mov_b32 s{d}, s{base}")
    a(f"s_and_b32 s{d+1}, s{base+1}, 0xffff")
    a(f"s_mov_b32 s{d+2}, {nbytes}")
    a(f"s_mov_b32 s{d+3}, 0x00020000")

BUF_STRIDE = 64512
def gen_k2(a, name="k2_gather_kernel", DEPTH=4, NB=6):
    NW = 8; T = 16
    kernel_header(a, name)
    ACC = 0
    SEL = 64
    SCH = 68
    DAT = 100
    ADR = DAT + NB * 8
    VL16 = ADR + 4
    VLANE = VL16 + 1
    TMP = VLANE + 1
    NV = TMP + 12
    a(f"""
    s_cmp_ge_u32 s2, 256
    s_cbranch_scc1 {name}_end
    s_load_dwordx2 s[4:5], s[0:1], 72
    s_load_dwordx4 s[8:11], s[0:1], 32
    v_and_b32 v{VLANE}, 63, v0
    v_lshrrev_b32 v{TMP}, 6, v0
    v_lshlrev_b32 v{VL16}, 4, v{VLANE}
    v_readfirstlane_b32 s6, v{TMP}
    s_and_b32 s7, s2, 63
    s_lshr_b32 s3, s2, 6
    s_waitcnt lgkmcnt(0)
    """)
    srd(a, 12, 4, WS_BYTES)
    srd(a, 16, 8, H * 2)
    srd(a, 20, 10, H * 2)
    a(f"""
    s_mul_i32 s24, s7, {SLICE_BYTES}
    s_lshl_b32 s27, s6, 13
    s_add_u32 s24, s24, s27
    s_add_u32 s25, s24, 4096
    s_add_u32 s28, s27, 4096
    s_add_u32 s29, s27, {BUF_STRIDE}
    s_add_u32 s30, s28, {BUF_STRIDE}
    s_mul_i32 s26, s3, {25*8}
    s_add_u32 s26, s26, s6
    s_lshl_b32 s26, s26, 12
    s_add_u32 s26, s26, {WS_SCHED}
    """)
    uid = [0]
    def issue_loads(buf):
        uid[0] += 1
        m0a, m0b = (27, 28) if buf == 0 else (29, 30)
        for tq in range(4):
            a(f"buffer_load_dwordx4 v[{SCH+16*buf+4*tq}:{SCH+16*buf+4*tq+3}], v{VL16}, s[12:15], s26 offen offset:{tq*1024}")
        a(f"s_mov_b32 m0, s{m0a}")
        a(f"s_add_u32 s26, s26, {8*4096}")
        for i in range(4):
            a(f"buffer_load_dwordx4 v{VL16}, s[12:15], s24 offen offset:{i*1024} lds")
        a(f"s_mov_b32 m0, s{m0b}")
        a(f"s_add_u32 s24, s24, 64000")
        for i in range(3):
            a(f"buffer_load_dwordx4 v{VL16}, s[12:15], s25 offen offset:{i*1024} lds")
        a(f"s_cmp_eq_u32 s6, 7")
        a(f"s_cbranch_scc1 {name}_sk{uid[0]}")
        a(f"buffer_load_dwordx4 v{VL16}, s[12:15], s25 offen offset:3072 lds")
        a.label(f"{name}_sk{uid[0]}")
        a(f"s_add_u32 s25, s25, 64000")
    issue_loads(0)
    a(f"""
    v_lshrrev_b32 v{TMP}, 3, v{VLANE}
    v_lshrrev_b32 v{TMP+1}, 4, v{VLANE}
    v_xor_b32 v{TMP}, v{TMP}, v{TMP+1}
    v_and_b32 v{TMP}, 1, v{TMP}
    v_and_b32 v{TMP+1}, 1, v{VLANE}
    v_lshlrev_b32 v{TMP+1}, 4, v{TMP+1}
    v_mov_b32 v{TMP+2}, 0x3f80
    v_lshlrev_b32 v{TMP+2}, v{TMP+1}, v{TMP+2}
    v_cmp_eq_u32 vcc, 0, v{TMP}
    s_nop 1
    v_cndmask_b32 v{TMP+2}, 0, v{TMP+2}, vcc
    v_bfe_u32 v{TMP+3}, v{VLANE}, 1, 2
    """)
    for i in range(4):
        a(f"v_cmp_eq_u32 vcc, {i}, v{TMP+3}")
        a("s_nop 1")
        a(f"v_cndmask_b32 v{SEL+i}, 0, v{TMP+2}, vcc")
    for i in range(64):
        a(f"v_mov_b32 v{ACC+i}, 0")
    def chunk(buf, last):
        a("s_waitcnt vmcnt(0)")
        a("s_barrier")
        if not last:
            issue_loads(buf ^ 1)
        off = buf * BUF_STRIDE
        for t in range(T + DEPTH):
            if t < T:
                ad = ADR + 2 * (t & 1)
                d = DAT + 8 * (t % NB)
                a(f"v_and_b32 v{ad}, 0xffff, v{SCH+16*buf+t}")
                a(f"v_lshrrev_b32 v{ad+1}, 16, v{SCH+16*buf+t}")
                a(f"ds_read_b128 v[{d}:{d+3}], v{ad} offset:{off}")
                a(f"ds_read_b128 v[{d+4}:{d+7}], v{ad+1} offset:{off}")
            if t >= DEPTH:
                tt = t - DEPTH
                d = DAT + 8 * (tt % NB)
                outstanding = 2 * (min(t, T - 1) - tt)
                a(f"s_waitcnt lgkmcnt({outstanding+1})")
                a(f"v_mfma_f32_16x16x32_bf16 v[{ACC+4*tt}:{ACC+4*tt+3}], v[{SEL}:{SEL+3}], v[{d}:{d+3}], v[{ACC+4*tt}:{ACC+4*tt+3}]")
                a(f"s_waitcnt lgkmcnt({outstanding})")
                a(f"v_mfma_f32_16x16x32_bf16 v[{ACC+4*tt}:{ACC+4*tt+3}], v[{SEL}:{SEL+3}], v[{d+4}:{d+7}], v[{ACC+4*tt}:{ACC+4*tt+3}]")
    a("s_mov_b32 s31, 0")
    a.label(f"{name}_loop")
    chunk(0, False)
    chunk(1, False)
    a(f"""
    s_add_u32 s31, s31, 1
    s_cmp_lt_u32 s31, 12
    s_cbranch_scc1 {name}_loop
    """)
    chunk(0, True)
    BV = SCH; WV = SCH + 4; RAW = SCH + 8
    a(f"""
    v_bfe_u32 v{TMP}, v{VLANE}, 4, 1
    v_lshlrev_b32 v{TMP}, 3, v{TMP}
    s_lshl_b32 s32, s7, 4
    buffer_load_dwordx2 v[{RAW}:{RAW+1}], v{TMP}, s[16:19], s32 offen
    buffer_load_dwordx2 v[{RAW+2}:{RAW+3}], v{TMP}, s[20:23], s32 offen
    s_mov_b32 s33, {f32bits(-0.1029432397):#x}
    s_mov_b32 s34, {f32bits(-2.302208198):#x}
    v_mov_b32 v{TMP+1}, s34
    s_waitcnt vmcnt(0)
    v_lshlrev_b32 v{BV}, 16, v{RAW}
    v_and_b32 v{BV+1}, 0xffff0000, v{RAW}
    v_lshlrev_b32 v{BV+2}, 16, v{RAW+1}
    v_and_b32 v{BV+3}, 0xffff0000, v{RAW+1}
    v_lshlrev_b32 v{WV}, 16, v{RAW+2}
    v_and_b32 v{WV+1}, 0xffff0000, v{RAW+2}
    v_lshlrev_b32 v{WV+2}, 16, v{RAW+3}
    v_and_b32 v{WV+3}, 0xffff0000, v{RAW+3}
    """)
    a(f"""
    v_bfe_u32 v{TMP+2}, v{VLANE}, 4, 1
    v_lshlrev_b32 v{TMP+2}, 5, v{TMP+2}
    v_lshrrev_b32 v{TMP+3}, 5, v{VLANE}
    v_lshl_add_u32 v{TMP+2}, v{TMP+3}, 4, v{TMP+2}
    v_and_b32 v{TMP+3}, 15, v{VLANE}
    v_add_lshl_u32 v{TMP+2}, v{TMP+2}, v{TMP+3}, 2
    s_lshl_b32 s35, s7, 14
    s_lshl_b32 s36, s3, 12
    s_add_u32 s35, s35, s36
    s_lshl_b32 s36, s6, 9
    s_add_u32 s35, s35, s36
    s_lshl_b32 s35, s35, 2
    s_add_u32 s35, s35, {WS_PART}
    """)
    X = DAT; E = DAT + 8; S = DAT + 16
    for p in range(T // 2):
        for h in range(2):
            t = 2 * p + h
            for r in range(4):
                a(f"v_add_f32 v{X+4*h+r}, v{ACC+4*t+r}, v{BV+r}")
            for r in range(4):
                a(f"v_mul_f32 v{E+4*h+r}, v{X+4*h+r}, v{X+4*h+r}")
            for r in range(4):
                a(f"v_fma_f32 v{E+4*h+r}, v{E+4*h+r}, s33, v{TMP+1}")
            for r in range(4):
                a(f"v_mul_f32 v{E+4*h+r}, v{E+4*h+r}, v{X+4*h+r}")
            for r in range(4):
                a(f"v_exp_f32 v{E+4*h+r}, v{E+4*h+r}")
            for r in range(4):
                a(f"v_add_f32 v{E+4*h+r}, 1.0, v{E+4*h+r}")
            for r in range(4):
                a(f"v_rcp_f32 v{E+4*h+r}, v{E+4*h+r}")
            for r in range(4):
                a(f"v_mul_f32 v{X+4*h+r}, v{X+4*h+r}, v{WV+r}")
            a(f"v_mul_f32 v{S+h}, v{X+4*h}, v{E+4*h}")
            for r in range(1, 4):
                a(f"v_fma_f32 v{S+h}, v{X+4*h+r}, v{E+4*h+r}, v{S+h}")
        a("s_nop 1")
        a(f"v_permlane16_swap_b32 v{S}, v{S+1}")
        a("s_nop 1")
        a(f"v_add_f32 v{S+2+(p&1)}, v{S}, v{S+1}")
        a(f"buffer_store_dword v{S+2+(p&1)}, v{TMP+2}, s[12:15], s35 offen offset:{p*256}")
    a.label(f"{name}_end")
    a("s_endpgm")
    return NV

HEADER = """; Kernarg layout: idx(0) table(8) w_p(16) w1(24) b1(32) w2(40) b2(48) out(56) debug(64) ws(72)
"""

def build(kernels):
    a = Asm()
    descs = []
    head = HEADER
    for (name, fn, grid, block, lds) in kernels:
        head += f"; @launch kernel={name} grid=({grid},1,1) block=({block},1,1) lds={lds}\n"
    seen = set()
    for (name, fn, grid, block, lds) in kernels:
        if name in seen: continue
        seen.add(name)
        r = fn(a, name)
        if isinstance(r, tuple):
            descs.append(kernel_desc(name, r[0], accum=r[1]))
        else:
            descs.append(kernel_desc(name, r))
    s = head + '.amdgcn_target "amdgcn-amd-amdhsa--gfx950"\n.text\n' + a.text() + '.section .rodata,"a"\n' + "".join(descs)
    return s

if __name__ == "__main__":
    out = sys.argv[1]
    which = sys.argv[2] if len(sys.argv) > 2 else "k2"
    if which == "k2":
        s = build([("k2_gather_kernel", gen_k2, 256, 512, 2 * BUF_STRIDE)])
    open(out, "w").write(s)
```

```python
import sys, struct

B, F, D, V, H = 16384, 100, 128, 1000, 512
WS_BYTES = 268435456
WS_P = 0
SLICE_BYTES = F * V * 16
WS_SCHED = 0x6400000
WS_PART = 0x6800000
WS_PNN = 0x6C00000

def f32bits(x):
    return struct.unpack("<I", struct.pack("<f", x))[0]

class Asm:
    def __init__(self):
        self.lines = []
    def __call__(self, s=""):
        for l in s.split("\n"):
            self.lines.append("    " + l.strip() if l.strip() and not l.strip().endswith(":") else l.strip())
    def label(self, s):
        self.lines.append(s + ":")
    def text(self):
        return "\n".join(self.lines) + "\n"

def kernel_header(a, name):
    a.lines.append(f".globl {name}")
    a.lines.append(".p2align 8")
    a.lines.append(f".type {name},@function")
    a.label(name)

def kernel_desc(name, vgpr, sgpr=102, accum=None):
    if accum is None:
        accum = (vgpr + 3) // 4 * 4
    return f""".p2align 6
.amdhsa_kernel {name}
  .amdhsa_next_free_vgpr {vgpr}
  .amdhsa_next_free_sgpr {sgpr}
  .amdhsa_accum_offset {accum}
  .amdhsa_group_segment_fixed_size 0
  .amdhsa_kernarg_size 80
  .amdhsa_user_sgpr_count 2
  .amdhsa_user_sgpr_kernarg_segment_ptr 1
  .amdhsa_system_sgpr_workgroup_id_x 1
.end_amdhsa_kernel
"""

def srd(a, d, base, nbytes):
    a(f"s_mov_b32 s{d}, s{base}")
    a(f"s_and_b32 s{d+1}, s{base+1}, 0xffff")
    a(f"s_mov_b32 s{d+2}, {nbytes}")
    a(f"s_mov_b32 s{d+3}, 0x00020000")

BUF_STRIDE = 64512
def gen_k2(a, name="k2_gather_kernel", DEPTH=4, NB=6):
    NW = 8; T = 16
    kernel_header(a, name)
    ACC = 0
    SEL = 64
    SCH = 68
    DAT = 100
    ADR = DAT + NB * 8
    VL16 = ADR + 4
    VLANE = VL16 + 1
    TMP = VLANE + 1
    NV = TMP + 12
    a(f"""
    s_cmp_ge_u32 s2, 256
    s_cbranch_scc1 {name}_end
    s_load_dwordx2 s[4:5], s[0:1], 72
    s_load_dwordx4 s[8:11], s[0:1], 32
    v_and_b32 v{VLANE}, 63, v0
    v_lshrrev_b32 v{TMP}, 6, v0
    v_lshlrev_b32 v{VL16}, 4, v{VLANE}
    v_readfirstlane_b32 s6, v{TMP}
    s_and_b32 s7, s2, 63
    s_lshr_b32 s3, s2, 6
    s_waitcnt lgkmcnt(0)
    """)
    srd(a, 12, 4, WS_BYTES)
    srd(a, 16, 8, H * 2)
    srd(a, 20, 10, H * 2)
    a(f"""
    s_mul_i32 s24, s7, {SLICE_BYTES}
    s_lshl_b32 s27, s6, 13
    s_add_u32 s24, s24, s27
    s_add_u32 s25, s24, 4096
    s_add_u32 s28, s27, 4096
    s_add_u32 s29, s27, {BUF_STRIDE}
    s_add_u32 s30, s28, {BUF_STRIDE}
    s_mul_i32 s26, s3, {25*8}
    s_add_u32 s26, s26, s6
    s_lshl_b32 s26, s26, 12
    s_add_u32 s26, s26, {WS_SCHED}
    """)
    uid = [0]
    def issue_loads(buf):
        uid[0] += 1
        m0a, m0b = (27, 28) if buf == 0 else (29, 30)
        for tq in range(4):
            a(f"buffer_load_dwordx4 v[{SCH+16*buf+4*tq}:{SCH+16*buf+4*tq+3}], v{VL16}, s[12:15], s26 offen offset:{tq*1024}")
        a(f"s_mov_b32 m0, s{m0a}")
        a(f"s_add_u32 s26, s26, {8*4096}")
        for i in range(4):
            a(f"buffer_load_dwordx4 v{VL16}, s[12:15], s24 offen offset:{i*1024} lds")
        a(f"s_mov_b32 m0, s{m0b}")
        a(f"s_add_u32 s24, s24, 64000")
        for i in range(3):
            a(f"buffer_load_dwordx4 v{VL16}, s[12:15], s25 offen offset:{i*1024} lds")
        a(f"s_cmp_eq_u32 s6, 7")
        a(f"s_cbranch_scc1 {name}_sk{uid[0]}")
        a(f"buffer_load_dwordx4 v{VL16}, s[12:15], s25 offen offset:3072 lds")
        a.label(f"{name}_sk{uid[0]}")
        a(f"s_add_u32 s25, s25, 64000")
    issue_loads(0)
    a(f"""
    v_lshrrev_b32 v{TMP}, 3, v{VLANE}
    v_lshrrev_b32 v{TMP+1}, 4, v{VLANE}
    v_xor_b32 v{TMP}, v{TMP}, v{TMP+1}
    v_and_b32 v{TMP}, 1, v{TMP}
    v_and_b32 v{TMP+1}, 1, v{VLANE}
    v_lshlrev_b32 v{TMP+1}, 4, v{TMP+1}
    v_mov_b32 v{TMP+2}, 0x3f80
    v_lshlrev_b32 v{TMP+2}, v{TMP+1}, v{TMP+2}
    v_cmp_eq_u32 vcc, 0, v{TMP}
    s_nop 1
    v_cndmask_b32 v{TMP+2}, 0, v{TMP+2}, vcc
    v_bfe_u32 v{TMP+3}, v{VLANE}, 1, 2
    """)
    for i in range(4):
        a(f"v_cmp_eq_u32 vcc, {i}, v{TMP+3}")
        a("s_nop 1")
        a(f"v_cndmask_b32 v{SEL+i}, 0, v{TMP+2}, vcc")
    for i in range(64):
        a(f"v_mov_b32 v{ACC+i}, 0")
    def chunk(buf, last):
        a("s_waitcnt vmcnt(0)")
        a("s_barrier")
        if not last:
            issue_loads(buf ^ 1)
        off = buf * BUF_STRIDE
        for t in range(T + DEPTH):
            if t < T:
                ad = ADR + 2 * (t & 1)
                d = DAT + 8 * (t % NB)
                a(f"v_and_b32 v{ad}, 0xffff, v{SCH+16*buf+t}")
                a(f"v_lshrrev_b32 v{ad+1}, 16, v{SCH+16*buf+t}")
                a(f"ds_read_b128 v[{d}:{d+3}], v{ad} offset:{off}")
                a(f"ds_read_b128 v[{d+4}:{d+7}], v{ad+1} offset:{off}")
            if t >= DEPTH:
                tt = t - DEPTH
                d = DAT + 8 * (tt % NB)
                outstanding = 2 * (min(t, T - 1) - tt)
                a(f"s_waitcnt lgkmcnt({outstanding+1})")
                a(f"v_mfma_f32_16x16x32_bf16 v[{ACC+4*tt}:{ACC+4*tt+3}], v[{SEL}:{SEL+3}], v[{d}:{d+3}], v[{ACC+4*tt}:{ACC+4*tt+3}]")
                a(f"s_waitcnt lgkmcnt({outstanding})")
                a(f"v_mfma_f32_16x16x32_bf16 v[{ACC+4*tt}:{ACC+4*tt+3}], v[{SEL}:{SEL+3}], v[{d+4}:{d+7}], v[{ACC+4*tt}:{ACC+4*tt+3}]")
    a("s_mov_b32 s31, 0")
    a.label(f"{name}_loop")
    chunk(0, False)
    chunk(1, False)
    a(f"""
    s_add_u32 s31, s31, 1
    s_cmp_lt_u32 s31, 12
    s_cbranch_scc1 {name}_loop
    """)
    chunk(0, True)
    BV = SCH; WV = SCH + 4; RAW = SCH + 8
    a(f"""
    v_bfe_u32 v{TMP}, v{VLANE}, 4, 1
    v_lshlrev_b32 v{TMP}, 3, v{TMP}
    s_lshl_b32 s32, s7, 4
    buffer_load_dwordx2 v[{RAW}:{RAW+1}], v{TMP}, s[16:19], s32 offen
    buffer_load_dwordx2 v[{RAW+2}:{RAW+3}], v{TMP}, s[20:23], s32 offen
    s_mov_b32 s33, {f32bits(-0.1029432397):#x}
    s_mov_b32 s34, {f32bits(-2.302208198):#x}
    v_mov_b32 v{TMP+1}, s34
    s_waitcnt vmcnt(0)
    v_lshlrev_b32 v{BV}, 16, v{RAW}
    v_and_b32 v{BV+1}, 0xffff0000, v{RAW}
    v_lshlrev_b32 v{BV+2}, 16, v{RAW+1}
    v_and_b32 v{BV+3}, 0xffff0000, v{RAW+1}
    v_lshlrev_b32 v{WV}, 16, v{RAW+2}
    v_and_b32 v{WV+1}, 0xffff0000, v{RAW+2}
    v_lshlrev_b32 v{WV+2}, 16, v{RAW+3}
    v_and_b32 v{WV+3}, 0xffff0000, v{RAW+3}
    """)
    a(f"""
    v_bfe_u32 v{TMP+2}, v{VLANE}, 4, 1
    v_lshlrev_b32 v{TMP+2}, 5, v{TMP+2}
    v_lshrrev_b32 v{TMP+3}, 5, v{VLANE}
    v_lshl_add_u32 v{TMP+2}, v{TMP+3}, 4, v{TMP+2}
    v_and_b32 v{TMP+3}, 15, v{VLANE}
    v_add_lshl_u32 v{TMP+2}, v{TMP+2}, v{TMP+3}, 2
    s_lshl_b32 s35, s7, 14
    s_lshl_b32 s36, s3, 12
    s_add_u32 s35, s35, s36
    s_lshl_b32 s36, s6, 9
    s_add_u32 s35, s35, s36
    s_lshl_b32 s35, s35, 2
    s_add_u32 s35, s35, {WS_PART}
    """)
    X = DAT; E = DAT + 8; S = DAT + 16
    for p in range(T // 2):
        for h in range(2):
            t = 2 * p + h
            for r in range(4):
                a(f"v_add_f32 v{X+4*h+r}, v{ACC+4*t+r}, v{BV+r}")
            for r in range(4):
                a(f"v_mul_f32 v{E+4*h+r}, v{X+4*h+r}, v{X+4*h+r}")
            for r in range(4):
                a(f"v_fma_f32 v{E+4*h+r}, v{E+4*h+r}, s33, v{TMP+1}")
            for r in range(4):
                a(f"v_mul_f32 v{E+4*h+r}, v{E+4*h+r}, v{X+4*h+r}")
            for r in range(4):
                a(f"v_exp_f32 v{E+4*h+r}, v{E+4*h+r}")
            for r in range(4):
                a(f"v_add_f32 v{E+4*h+r}, 1.0, v{E+4*h+r}")
            for r in range(4):
                a(f"v_rcp_f32 v{E+4*h+r}, v{E+4*h+r}")
            for r in range(4):
                a(f"v_mul_f32 v{X+4*h+r}, v{X+4*h+r}, v{WV+r}")
            a(f"v_mul_f32 v{S+h}, v{X+4*h}, v{E+4*h}")
            for r in range(1, 4):
                a(f"v_fma_f32 v{S+h}, v{X+4*h+r}, v{E+4*h+r}, v{S+h}")
        a("s_nop 1")
        a(f"v_permlane16_swap_b32 v{S}, v{S+1}")
        a("s_nop 1")
        a(f"v_add_f32 v{S+2+(p&1)}, v{S}, v{S+1}")
        a(f"buffer_store_dword v{S+2+(p&1)}, v{TMP+2}, s[12:15], s35 offen offset:{p*256}")
    a.label(f"{name}_end")
    a("s_endpgm")
    return NV

HEADER = """; Kernarg layout: idx(0) table(8) w_p(16) w1(24) b1(32) w2(40) b2(48) out(56) debug(64) ws(72)
"""

def build(kernels):
    a = Asm()
    descs = []
    head = HEADER
    for (name, fn, grid, block, lds) in kernels:
        head += f"; @launch kernel={name} grid=({grid},1,1) block=({block},1,1) lds={lds}\n"
    seen = set()
    for (name, fn, grid, block, lds) in kernels:
        if name in seen: continue
        seen.add(name)
        r = fn(a, name)
        if isinstance(r, tuple):
            descs.append(kernel_desc(name, r[0], accum=r[1]))
        else:
            descs.append(kernel_desc(name, r))
    s = head + '.amdgcn_target "amdgcn-amd-amdhsa--gfx950"\n.text\n' + a.text() + '.section .rodata,"a"\n' + "".join(descs)
    return s

if __name__ == "__main__":
    out = sys.argv[1]
    which = sys.argv[2] if len(sys.argv) > 2 else "k2"
    if which == "k2":
        s = build([("k2_gather_kernel", gen_k2, 256, 512, 2 * BUF_STRIDE)])
    open(out, "w").write(s)
```

```python
import sys, struct
from gen import Asm, kernel_header, kernel_desc, srd, build, f32bits, WS_BYTES

B, F, D, V, H = 16384, 100, 128, 1000, 512
SLS = 102656
WS_W1R = 0
WS_SCHED = 0x1000000
WS_PART = 0x1400000
WS_PNN = 0x1C00000
K2_LDS = 131072

STAMP = False
PMAP = False
import os
PSF = os.environ.get('PSF', '')
import os
PFD = int(os.environ.get('PFD', '2'))
PFSEL = 's_bfe_u32 s18, s33, 0x40002' if os.environ.get('PFFIX', '1') == '1' else 's_and_b32 s18, s33, 15'
K2PRIO = os.environ.get('K2PRIO', '')
import os
ABL = set(os.environ.get('ABL', '').split(','))
NOPF = os.environ.get('PF', '0') == '0'
WS_DBG = 0x3000000
WS_TABR = 0x0E00000
K2_LDS = 163840

SHF = int(os.environ.get("SHF", "2"))
PRE = SHF >= 8
class Cnt:
    def __init__(self): self.n = 0; self.tag = {}
    def issue(self, tag=None):
        self.n += 1
        if tag is not None: self.tag[tag] = self.n
    def after(self, tag):
        return self.n - self.tag[tag] if tag in self.tag else None

def gen_final(a, cnts, R, fstamp):
    ACC, SEL, IDX, VL16, VPW, TMP, DAT, SCH, NS, LSF = (R[k] for k in "ACC SEL IDX VL16 VPW TMP DAT SCH NS LSF".split())
    PK = os.environ.get("PK", "1") == "1"
    EPT = [int(x) for x in os.environ.get("EPT", "8,0").split(",")]
    TGAP = int(os.environ.get("TGAP", "3"))
    LAG = int(os.environ.get("LAG", "3"))
    S0 = 10 if SHF else 11
    BLK = int(os.environ.get("BLK", "0")); BULK = BLK > 0
    C2, C1, ONE, W01, W23 = 128, 130, 132, 134, 136
    EB = 140
    NB = 6
    if SHF:
        a(f"""
        s_add_u32 s40, s20, 61440
        s_add_u32 s41, s20, 65536
        s_add_u32 s44, s20, {61440+65536}
        s_add_u32 s45, s20, 131072
        """)
        SB = [[None, 20], [40, 41], [44, 45]]
    else:
        a(f"""
        s_add_u32 s18, s20, 4096
        s_add_u32 s40, s20, 65536
        s_add_u32 s41, s20, {65536+4096}
        """)
        SB = [[20, 18], [40, 41]]
    a(f"""
    s_lshl_b32 s28, s38, 16
    s_and_b32 s29, s38, 0xffff0000
    s_lshl_b32 s30, s39, 16
    s_and_b32 s31, s39, 0xffff0000
    s_lshl_b32 s35, s33, 16
    s_lshl_b32 s42, s34, 15
    s_add_u32 s35, s35, s42
    s_lshl_b32 s42, s3, 12
    s_add_u32 s35, s35, s42
    s_add_u32 s35, s35, {WS_PART}
    """)
    setup = [f"v_mov_b32 v{C2}, {f32bits(-0.1029432397):#x}", f"v_mov_b32 v{C2+1}, {f32bits(-0.1029432397):#x}",
             f"v_mov_b32 v{C1}, {f32bits(-2.302208198):#x}", f"v_mov_b32 v{C1+1}, {f32bits(-2.302208198):#x}",
             f"v_mov_b32 v{ONE}, 1.0", f"v_mov_b32 v{ONE+1}, 1.0"] + [f"v_mov_b32 v{W01+r}, s{28+r}" for r in range(4)] + \
            [f"v_lshrrev_b32 v{VPW}, 2, v{VL16}", f"v_and_b32 v{TMP}, 128, v{VPW}", f"v_add_u32 v{VPW}, v{VPW}, v{TMP}"]
    FW = os.environ.get("FW", "1") == "1" and PK
    if FW:
        setup += [f"v_rcp_f32 v{W01+r}, v{W01+r}" for r in range(4)] + [f"v_mov_b32 v{ONE}, 0x7f7fffff", f"v_mov_b32 v{ONE+1}, 0xff7fffff"] + \
                 [f"v_med3_f32 v{W01+r}, v{W01+r}, v{ONE}, v{ONE+1}" for r in range(4)]
    U = [(0, p) for p in range(LAG)]
    for p in range(8):
        U.append((1, p))
        if p + LAG < 8: U.append((0, p + LAG))
    if LAG == 0:
        U = [(0, 0), (0, 1), (0, 2), (1, 0), (1, 1), (1, 2)] + [(h, p) for p in range(3, 8) for h in range(2)]
    assert len(U) == 16 and U[:3] == [(0, 0), (0, 1), (0, 2)]
    if SHF:
        U = [(0, 1), (0, 2), (0, 3)] + [(h, p) for p in range(4) for h in (1, 2)] + [(h, p) for p in range(4, 8) for h in range(3)]
    if PRE:
        assert SHF == 8
        U = [(0, 4), (0, 5), (0, 6)] + [(h, p) for p in range(7) for h in (1, 2)] + [(0, 7), (1, 7), (2, 7)]
    NU = len(U); HL = 2 if SHF else 1
    def tile(n):
        if n < 0: return (16 + n + SHF) % 16, False
        hf, p = U[n >> 1]; return 2 * p + (n & 1), hf == HL
    pos = [0]
    def emit(txt):
        for l in txt.split("\n"):
            if l.strip(): a(l); pos[0] += 1
    def need(kind, tag):
        n = cnts[kind].after(tag)
        if n is not None: emit(f"s_waitcnt {kind}cnt({n})")
    ops = []
    def pr(x): return f"v[{x}:{x+1}]"
    lastuse = {}
    def add_tile(tt, smpos, k):
        X = ACC + 4 * tt; E = EB + 6 * (k % NB); Q = E + 4
        def o(text, deps, T=False, st=False):
            d = dict(text=text, T=T, deps=list(deps), done=None, ready=smpos + 12, st=st); ops.append(d); return d
        prev = lastuse.get(k % NB, [])
        ex = []; xw = []; rc = []
        for g in range(2):
            x = X + 2 * g; e = E + 2 * g; w = W01 + 2 * g
            if PK:
                m1 = o(f"v_pk_mul_f32 {pr(e)}, {pr(x)}, {pr(x)}", [(p_, 1) for p_ in prev])
                m2 = o(f"v_pk_fma_f32 {pr(e)}, {pr(e)}, {pr(C2)}, {pr(C1)}", [(m1, 2)])
                m3 = o(f"v_pk_mul_f32 {pr(e)}, {pr(e)}, {pr(x)}", [(m2, 2)])
                e0 = o(f"v_exp_f32 v{e}, v{e}", [(m3, 2)], T=True)
                e1 = o(f"v_exp_f32 v{e+1}, v{e+1}", [(m3, 2)], T=True)
                if FW:
                    m4 = m3
                    m5 = o(f"v_pk_fma_f32 {pr(e)}, {pr(e)}, {pr(w)}, {pr(w)}", [(e0, 3), (e1, 3)])
                else:
                    m4 = o(f"v_pk_mul_f32 {pr(x)}, {pr(x)}, {pr(w)}", [(m3, 1)])
                    m5 = o(f"v_pk_add_f32 {pr(e)}, {pr(e)}, {pr(ONE)}", [(e0, 3), (e1, 3)])
                r0 = o(f"v_rcp_f32 v{e}, v{e}", [(m5, 2)], T=True)
                r1 = o(f"v_rcp_f32 v{e+1}, v{e+1}", [(m5, 2)], T=True)
                xw.append(m4); rc += [r0, r1]
            else:
                for u in range(2):
                    m1 = o(f"v_mul_f32 v{e+u}, v{x+u}, v{x+u}", [(p_, 1) for p_ in prev])
                    m2 = o(f"v_fma_f32 v{e+u}, v{e+u}, v{C2}, v{C1}", [(m1, 2)])
                    m3 = o(f"v_mul_f32 v{e+u}, v{e+u}, v{x+u}", [(m2, 2)])
                    e0 = o(f"v_exp_f32 v{e+u}, v{e+u}", [(m3, 2)], T=True)
                    m4 = o(f"v_mul_f32 v{x+u}, v{x+u}, v{w+u}", [(m3, 1)])
                    m5 = o(f"v_add_f32 v{e+u}, 1.0, v{e+u}", [(e0, 3)])
                    r0 = o(f"v_rcp_f32 v{e+u}, v{e+u}", [(m5, 2)], T=True)
                    xw.append(m4); rc.append(r0)
        if PK:
            q0 = o(f"v_pk_mul_f32 {pr(Q)}, {pr(X)}, {pr(E)}", [(xw[0], 2), (rc[0], 3), (rc[1], 3)] + [(p_, 1) for p_ in prev])
            q1 = o(f"v_pk_fma_f32 {pr(Q)}, {pr(X+2)}, {pr(E+2)}, {pr(Q)}", [(xw[1], 2), (rc[2], 3), (rc[3], 3), (q0, 2)])
            q2 = o(f"v_add_f32 v{Q}, v{Q}, v{Q+1}", [(q1, 2)])
        else:
            q2 = o(f"v_mul_f32 v{Q}, v{X}, v{E}", [(xw[0], 2), (rc[0], 3)] + [(p_, 1) for p_ in prev])
            for r in range(1, 4):
                q2 = o(f"v_fma_f32 v{Q}, v{X+r}, v{E+r}, v{Q}", [(xw[r], 2), (rc[r], 3), (q2, 2)])
        st = o(f"buffer_store_dword v{Q}, v{VPW}, s[12:15], s35 offen offset:{(tt>>1)*512+(tt&1)*128}{PSF}" if not os.environ.get("NOST") else "s_nop 0", [(q2, 2)], st=not os.environ.get("NOST"))
        lastuse[k % NB] = [st]
    lastT = [-100]
    def ok(o_):
        return o_["done"] is None and pos[0] >= o_["ready"] and all(d["done"] is not None and pos[0] - d["done"] >= dist for d, dist in o_["deps"])
    def epi(n, force=False):
        while n > 0:
            if setup:
                emit(setup.pop(0)); n -= 1; continue
            cand = [o_ for o_ in ops if ok(o_)]
            if not cand:
                if force and any(o_["done"] is None for o_ in ops): emit("s_nop 0"); continue
                return
            tc = [o_ for o_ in cand if o_["T"]]; nc = [o_ for o_ in cand if not o_["T"]]
            if tc and (pos[0] - lastT[0] >= TGAP or not nc): c = tc[0]
            else: c = nc[0]
            c["done"] = pos[0]
            if c["T"]: lastT[0] = pos[0]
            emit(c["text"])
            if c["st"]: cnts["vm"].issue(None)
            n -= 1
    kk = 0
    FPRI = [int(x) for x in os.environ.get("FPRI", "24,38,46").split(",") if x]
    FL = int(os.environ.get("FL", "2"))
    J0 = 16 * S0 + SHF
    ring = [DAT + 8 * (J0 % 3)] + [224 + 8 * i for i in range(FL - 2)] + [DAT + 8 * ((J0 + 1) % 3), DAT + 8 * ((J0 + 2) % 3)]
    assert not (BULK and FL > 2 and SHF)
    def dbuf(n): return ring[n % (FL + 1)]
    for n in range(2 * NU + FL):
        J = 16 * S0 + SHF + n
        if FPRI and n == 0: emit(f"s_setprio {len(FPRI)}")
        if n in FPRI: emit(f"s_setprio {len(FPRI) - 1 - FPRI.index(n)}")
        if n < 2 * NU:
            sreg = SCH + 4 * ((J >> 1) % NS) + 2 * (J & 1)
            if BULK and n >= 2 * NS: sreg = 176 + 4 * ((n >> 1) - NS) + 2 * (J & 1)
            d = dbuf(n)
            for hh in range(2):
                if BULK:
                    for q in range(NS + BLK * (2 * n + hh), min(NU, NS + BLK * (2 * n + hh + 1))):
                        hf, p = U[q]; sb = SB[hf][p >> 2]; slot = 176 + 4 * (q - NS)
                        emit(f"buffer_load_dwordx4 v[{slot}:{slot+3}], v{VL16}, s[12:15], s{sb} offen offset:{(p&3)*1024}{LSF}")
                        cnts["vm"].issue(("s", 8 * S0 + SHF // 2 + q))
                epi(EPT[hh])
                if hh == 0 and J % 2 == 0: need("vm", ("s", J >> 1))
                for h in (2 * hh, 2 * hh + 1):
                    emit(f"v_lshlrev_b32_sdwa v{d+2*h}, 3, v{sreg+(h>>1)} dst_sel:DWORD dst_unused:UNUSED_PAD src0_sel:DWORD src1_sel:WORD_{h&1}")
                for h in (2 * hh, 2 * hh + 1):
                    emit(f"ds_read_b64 v[{d+2*h}:{d+2*h+1}], v{d+2*h}")
                    cnts["lgkm"].issue(("r", J))
            if n % 2 == 1 and (n >> 1) + NS < NU and not BULK:
                Pn = (J >> 1) + NS; slot = SCH + 4 * (Pn % NS)
                hf, p = U[(n >> 1) + NS]
                sb = SB[hf][p >> 2]
                emit(f"buffer_load_dwordx4 v[{slot}:{slot+3}], v{VL16}, s[12:15], s{sb} offen offset:{(p&3)*1024}{LSF}")
                cnts["vm"].issue(("s", Pn))
        else: epi(EPT[0] + EPT[1])
        if n - FL < -2: continue
        t = J - FL; dt = dbuf(n - FL); tt, hf = tile(n - FL)
        need("lgkm", ("r", t))
        emit(f"v_smfmac_f32_16x16x64_bf16 v[{ACC+4*tt}:{ACC+4*tt+3}], v[{SEL}:{SEL+3}], v[{dt}:{dt+7}], v{IDX}")
        if hf:
            add_tile(tt, pos[0], kk); kk += 1
    if os.environ.get("ESTAMP"): fstamp(3)
    left = sum(o_["done"] is None for o_ in ops)
    print("final: epilogue ops left after gather:", left, file=sys.stderr)
    epi(10000, force=True)
    assert all(o_["done"] is not None for o_ in ops) and kk == 16

def gen_k2(a, name, fstamp, fstamp_out, MT):
    ACC = 0; SEL = 64; IDX = 68; VL16 = 69; VPW = 70; TMP = 71
    W = 72; DAT = 88; PB = 112; SCH = 116
    NS = 3
    LSF = os.environ.get("LSF", " sc1")
    def rstamp(): pass
    def stamp(fixed=None): return False
    def T(i, ks): return f"v[{128+16*i+4*ks}:{128+16*i+4*ks+3}]"
    def wld(reg, ks, sf): return f"buffer_load_dwordx4 v[{reg}:{reg+3}], v{VL16}, s[12:15], s{21 if ks < 2 else 19} offen offset:{(ks&1)*1024}{sf}"
    WINC = "s_add_u32 s21, s21, 4096\ns_add_u32 s19, s19, 4096"
    a.label(f"{name}_k2")
    L = 0
    a(f"""
    s_setprio 0
    s_load_dwordx4 s[8:11], s[0:1], 32
    v_mbcnt_lo_u32_b32 v{L}, -1, 0
    v_mbcnt_hi_u32_b32 v{L}, -1, v{L}
    s_mul_i32 s35, s3, {128*144}
    v_and_b32 v{L+1}, 15, v{L}
    v_lshrrev_b32 v{L+2}, 4, v{L}
    v_mul_u32_u24 v{TMP}, 144, v{L+1}
    v_lshl_add_u32 v{TMP}, v{L+2}, 4, v{TMP}
    v_add_u32 v{TMP}, s35, v{TMP}
    """)
    for i in range(8):
        for ks in range(2):
            a(f"ds_read_b128 {T(i,ks)}, v{TMP} offset:{2304*i+64*ks}")
    a(f"""
    s_lshr_b32 s33, s2, 1
    s_and_b32 s34, s2, 1
    s_mov_b32 s32, 0x8000
    v_lshlrev_b32 v{VL16}, 4, v{L}
    s_mul_i32 s21, s33, {SLS}
    s_lshl_b32 s35, s50, 11
    s_xor_b32 s19, s35, 2048
    s_add_u32 s19, s19, s21
    s_add_u32 s21, s21, s35
    s_mul_i32 s20, s34, {25*65536}
    s_add_u32 s20, s20, {WS_SCHED}
    s_lshl_b32 s35, s3, 13
    s_add_u32 s20, s20, s35
    v_lshlrev_b32 v{VPW}, 13, v{L+2}
    v_lshl_add_u32 v{VPW}, v{L+1}, 3, v{VPW}
    s_lshl_b32 s35, s3, 10
    v_add_u32 v{VPW}, s35, v{VPW}
    v_lshrrev_b32 v{L+4}, 3, v{L}
    v_xor_b32 v{L+4}, v{L+4}, v{L+2}
    v_and_b32 v{L+4}, 1, v{L+4}
    v_bfe_u32 v{L+5}, v{L}, 2, 1
    v_lshl_or_b32 v{L+4}, v{L+4}, 1, v{L+5}
    v_mov_b32 v{L+6}, 0x3f80
    v_cmp_eq_u32 vcc, 0, v{L+4}
    s_nop 1
    v_cndmask_b32 v{SEL}, 0, v{L+6}, vcc
    v_cndmask_b32 v{SEL+1}, 0, v{L+6}, vcc
    v_cmp_eq_u32 vcc, 1, v{L+4}
    s_nop 1
    v_cndmask_b32 v{SEL+2}, 0, v{L+6}, vcc
    v_cndmask_b32 v{SEL+3}, 0, v{L+6}, vcc
    v_and_b32 v{L+5}, 3, v{L}
    v_mul_u32_u24 v{IDX}, 0x5555, v{L+5}
    """)
    def wl(base):
        for ks in range(4): a(wld(base + 4 * ks, ks, " sc1"))
        a(WINC)
    def first_loads():
        wl(0); wl(16)
        if SHF: a("s_mov_b32 s44, s21\ns_mov_b32 s45, s19\n" + WINC)
        if not PRE: wl(W)
        sched_load(0); sched_load(1)
    fillers = []
    def pphase(wb, first_waits=None, off=0, f0=1):
        for i in range(10):
            if i < 8:
                if first_waits is not None:
                    a(f"s_waitcnt vmcnt({first_waits(i)})")
                pb = DAT + 4 * (i % 3)
                for ks in range(4):
                    c = "0" if ks == 0 else f"v[{pb}:{pb+3}]"
                    a(f"v_mfma_f32_16x16x32_bf16 v[{pb}:{pb+3}], v[{wb+4*ks}:{wb+4*ks+3}], {T(i,ks)}, {c}")
                    if fillers and i >= f0: a(fillers.pop(0))
            if i >= 2:
                t = i - 2
                pb = DAT + 4 * (t % 3); cv = DAT + 12 + 2 * (t & 1)
                if i == 9: a("s_nop 1")
                a(f"v_cvt_pk_bf16_f32 v{cv}, v{pb}, v{pb+1}")
                a(f"v_cvt_pk_bf16_f32 v{cv+1}, v{pb+2}, v{pb+3}")
                a(f"ds_write_b64 v{VPW}, v[{cv}:{cv+1}] offset:{t*128+off}")
        a(f"v_add_u32 v{VPW}, 0x8000, v{VPW}")
    def sched_load(Pp):
        t = Pp % 8
        slot = SCH + 4 * (Pp % NS)
        a(f"buffer_load_dwordx4 v[{slot}:{slot+3}], v{VL16}, s[12:15], s20 offen offset:{(t&3)*1024} sc1")
        if t == 3: a("s_add_u32 s20, s20, 4096")
        if t == 7: a("s_add_u32 s20, s20, 61440")
    a(f"s_cmp_lt_u32 s3, 4\ns_cbranch_scc1 {name}_k2n")
    first_loads()
    a.label(f"{name}_k2n")
    a(f"""
    s_and_b32 s35, s3, 3
    s_lshl_b32 s35, s35, 14
    s_add_u32 s35, s35, 98304
    v_add_u32 v{TMP}, s35, v{VL16}
    s_lshl_b32 s35, s33, 3
    s_waitcnt lgkmcnt(0)
    s_add_u32 s8, s8, s35
    s_addc_u32 s9, s9, 0
    s_add_u32 s10, s10, s35
    s_addc_u32 s11, s11, 0
    s_barrier
    """)
    fstamp(4)
    a(f"""
    s_load_dwordx2 s[36:37], s[8:9], 0
    s_load_dwordx2 s[38:39], s[10:11], 0
    s_cmp_lt_u32 s3, 4
    s_cbranch_scc1 {name}_k2m
    """)
    TR2 = os.environ.get("TR2", "1") == "1" and SHF
    pend = []
    def pphase2(wb, off, drain):
        for p in range(4):
            for ks in range(4):
                for u in range(2):
                    a(mf(DAT + 8 * (pc[0] % 3) + 4 * u, wb, 2 * p + u, ks, ks == 0))
                    if ks >= 1 and pend: a(pend.pop(0))
                    if fillers and (p or ks >= 2): a(fillers.pop(0))
            assert not pend
            for u in range(2): pend.extend(fin(DAT + 8 * (pc[0] % 3) + 4 * u, 2 * p + u, off))
            pc[0] += 1
        if drain:
            while fillers: a(fillers.pop(0))
            a("s_nop 7")
            while pend: a(pend.pop(0))
    pc = [0]
    TST = os.environ.get("TSTAMP")
    def ini(r0, r1): return [f"v_mov_b32 v{ACC+i}, s{24+(i&3)}" for i in range(r0, r1)]
    def w2ld(r):
        for ks in range(4): a(f"buffer_load_dwordx4 v[{r+4*ks}:{r+3+4*ks}], v{VL16}, s[12:15], s{44 if ks < 2 else 45} offen offset:{(ks&1)*1024} sc1")
    BIAS = """
        s_lshl_b32 s24, s36, 16
        s_and_b32 s25, s36, 0xffff0000
        s_lshl_b32 s26, s37, 16
        s_and_b32 s27, s37, 0xffff0000
        """
    def mf(pb, wb, i, ks, zero): return f"v_mfma_f32_16x16x32_bf16 v[{pb}:{pb+3}], v[{wb+4*ks}:{wb+4*ks+3}], {T(i,ks)}, {'0' if zero else f'v[{pb}:{pb+3}]'}"
    def fin(pb, t, off): return [f"v_cvt_pk_bf16_f32 v{pb}, v{pb}, v{pb+1}", f"v_cvt_pk_bf16_f32 v{pb+1}, v{pb+2}, v{pb+3}", f"ds_write_b64 v{VPW}, v[{pb}:{pb+1}] offset:{t*128+off}"]
    assert TR2
    if TR2:
        assert MT[:8] == [32 + 4 * i for i in range(8)]
        a(f"s_waitcnt vmcnt({6 if PRE else 10})")
        def mtw(q): a(f"ds_write_b128 v{TMP}, v[{MT[q]}:{MT[q]+3}] offset:{1024*q}")
        for q in range(4): mtw(q)
        BPOS = int(os.environ.get("BPOS", "28"))
        c = 0
        for g in range(2):
            for ks in range(4):
                for i in range(4 * g, 4 * g + 4):
                    a(mf(32 + 4 * i, 0, i, ks, ks == 0)); c += 1
                    if c % 2 == 0 and 3 + c // 2 < 16: mtw(3 + c // 2)
                    if c == BPOS: a("s_waitcnt lgkmcnt(0)\ns_barrier")
        sched_load(2)
        if PRE:
            a("s_waitcnt vmcnt(3)" + BIAS)
            fl = [x for t in range(8) for x in fin(32 + 4 * t, t, 0)]
            for ks in range(4):
                fl[12 + ks] += f"\nbuffer_load_dwordx4 v[{32+4*ks}:{35+4*ks}], v{VL16}, s[12:15], s{44 if ks < 2 else 45} offen offset:{(ks&1)*1024} sc1"
            i0 = ini(0, 16)
            for k_ in range(16): fl[k_ + 4] += "\n" + i0[k_]
            fillers += fl + ["s_nop 0"] * 4 + ini(48, 64) + ini(16, 32)
            pphase2(16, 0x8000, True)
            a(f"v_add_u32 v{VPW}, 0x10000, v{VPW}")
        else:
            w2ld(0)
            a("s_waitcnt vmcnt(11)" + BIAS)
            if TST: fstamp(5)
            fillers += [x for t in range(8) for x in fin(32 + 4 * t, t, 0)]
            pphase2(16, 0x8000, False)
            assert not fillers
            a(f"v_add_u32 v{VPW}, 0x8000, v{VPW}\ns_waitcnt vmcnt(0)")
            pend[:] = [x.replace(f"offset:{t*128+0x8000}", f"offset:{t*128}") for x in pend for t in (6, 7) if "offset" not in x and t == 6 or f"offset:{t*128+0x8000}" in x]
            fillers += [x + "\n" + y for x, y in zip(ini(16, 40), ini(40, 64))] + ["s_nop 0"] * 4 + ini(0, 16)
            pphase2(0, 0x8000, True)
            a(f"v_add_u32 v{VPW}, 0x10000, v{VPW}")
        a(f"s_branch {name}_k2j")
        a.label(f"{name}_k2m")
        first_loads()
        sched_load(2)
        w2ld(32)
        PBM = [48 + 4 * i for i in range(4)] + [DAT + 4 * i for i in range(4)]
        MPB = os.environ.get("MPB", "0") == "1"
        def own():
            a(f"s_waitcnt vmcnt({11 if PRE else 15})")
            for ks in range(2):
                for i in range(8): a(mf(PBM[i], 0, i, ks, ks == 0))
        if MPB: own()
        a("s_waitcnt lgkmcnt(0)\ns_barrier")
        for q in range(16):
            a(f"ds_read_b128 {T(q>>1, 2+(q&1))}, v{TMP} offset:{1024*q}")
        if not MPB: own()
        a(BIAS)
        if TST: fstamp(5)
        nw = 0
        for i in range(0, 12, 2):
            if i < 8:
                a(f"s_waitcnt lgkmcnt({12 - 2 * i + nw})")
                for ks in (2, 3):
                    for u in range(2): a(mf(PBM[i + u], 0, i + u, ks, False))
            else: a("s_nop 3")
            if i >= 4:
                for u in range(2):
                    for l in fin(PBM[i - 4 + u], i - 4 + u, 0): a(l)
                    nw += 1
        a(f"v_add_u32 v{VPW}, 0x8000, v{VPW}\ns_waitcnt vmcnt({7 if PRE else 11})")
        fillers += ini(48, 64) + ini(0, 12)
        pc[0] = 2
        if PRE:
            fillers += ini(12, 32)
            pphase2(16, 0, True)
            a(f"v_add_u32 v{VPW}, 0x8000, v{VPW}")
        else:
            pphase2(16, 0, False)
            a("s_waitcnt vmcnt(0)")
            fillers += ini(12, 32) + ["s_nop 0"] * 8 + ini(32, 48)
            pphase2(32, 0x8000, True)
            a(f"v_add_u32 v{VPW}, 0x10000, v{VPW}")
        a.label(f"{name}_k2j")
    else:
        for q in range(16):
            a(f"ds_write_b128 v{TMP}, v[{MT[q]}:{MT[q]+3}] offset:{1024*q}")
        a(f"""
        s_waitcnt lgkmcnt(0)
        s_barrier
        s_branch {name}_k2j
        """)
        a.label(f"{name}_k2m")
        a("s_barrier")
        for q in range(16):
            a(f"ds_read_b128 {T(q>>1, 2+(q&1))}, v{TMP} offset:{1024*q}")
        a.label(f"{name}_k2j")
        sched_load(2)
    if SHF and not TR2:
        for ks in range(4): a(f"buffer_load_dwordx4 v[{32+4*ks}:{35+4*ks}], v{VL16}, s[12:15], s{44 if ks < 2 else 45} offen offset:{(ks&1)*1024} sc1")
        a(f"""
        s_waitcnt vmcnt(15) lgkmcnt(0)
        s_lshl_b32 s24, s36, 16
        s_and_b32 s25, s36, 0xffff0000
        s_lshl_b32 s26, s37, 16
        s_and_b32 s27, s37, 0xffff0000
        """)
        if TST: fstamp(5)
        fillers += ini(48, 64)
        pphase(0)
        a("s_waitcnt vmcnt(11)")
        fillers += ini(0, 16)
        pphase(16)
        a("s_waitcnt vmcnt(0)")
        fillers += ini(16, 32)
        pphase(32)
        assert not fillers
        for l in ini(32, 48): a(l)
    if SHF:
        if TST: fstamp(1)
        a(f"""
        s_mov_b32 s22, 0
        s_mov_b32 s23, {2 if PRE else 3}
        s_waitcnt {"vmcnt(0) " if PRE else ""}lgkmcnt(0)
        s_barrier
        """)
        fstamp(6)
        for J in range(0 if PRE else 2):
            d = DAT + 8 * J
            for h in range(4):
                a(f"v_lshlrev_b32_sdwa v{d+2*h}, 3, v{SCH+2*J+(h>>1)} dst_sel:DWORD dst_unused:UNUSED_PAD src0_sel:DWORD src1_sel:WORD_{h&1}")
            for h in range(4):
                a(f"ds_read_b64 v[{d+2*h}:{d+2*h+1}], v{d+2*h}")
        if not PRE: sched_load(3)
    else:
        a("s_waitcnt vmcnt(11) lgkmcnt(0)")
        pphase(0)
        a("s_waitcnt vmcnt(7)")
        pphase(16)
    PRIOTXT = ""
    if K2PRIO == "hi": PRIOTXT = f"s_cmp_lt_u32 s3, 4\ns_cbranch_scc1 {name}_np\ns_setprio 1\n{name}_np:"
    if K2PRIO == "lo": PRIOTXT = f"s_cmp_ge_u32 s3, 4\ns_cbranch_scc1 {name}_np\ns_setprio 1\n{name}_np:"
    FIN = os.environ.get("FIN", "1") == "1"
    if not SHF:
        if FIN:
            a(f"""
            s_lshl_b32 s24, s36, 16
            s_and_b32 s25, s36, 0xffff0000
            s_lshl_b32 s26, s37, 16
            s_and_b32 s27, s37, 0xffff0000
            s_nop 3
            """)
        else: a("s_nop 7")
        for i in range(64):
            a(f"v_mov_b32 v{ACC+i}, {f's{24+(i&3)}' if FIN else 0}")
        for i in range(24):
            a(f"v_mov_b32 v{DAT+i}, 0")
        a(f"""
        s_mov_b32 s22, 0
        s_mov_b32 s23, 2
        {PRIOTXT}
        s_waitcnt vmcnt(0) lgkmcnt(0)
        s_barrier
        """)
        fstamp(6)
    vm = Cnt(); lg = Cnt(); uid = [0]
    cnts = {"vm": vm, "lgkm": lg}
    log = []
    RATE = float(os.environ.get("RATE", "1.9")); START = int(os.environ.get("START", "2")); GAP = int(os.environ.get("GAP", "2"))
    SMPOS = int(os.environ.get("SMPOS", "4"))
    LPRI = [int(x) for x in os.environ.get("LPRI", "8,12,15").split(",") if x]
    def op(text, kind="x", needs=(), issues=None):
        return dict(text=text, kind=kind, needs=list(needs), issues=issues)
    def build_step(S, last):
        G = []
        pre_ = S < 0
        j0 = 16 - SHF if pre_ else 0
        WB = 32 if pre_ else W
        for j in range(j0, 16 + (2 if last else 0)):
            J = 16 * S + j + SHF
            t = J - 2; dt = DAT + 8 * (t % 3); tt = t % 16
            smop = op(f"v_smfmac_f32_16x16x64_bf16 v[{ACC+4*tt}:{ACC+4*tt+3}], v[{SEL}:{SEL+3}], v[{dt}:{dt+7}], v{IDX}" if "nosm" not in ABL else "", "sm", [("lgkm", ("r", t))])
            if t < 0: smop = op("", "sm")
            if j < 16:
                sreg = SCH + 4 * ((J >> 1) % NS) + 2 * (J & 1)
                d = DAT + 8 * (J % 3)
                for h in range(4):
                    if h == SMPOS: G.append(smop)
                    G.append(op(f"v_lshlrev_b32_sdwa v{d+2*h}, 3, v{sreg+(h>>1)} dst_sel:DWORD dst_unused:UNUSED_PAD src0_sel:DWORD src1_sel:WORD_{h&1}",
                                "va", [("vm", ("s", J >> 1))] if (h == 0 and J % 2 == 0 and "nos" not in ABL) else []))
                    G.append(op(f"ds_read_b64 v[{d+2*h}:{d+2*h+1}], v{d+2*h}" if "nor" not in ABL else "", "rd", [], ("lgkm", ("r", J)) if "nor" not in ABL else None))
                if J % 2 == 1 and not (last and (j >> 1) + NS >= 8) and "nos" not in ABL:
                    Pn = (J >> 1) + NS
                    tq = Pn % 8; slot = SCH + 4 * (Pn % NS)
                    txt = f"buffer_load_dwordx4 v[{slot}:{slot+3}], v{VL16}, s[12:15], s20 offen offset:{(tq&3)*1024}{LSF}"
                    if tq == 3: txt += "\ns_add_u32 s20, s20, 4096"
                    if tq == 7: txt += "\ns_add_u32 s20, s20, 61440"
                    G.append(op(txt, "vl", [], ("vm", ("s", Pn))))
            if SMPOS >= 4 or j >= 16: G.append(smop)
        if last: return G
        P = []
        NPT = int(os.environ.get("NPT", "8"))
        for i in range(NPT):
            for ks in range(4):
                c = "0" if ks == 0 else f"v[{PB}:{PB+3}]"
                grp = [op(f"v_mfma_f32_16x16x32_bf16 v[{PB}:{PB+3}], v[{WB+4*ks}:{WB+4*ks+3}], {T(i,ks)}, {c}" if "nop" not in ABL else "",
                          "m3" if ks == 3 else "m", [("vm", ("w", S, ks))] if (i == 0 and "now" not in ABL) else [])]
                kw = ks if (i == NPT - 1 and not pre_) else (2 * (i - 4) + (ks >> 1) if (pre_ and i in (4, 5) and ks % 2 == 0) else None)
                if kw is not None and "now" not in ABL:
                    txt = wld(W + 4 * kw, kw, LSF)
                    if kw == 3: txt += "\n" + WINC
                    grp.append(op(txt, "vl", [], ("vm", ("w", S + 1, kw))))
                P.append(grp)
            for g in range(GAP): P.append([])
            P.append([op(f"v_cvt_pk_bf16_f32 v{PB}, v{PB}, v{PB+1}", "cv")])
            P.append([op(f"v_cvt_pk_bf16_f32 v{PB+1}, v{PB+2}, v{PB+3}", "va")])
            P.append([op(f"ds_write_b64 v{VPW}, v[{PB}:{PB+1}] offset:{i*128}" if "nodw" not in ABL else "", "dw", [], ("lgkm", ("pw", S, i)) if "nodw" not in ABL else None)])
        P.append([op(f"""s_add_u32 s23, s23, 1
            s_cmp_eq_u32 s23, 5
            s_cselect_b32 s35, {(-131072) & 0xffffffff}, s32
            s_cselect_b32 s23, 0, s23
            v_add_u32 v{VPW}, s35, v{VPW}""", "va")])
        if "nopf" not in ABL and not NOPF:
            P.append([op("PF", "pf")])
        ORDER = os.environ.get("ORDER", "1sfsfssfs")
        if pre_:
            ORDER = "8ffffffff"
            P.append([op("\n".join(ini(32, 48)), "va")])
        if ORDER:
            flat = [p for p in P if p]
            tilesP = [flat[7 * i:7 * i + 7] for i in range(NPT)]; tail = flat[7 * NPT:]
            pre = {}; post = {}
            j = int(ORDER[0])
            for i, c in enumerate(ORDER[1:]):
                m = tilesP[i]
                if c == "q":
                    pre[(j, 0)] = m[0]; pre[(j + 1, 0)] = m[1]; pre[(j + 2, 0)] = m[2]; pre[(j + 3, 0)] = m[3]; post[j + 3] = m[4] + m[5] + m[6]; j += 4
                elif c == "t":
                    pre[(j, 0)] = m[0]; pre[(j + 1, 0)] = m[1]; pre[(j + 2, 0)] = m[2]; pre[(j + 2, 1)] = m[3]; post[j + 2] = m[4] + m[5] + m[6]; j += 3
                elif c == "f":
                    pre[(j, 0)] = m[0] + m[1]; pre[(j, 1)] = m[2] + m[3]; post[j] = m[4] + m[5] + m[6]; j += 1
                else:
                    pre[(j, 0)] = m[0]; pre[(j, 1)] = m[1]; pre[(j + 1, 0)] = m[2]; pre[(j + 1, 1)] = m[3]; post[j + 1] = m[4] + m[5] + m[6]; j += 2
            assert j <= 16
            post[j - 1] = post[j - 1] + [x for t_ in tail for x in t_]
            out = []
            gi = 0
            for jj in range(j0, 16):
                va = []; rd = []; vl = []; sm = None
                while True:
                    g = G[gi]; gi += 1
                    if g["kind"] == "va": va.append(g)
                    elif g["kind"] == "rd": rd.append(g)
                    elif g["kind"] == "vl": vl.append(g)
                    elif g["kind"] == "sm": sm = g; break
                if LPRI and jj == 0: out.append(op(f"s_setprio {len(LPRI)}", "x"))
                if jj in LPRI: out.append(op(f"s_setprio {len(LPRI) - 1 - LPRI.index(jj)}", "x"))
                out += pre.get((jj, 0), []) + va[0:2] + rd[0:2] + pre.get((jj, 1), []) + va[2:4] + rd[2:4] + vl + [sm] + post.get(jj, [])
            assert gi == len(G)
            if "nobar" not in ABL: out.append(op("s_barrier", "bar", [("lgkm", ("pw", S, NPT - 1))] if "nodw" not in ABL else []))
            return out
        out = []
        k = 0
        for gi, g in enumerate(G):
            out.append(g)
            while k < len(P) and gi >= START + k * RATE:
                ism = P[k] and P[k][0]["kind"] in ("m", "m3")
                nxt = G[gi + 1]["kind"] if gi + 1 < len(G) else None
                if ism and (g["kind"] == "sm" or nxt == "sm") and gi + 1 < len(G): break
                out.extend(P[k]); k += 1
        while k < len(P):
            out.extend(P[k]); k += 1
        if "nobar" not in ABL:
            out.append(op("s_barrier", "bar", [("lgkm", ("pw", S, 7))] if "nodw" not in ABL else []))
        return out
    since_m3 = [100]
    def emit_line(txt):
        for l in txt.split("\n"):
            if l.strip():
                a(l); since_m3[0] += 1
    def step(S, emit, last=False, waits=None):
        for o in build_step(S, last):
            for kind, tag in o["needs"]:
                n = cnts[kind].after(tag)
                log.append((kind, n))
                if waits is not None:
                    k2, n2 = next(waits)
                    assert k2 == kind and (n is None or n2 <= n), (kind, tag, n, n2)
                    n = n2
                if emit and n is not None:
                    emit_line(f"s_waitcnt {kind}cnt({n})")
            if emit:
                if o["kind"] == "pf":
                    uid[0] += 1
                    emit_line(f"""s_cmp_gt_u32 s3, 1
                    s_cbranch_scc1 {name}_pf{uid[0]}
                    v_lshlrev_b32 v{TMP}, 2, v{VL16}
                    s_cmp_eq_u32 s3, 0
                    s_cselect_b32 s19, s21, s18
                    buffer_load_dword v{TMP}, v{TMP}, s[12:15], s19 offen""")
                    a.label(f"{name}_pf{uid[0]}")
                    emit_line("s_add_u32 s18, s18, 65536")
                else:
                    if o["kind"] == "cv" and since_m3[0] < 8:
                        emit_line(f"s_nop {7 - since_m3[0]}")
                    emit_line(o["text"])
                    if o["kind"] == "m3": since_m3[0] = 0
            if o["issues"]: cnts[o["issues"][0]].issue(o["issues"][1])
            if o["kind"] == "bar":
                if emit: stamp()
                if STAMP: vm.issue(None)
    for S in range(3): step(S, False)
    log.clear()
    for S in range(3, 6): step(S, False)
    steady = list(log); log.clear()
    for S in range(6, 9): step(S, False)
    assert steady == log
    assert all(n is not None for _, n in steady) or ABL != {""}
    if PRE:
        keep = dict(cnts); cnts["vm"] = Cnt(); cnts["lgkm"] = Cnt()
        step(-1, True)
        it = iter(steady)
        for S in range(3): step(S, False, waits=it)
        cnts.update(keep)
    a.label(f"{name}_gloop")
    it = iter(steady)
    if FIN:
        import copy
        for S in range(9, 10 if SHF else 11): step(S, True, waits=it)
        snap = copy.deepcopy(cnts)
        a(f"""
        s_cmp_eq_u32 s22, 7
        s_cbranch_scc1 {name}_fin
        """)
        for S in range(10 if SHF else 11, 12): step(S, True, waits=it)
        a(f"""
        s_add_u32 s22, s22, 1
        s_branch {name}_gloop
        """)
        a.label(f"{name}_fin")
        if os.environ.get("ESTAMP"): fstamp(4)
        cnts.update(snap)
        gen_final(a, cnts, dict(ACC=ACC, SEL=SEL, IDX=IDX, VL16=VL16, VPW=VPW, TMP=TMP, DAT=DAT, SCH=SCH, NS=NS, LSF=LSF), fstamp)
        fstamp(7)
        fstamp_out(VL16)
        return
    for S in range(9, 12): step(S, True, waits=it)
    a(f"""
    s_add_u32 s22, s22, 1
    s_cmp_lt_u32 s22, 8
    s_cbranch_scc1 {name}_gloop
    """)
    if os.environ.get("ESTAMP"): fstamp(4)
    step(12, True, last=True)
    PMAPTXT = f"v_lshrrev_b32 v{VPW}, 2, v{VL16}"
    if PMAP: PMAPTXT += f"\nv_and_b32 v{DAT}, 128, v{VPW}\nv_add_u32 v{VPW}, v{VPW}, v{DAT}"
    a.label(f"{name}_epi")
    a('s_nop 7')
    if os.environ.get("ESTAMP"): fstamp(3)
    rstamp()
    stamp()
    a(f"""
    s_lshl_b32 s24, s36, 16
    s_and_b32 s25, s36, 0xffff0000
    s_lshl_b32 s26, s37, 16
    s_and_b32 s27, s37, 0xffff0000
    s_lshl_b32 s28, s38, 16
    s_and_b32 s29, s38, 0xffff0000
    s_lshl_b32 s30, s39, 16
    s_and_b32 s31, s39, 0xffff0000
    s_mov_b32 s40, {f32bits(-0.1029432397):#x}
    s_mov_b32 s41, {f32bits(-2.302208198):#x}
    s_waitcnt vmcnt(0)
    v_mov_b32 v{TMP}, s41
    {PMAPTXT}
    s_lshl_b32 s35, s33, 16
    s_lshl_b32 s42, s34, 15
    s_add_u32 s35, s35, s42
    s_lshl_b32 s42, s3, 12
    s_add_u32 s35, s35, s42
    s_add_u32 s35, s35, {WS_PART}
    """)
    for tp in range(8):
        X = DAT; E = DAT + 8; S = W + 2 * (tp & 1)
        for h in range(2):
            t = 2 * tp + h
            for r in range(4): a(f"v_add_f32 v{X+4*h+r}, s{24+r}, v{ACC+4*t+r}")
        for r in range(8): a(f"v_mul_f32 v{E+r}, v{X+r}, v{X+r}")
        for r in range(8): a(f"v_fma_f32 v{E+r}, v{E+r}, s40, v{TMP}")
        for r in range(8): a(f"v_mul_f32 v{E+r}, v{E+r}, v{X+r}")
        for r in range(8): a(f"v_exp_f32 v{E+r}, v{E+r}")
        for r in range(8): a(f"v_mul_f32 v{X+r}, s{28+(r&3)}, v{X+r}")
        for r in range(8): a(f"v_add_f32 v{E+r}, 1.0, v{E+r}")
        for r in range(8): a(f"v_rcp_f32 v{E+r}, v{E+r}")
        a("s_nop 0")
        for h in range(2):
            a(f"v_mul_f32 v{S+h}, v{X+4*h}, v{E+4*h}")
        for r in range(1, 4):
            for h in range(2):
                a(f"v_fma_f32 v{S+h}, v{X+4*h+r}, v{E+4*h+r}, v{S+h}")
        for h in range(2):
            a(f"buffer_store_dword v{S+h}, v{VPW}, s[12:15], s35 offen offset:{(tp*512+h*128) if PMAP else (2*tp+h)*256}{PSF}")
    fstamp(7)
    fstamp_out(VL16)
```

```python
import sys, os, re
from gen import Asm, kernel_header, kernel_desc, srd, build, f32bits, WS_BYTES
import gen2h as gen2
from gen2h import SLS, WS_W1R, WS_SCHED, WS_PART, WS_PNN, WS_TABR, WS_DBG, Cnt

B, F, D, V, H = 16384, 100, 128, 1000, 512
gen2.PMAP = True
gen2.PSF = os.environ.get("PSF", " sc1")
K1_LDS = 163840
ROWB = 144
SC = 144256
FLAG = 163712
R1 = 1001 * 144
assert R1 + 19 * 1024 <= FLAG and SC + 16384 <= FLAG and SC >= R1
NDA = 36
WS_TB2 = 0x0E80000
K1ABL = set(os.environ.get("K1ABL", "").split(","))
STAMP1 = False
SCHED = os.environ.get("SCHED", "mask")
STF = os.environ.get("STF", " sc1")

TILES = []
for c in range(4):
    for r in range(c + 1): TILES.append((r, c))
for r in range(4):
    for c in range(4, 7): TILES.append((r, c))
TILES += [(4, 4), (4, 5), (4, 6), (5, 5), (5, 6), (6, 6)]
NEED = {}; REL = {}
for t, (r, c) in enumerate(TILES):
    for k in (r, c):
        NEED.setdefault(k, t); REL[k] = t


def gen_k1(a, name):
    kernel_header(a, name)
    LANE = 255; L16 = 254; VF1 = 253; VFA = 252; VT = 251
    uid = [0]
    XST = os.environ.get("XST", "")
    def stamp(k):
        if XST and LANE == 8 and k in (3, 4, 5): fstamp({3: 4, 5: 6, 4: 7}[k], True)
    def fstamp(k, x=False):
        if not STAMP1: return
        if XST and not x and k in (4, 6, 7): return
        a("s_memrealtime s[94:95]" if os.environ.get("RT") else "s_memtime s[94:95]")
        a("s_waitcnt lgkmcnt(0)")
        a(f"s_mov_b32 s{86+k if k < 8 else 89+k}, s94")
    def fstamp_out(vl16):
        if not STAMP1: return
        a(f"""
        s_barrier
        s_lshl_b32 s94, s2, 3
        s_add_u32 s94, s94, s3
        s_lshl_b32 s94, s94, 11
        s_add_u32 s94, s94, {WS_DBG}
        v_mov_b32 v1, 0
        """)
        for k in range(12):
            a(f"v_mov_b32 v0, s{86+k if k < 8 else 89+k}")
            a(f"buffer_store_dword v0, v1, s[12:15], s94 offen offset:{4*k}")
    def signal(j):
        a(f"""
        s_mov_b64 exec, 1
        ds_add_u32 v{VFA}, v{VF1} offset:{4*j}
        s_mov_b64 exec, -1
        """)
    def waitflag(j, n):
        uid[0] += 1
        a.label(f"{name}_wf{uid[0]}")
        a(f"""
        ds_read_b32 v{VT}, v{VFA} offset:{4*j}
        s_waitcnt lgkmcnt(0)
        v_readfirstlane_b32 s45, v{VT}
        s_cmp_lt_u32 s45, {n}
        s_cbranch_scc1 {name}_wf{uid[0]}
        """)
    a(f"""
    s_cmp_ge_u32 s2, 256
    s_cbranch_scc1 {name}_end
    s_load_dwordx8 s[4:11], s[0:1], 0
    s_load_dwordx2 s[12:13], s[0:1], 72
    s_load_dwordx2 s[52:53], s[0:1], 64
    v_lshrrev_b32 v1, 6, v0
    v_and_b32 v{LANE}, 63, v0
    s_bfe_u32 s36, s2, 0x10003
    v_readfirstlane_b32 s3, v1
    s_lshr_b32 s37, s2, 4
    s_lshl_b32 s37, s37, 3
    s_and_b32 s38, s2, 7
    s_or_b32 s37, s37, s38
    v_lshlrev_b32 v{L16}, 4, v{LANE}
    v_mov_b32 v{VFA}, {FLAG}
    v_mov_b32 v{VF1}, 1
    v_mov_b32 v40, 0
    v_cmp_gt_u32 vcc, 8, v0
    v_lshl_add_u32 v41, v0, 2, v{VFA}
    s_and_saveexec_b64 s[46:47], vcc
    ds_write_b32 v41, v40
    s_mov_b64 exec, s[46:47]
    v_mul_u32_u24 v6, 57, v{LANE}
    v_lshrrev_b32 v6, 9, v6
    v_mul_u32_u24 v5, 9, v6
    v_sub_u32 v5, v{LANE}, v5
    v_cmp_gt_u32 s[40:41], 8, v5
    v_lshlrev_b32 v5, 4, v5
    v_lshl_add_u32 v83, v6, 8, v5
    s_and_b32 s56, s3, 3
    s_mul_i32 s42, s56, {7*256}
    s_mul_i32 s43, s56, 1008
    s_lshl_b32 s38, s36, 7
    s_add_u32 s42, s42, s38
    s_bitset0_b32 s41, 31
    s_waitcnt lgkmcnt(0)
    """)
    srd(a, 16, 4, B * F * 4)
    srd(a, 20, 6, V * D * 2)
    srd(a, 24, 8, F * F * 2)
    srd(a, 28, 10, F * D * H * 2)
    srd(a, 32, 12, WS_BYTES)
    srd(a, 12, 12, WS_BYTES)
    srd(a, 52, 52, 256)
    a("s_mov_b32 s50, s36")
    fstamp(0)
    a(f"""
    s_cmp_ge_u32 s3, 4
    s_cbranch_scc1 {name}_aux
    """)
    NDB = int(os.environ.get("NDB", "4"))
    NTA = int(os.environ.get("NTA", "7"))
    NSB = 6 - NDB
    W = 0
    FR = 96
    GF = FR + 8 * (NSB + 2 * NDB)
    TA = GF + 8
    IX = TA + 4 * NTA
    GI = IX + 24
    ACC = GI + 1; R0 = ACC + 4; R1_ = R0 + 1; RES = R0 + 2; KG = R0 + 3; VIO = R0 + 4; VGO = R0 + 5
    assert VGO < VT, VGO
    PX = TA; PY = TA + 1; PY2 = TA + 2; GX = TA + 4; I0 = TA + 8; TM = TA + 16; YR = FR
    T21 = [(k1, k2) for k1 in range(6) for k2 in range(k1, 6)]
    WL = [(t, j) for t in T21 for j in range(4)] + [(("G", k), 0) for k in range(6)] + [(("G", "G"), 0)]
    WREG = {x: W + i for i, x in enumerate(WL)}
    GGW = WREG[(("G", "G"), 0)]
    a(f"""
    s_setprio {os.environ.get("MP0", "3")}
    s_lshl_b32 s38, s3, 10
    s_add_u32 m0, s38, {R1}
    v_and_b32 v5, 15, v{LANE}
    """)
    for c in range(5):
        if c == 4: a(f"s_cmp_eq_u32 s3, 3\ns_cselect_b32 s45, 1024, 0\ns_sub_u32 m0, m0, s45\ns_sub_u32 s38, s38, s45")
        a(f"buffer_load_dwordx4 v{L16}, s[24:27], s38 offen lds")
        if c < 4:
            a(f"s_add_u32 m0, m0, 4096")
            a(f"s_add_u32 s38, s38, 4096")
    a(f"""
    v_lshrrev_b32 v6, 4, v{LANE}
    v_and_b32 v8, 3, v{LANE}
    v_bfe_u32 v7, v{LANE}, 2, 2
    v_mul_u32_u24 v{VIO}, 24, v5
    s_movk_i32 s45, 400
    v_lshlrev_b32 v{VGO}, 2, v7
    v_mad_u32_u24 v{VGO}, v8, s45, v{VGO}
    s_lshl_b32 s72, s37, 7
    s_lshl_b32 s73, s3, 5
    s_add_u32 s72, s72, s73
    s_mul_i32 s74, s72, 400
    s_add_u32 s58, s74, {8*1600}
    s_mov_b32 s18, s58
    v_mul_u32_u24 v{PX}, 12, v5
    s_movk_i32 s45, 200
    v_mad_u32_u24 v{PY}, v6, s45, v{PX}
    v_lshlrev_b32 v{PY2}, 1, v7
    v_mad_u32_u24 v{PY2}, v6, s45, v{PY2}
    v_mov_b32 v{GGW}, 0
    s_movk_i32 s45, {96*200}
    """)
    def ixl(slot, off):
        return [f"buffer_load_dwordx4 v[{IX+6*slot}:{IX+6*slot+3}], v{VIO}, s[16:19], s74 offen offset:{off}",
                f"buffer_load_dwordx2 v[{IX+6*slot+4}:{IX+6*slot+5}], v{VIO}, s[16:19], s74 offen offset:{off+16}"]
    def gl(off): return f"buffer_load_dword v{GI}, v{VGO}, s[16:19], s74 offen offset:{off+384}"
    a(f"buffer_load_dwordx3 v[{GX}:{GX+2}], v{PY}, s[24:27], s45 offen")
    a(f"buffer_load_short_d16_hi v{GGW}, v{PY2}, s[24:27], s45 offen offset:192")
    a(f"buffer_load_dwordx4 v[{I0}:{I0+3}], v{VIO}, s[16:19], s74 offen")
    a(f"buffer_load_dwordx2 v[{I0+4}:{I0+5}], v{VIO}, s[16:19], s74 offen offset:16")
    a(f"buffer_load_dword v{I0+6}, v{VGO}, s[16:19], s74 offen offset:384")
    for l in ixl(1, 400) + ixl(2, 800) + ixl(3, 1200) + ixl(0, 1600) + [gl(1600)]: a(l)
    a(f"""
    v_add_u32 v{PX}, {R1}, v{PX}
    s_movk_i32 s45, 4800
    v_mad_u32_u24 v{PX}, v6, s45, v{PX}
    v_mul_u32_u24 v{PY2}, 1200, v5
    v_add_u32 v{PY2}, {R1}, v{PY2}
    v_mad_u32_u24 v{PY}, v6, 48, v{PY2}
    v_lshl_add_u32 v{PY2}, v6, 1, v{PY2}
    v_and_b32 v{KG}, 48, v{LANE}
    s_movk_i32 s57, {ROWB}
    v_cmp_eq_u32 s[60:61], 0, v8
    v_cmp_eq_u32 s[62:63], 1, v8
    v_cmp_eq_u32 s[66:67], 2, v8
    v_cmp_eq_u32 s[68:69], 3, v8
    s_mov_b32 s70, 0x00010001
    s_mov_b32 s71, 0x00010001
    """)
    for i in range(90): a(f"v_mov_b32 v{W+i}, 0")
    if os.environ.get("MPW"): a(f"s_setprio {os.environ.get('MPW')}")
    fstamp(8)
    a(f"s_waitcnt vmcnt(14)")
    fstamp(9)
    a("s_barrier")
    if os.environ.get("MAINONLY"): fstamp(4)
    yq = {}
    for k2 in range(1, 6):
        for q in sorted(set((6 * j + k1) // 4 for j in range(4) for k1 in range(k2))):
            yq[(k2, q)] = YR + 2 * len(yq)
            a(f"ds_read_b64 v[{yq[(k2,q)]}:{yq[(k2,q)]+1}], v{PY} offset:{200*k2+8*q}")
    assert YR + 2 * len(yq) <= TA
    for k in range(6): a(f"ds_read_u16_d16_hi v{WREG[(('G', k), 0)]}, v{PY2} offset:{200*k+192}")
    for dg in (0, 1):
        for ((k1, k2), j) in WL[:84]:
            if (k1 == k2) == dg: a(f"ds_read_u16_d16_hi v{WREG[((k1,k2),j)]}, v{PX} offset:{((6*j+k1)*100+k2)*2}")
    def unp(d, r, hi): return f"v_and_b32 v{d}, 0xffff0000, v{r}" if hi else f"v_lshlrev_b32 v{d}, 16, v{r}"
    a("s_waitcnt vmcnt(9) lgkmcnt(15)")
    n_ = 0
    for ((k1, k2), j) in WL[:90]:
        if k1 == k2: continue
        if k1 == "G": u = unp(TM + (n_ & 1), GX + k2 // 2, k2 & 1)
        else:
            e = 6 * j + k1
            u = unp(TM + (n_ & 1), yq[(k2, e // 4)] + (e % 4) // 2, e & 1)
        a(u); a(f"v_add_f32 v{WREG[((k1,k2),j)]}, v{WREG[((k1,k2),j)]}, v{TM+(n_&1)}"); n_ += 1
    def mad(r): return f"v_mad_u32_u24 v{r}, v{r}, s57, v{KG}"
    for k in range(7): a(mad(I0 + k))
    for s_, m_ in ((3, 68), (2, 66), (1, 62), (0, 60)):
        a(f"v_cndmask_b32 v{GGW+s_}, 0, v{GGW}, s[{m_}:{m_+1}]")
    a("s_waitcnt lgkmcnt(0)")
    fstamp(5)
    if os.environ.get("MPX"): a(f"s_setprio {os.environ.get('MPX')}")
    def fbuf(k, s):
        if k == "G": return GF
        return FR + 8 * k if k < NSB else FR + 8 * (NSB + 2 * (k - NSB) + (s & 1))
    def rr(k, s):
        b = fbuf(k, s); ad = GI if k == "G" else IX + 6 * (s & 3) + k
        return [f"ds_read_b128 v[{b+4*ks}:{b+4*ks+3}], v{ad} offset:{64*ks}" for ks in range(2)]
    def order(s):
        o = []
        for k in range(NSB):
            o += [(k, k2) for k2 in range(k, 6)]
            o.insert(len(o) - 3, ("G", k))
        rest = [(k1, k2) for k1 in range(NSB, 6) for k2 in range(k1, 6)]
        gs = [("G", k) for k in range(NSB, 6)]
        if s == 3:
            GP = [int(x) for x in os.environ.get("GP3", "2,6,11,15").split(",")]
            for g, p in zip(gs, GP): o.insert(p, g)
            o += rest
        else:
            step = len(rest) // len(gs)
            for i, g in enumerate(gs): rest.insert(i * (step + 1) + 1, g)
            o += rest
        if s == 1: o.insert(int(os.environ.get("GGP", "20")), ("G", "G"))
        return o
    TL = [(s, t) for s in range(4) for t in order(s)]
    NT = len(TL); NP = 2 * NT
    assert NT == 109 and len(set(TL)) == 109
    S0 = [min(i for i, x in enumerate(TL) if x[0] == s) * 2 for s in range(4)]
    nb_ = next(b for b in range(NTA) if (NT - b * (NTA - 1)) % NTA == 0)
    na_ = (NT - nb_ * (NTA - 1)) // NTA
    TAB = []
    for i in range(na_ + nb_):
        short = (i + 1) * nb_ // (na_ + nb_) > i * nb_ // (na_ + nb_)
        TAB += list(range(NTA - 1 if short else NTA))
    assert len(TAB) == NT
    def tab(T): return TA + 4 * TAB[T % NT]
    def M_(p):
        T, ks = divmod(p, 2); s, (k1, k2) = TL[T]
        tb = tab(T); A = fbuf(k1, s) + 4 * ks; B_ = fbuf(k2, s) + 4 * ks
        c = "0" if ks == 0 else f"v[{tb}:{tb+3}]"
        return f"v_mfma_f32_16x16x32_bf16 v[{tb}:{tb+3}], v[{A}:{A+3}], v[{B_}:{B_+3}], {c}"
    DBP = [int(x) for x in os.environ.get("DBP", "3,8,19,31").split(",")]
    G_ = 4
    excl = {}; lastop = {}; ops = []
    def op(text, e, l, g, deps=(), w=1, kind="v"):
        d = dict(text=text, e=e, l=l, g=g, deps=list(deps), w=w, kind=kind, at=None, n=len(ops)); ops.append(d); return d
    prevf = None; cnd = None; firstf = {}; lastf = {}; k32 = {}
    for g in range(G_):
        o0 = g * NP
        for s in range(4):
            s1 = s + 1
            rel = {}
            for T, (ss, t) in enumerate(TL):
                if ss == s or t == ("G", "G"):
                    for k in t: rel[k] = max(rel.get(k, 0), 2 * T + 1)
            pl = {k: rel[k] for k in range(NSB)}
            if s == 3: pl["G"] = max(2 * T + 1 for T, (ss, t) in enumerate(TL) if "G" in t)
            for k in range(NSB, 6): pl[k] = S0[s] + DBP[k - NSB]
            used = []
            for k in sorted(pl, key=lambda k_: (pl[k_], str(k_))):
                p = pl[k]
                while p in used: p += 1
                used.append(p)
                excl[o0 + p] = [(x, "lgkm", None) for x in rr(k, s1)]
                op(mad(GI if k == "G" else IX + 6 * (s1 & 3) + k), o0 + S0[s], o0 + p - 1, g, kind="mad")
            p = max(used) + int(os.environ.get("LLD", "2"))
            ll = ixl(s1 & 3, (s + 5) * 400) + ([gl(3200)] if s == 3 else [])
            excl[o0 + p] = [(x, "vm", ("X", g * 4 + s + 5)) for x in ll]
            if s == 3: lastll = p
            lastop[o0 + S0[s] - 1] = [("W", g * 4 + s + 1)]
        inited = set()
        for T, (s, t) in enumerate(TL):
            nxt = min(T2 for T2 in range(T + 1, T + 3 * NTA) if tab(T2) == tab(T))
            if t == ("G", "G"): fl = [(j, j, GGW + j) for j in range(4)]
            elif t[0] == "G": fl = [(s, s, WREG[(t, 0)])]
            else: fl = [(s, j, WREG[(t, j)]) for j in range(4)]
            for (sa, j, wr) in fl:
                deps = [(prevf, 0)] if prevf else []
                if sa not in inited and (g - 1, sa >> 1) in k32: deps.append((k32[(g - 1, sa >> 1)], 0))
                f = op(f"v_{'fmac' if sa in inited else 'mul'}_f32 v{ACC+sa}, v{tab(T)+j}, v{wr}", o0 + 2 * T + 4, o0 + 2 * nxt - 1, g, deps, kind="f")
                f["T"] = o0 // 2 + T
                inited.add(sa); lastf[(g, sa)] = f; prevf = f
        RD0 = o0 + NP + int(os.environ.get("RDL", "30"))
        x = op(f"v_permlane32_swap_b32 v{ACC}, v{ACC+1}", 0, o0 + NP - 8, g, [(lastf[(g, 0)], 2), (lastf[(g, 1)], 2)] + ([(cnd, 0)] if cnd else []), w=2)
        a0 = op(f"v_add_f32 v{R0}, v{ACC}, v{ACC+1}", 0, o0 + NP - 6, g, [(x, 1)]); k32[(g, 0)] = a0
        x = op(f"v_permlane32_swap_b32 v{ACC+2}, v{ACC+3}", 0, RD0, g, [(lastf[(g, 2)], 2), (lastf[(g, 3)], 2)], w=2)
        a1 = op(f"v_add_f32 v{R1_}, v{ACC+2}, v{ACC+3}", 0, RD0 + 2, g, [(x, 1)]); k32[(g, 1)] = a1
        x = op(f"v_permlane16_swap_b32 v{R0}, v{R1_}", 0, RD0 + 4, g, [(a0, 2), (a1, 2)], w=2)
        x = op(f"v_add_f32 v{R0}, v{R0}, v{R1_}", 0, RD0 + 6, g, [(x, 1)])
        for i, r in enumerate((8, 4, 2, 1)):
            x = op(f"v_add_f32_dpp v{R0}, v{R0}, v{R0} row_ror:{r} row_mask:0xf bank_mask:0xf", 0, RD0 + 8 + 2 * i, g, [(x, 2)])
        cnd = op(f"v_cndmask_b32 v{RES}, v{RES}, v{R0}, s[70:71]", 0, RD0 + 16, g, [(x, 1)])
        op("s_lshl_b64 s[70:71], s[70:71], 1", 0, RD0 + 18, g, [(cnd, 1)], kind="s")
        x = op("s_add_u32 s74, s74, 1600", o0 + lastll + 1, o0 + NP - 8, g, kind="c")
        op("s_cmp_lt_u32 s74, s58", 0, o0 + NP - 6, g, [(x, 1)], kind="c")
    for _ in range(3):
        for o in reversed(ops):
            while o["l"] in excl: o["l"] -= 1
            for d, dist in o["deps"]: d["l"] = min(d["l"], o["l"] - dist)
    sched = {}
    for p in range(G_ * NP):
        if p in excl:
            sched[p] = []
            late = [o for o in ops if o["at"] is None and o["l"] <= p and o["g"] < G_ - 1]
            assert not late, (p, [(o["text"], o["e"], o["l"], [(d["text"], d["at"], d["l"]) for d, _ in o["deps"]]) for o in late])
            continue
        cur = []; wsum = len(lastop.get(p, [])) + (2 if p % NP == NP - 1 else 0)
        def eff_l(o):
            l = o["l"]
            while l in excl: l -= 1
            return l
        while True:
            cand = [o for o in ops if o["at"] is None and o["e"] <= p and all(d["at"] is not None and p - d["at"] >= dist for d, dist in o["deps"])]
            if not cand: break
            c = min(cand, key=lambda o: (eff_l(o), o["n"]))
            if wsum >= 2 and eff_l(c) > p: break
            c["at"] = p; cur.append(c); wsum += c["w"]
        sched[p] = cur
        late = [o for o in ops if o["at"] is None and eff_l(o) <= p and o["g"] < G_ - 1]
        assert not late, (p, [(o["text"], o["e"], o["l"], [(d["text"], d["at"], d["l"]) for d, _ in o["deps"]]) for o in late])
    txt = lambda g: [[o["text"] for o in sched[g * NP + p]] for p in range(NP)]
    assert txt(1) == txt(2), "not periodic"
    wt = lambda p: sum(o["w"] for o in sched[p]) + len(excl.get(p, [])) + len(lastop.get(p, [])) + (7 if p % NP == NP - 1 else 0)
    cost = sum(max(16, 8 + 4 * wt(2 * NP + p)) for p in range(NP))
    print("pnn plan: group", cost, "per sample", cost / 4, "empties", sum(max(0, 2 - wt(2 * NP + p)) for p in range(NP)), "VT margin", VT - VGO, file=sys.stderr)
    vmc = Cnt()
    def body(g, emit):
        ws = []
        for p in range(g * NP, (g + 1) * NP):
            if emit: a(M_(p % NP))
            for (x, kind, tag) in excl.get(p, []):
                if emit: a(x)
                if kind == "vm": vmc.issue(tag)
            for o in sched[p]:
                if emit: a(o["text"])
            for (_, smp) in lastop.get(p, []):
                n = vmc.after(("X", smp)); ws.append(n)
                if emit: a(f"s_waitcnt vmcnt({n}) lgkmcnt(0)")
        return ws
    body(0, False); w1 = body(1, False)
    a("s_barrier")
    fstamp(1)
    a(f"s_setprio {os.environ.get('MP1', '0')}")
    if os.environ.get("AUXONLY"): a(f"s_waitcnt vmcnt(0) lgkmcnt(0)\ns_branch {name}_k2")
    for i_, k in enumerate(list(range(6)) + ["G"]):
        for l in rr(k, 0): a(re.sub(r", v\d+ offset", f", v{I0+i_} offset", l))
    a(f"s_waitcnt vmcnt({w1[-1]}) lgkmcnt(0)")
    assert w1[-1] == 7, w1
    a.label(f"{name}_loop")
    l0 = len(a.lines)
    w2 = body(2, True); assert w1 == w2
    bl = [l.strip() for l in a.lines[l0:]] + ["s_cbranch"]
    def regs(tok):
        m = re.match(r"v\[(\d+):(\d+)\]", tok)
        if m: return set(range(int(m.group(1)), int(m.group(2)) + 1))
        m = re.match(r"v(\d+)$", tok)
        return {int(m.group(1))} if m else set()
    seq = [(l.split()[0], [regs(t.strip(",")) for t in l.split()[1:]]) for l in bl + bl]
    for i, (o_, rs) in enumerate(seq):
        if not o_.startswith("v_"): continue
        wr = rs[0] | (rs[1] if "swap" in o_ else set())
        for d in range(1, 9):
            if i + d >= len(seq): break
            o2, r2 = seq[i + d]
            if not o2.startswith("v_"): continue
            use = set().union(*r2)
            if "mfma" in o_ and "mfma" not in o2: assert not (wr & use), (i, d, bl[i % len(bl)])
            if "mfma" not in o_ and d <= 2 and ("dpp" in o2 or "swap" in o2 or "mfma" in o2): assert not (wr & use), (i, d, bl[i % len(bl)])
    a(f"s_cbranch_scc1 {name}_loop")
    a("s_nop 7")
    for p in range(3 * NP, 4 * NP):
        for o in sched[p]:
            if o["g"] == 2 and o["kind"] in ("f", "v"):
                if o["kind"] == "v": a("s_nop 1")
                a(o["text"])
    a(f"""
    v_and_b32 v40, 15, v{LANE}
    v_add_u32 v40, -1, v40
    v_cmp_gt_u32 vcc, 8, v40
    s_lshl_b32 s74, s72, 2
    s_lshl_b32 s76, s36, 16
    s_add_u32 s74, s74, s76
    s_add_u32 s74, s74, {WS_PNN}
    v_lshlrev_b32 v40, 4, v40
    v_lshrrev_b32 v41, 5, v{LANE}
    v_lshl_add_u32 v40, v41, 2, v40
    v_bfe_u32 v41, v{LANE}, 4, 1
    v_lshl_add_u32 v40, v41, 3, v40
    s_waitcnt vmcnt(0)
    s_and_saveexec_b64 s[46:47], vcc
    buffer_store_dword v{RES}, v40, s[32:35], s74 offen
    s_mov_b64 exec, s[46:47]
    """)
    fstamp(2)
    fstamp(3)
    if os.environ.get("MAINONLY"):
        a.label(f"{name}_x8")
        fstamp_out(L16)
        a("s_endpgm")
    a(f"s_branch {name}_k2")
    a.label(f"{name}_aux")
    a(f"""
    s_setprio {os.environ.get("AUXPRIO", "0")}
    v_mov_b32 v8, v{LANE}
    v_mov_b32 v9, v{L16}
    v_mov_b32 v10, v{VF1}
    v_mov_b32 v11, v{VFA}
    s_mov_b32 s51, s2
    s_mov_b32 s64, 0
    s_mov_b32 s65, 0
    """)
    LANE = 8; L16 = 9; VF1 = 10; VFA = 11; VT = 12; ZERO = 13; VST = 14; VRD = 15; ONE = VF1; VPF = 7
    E = 40; VSO = 30; LB = 31; SELQ = 0; OHQ = 16; OWQ = 23; LU0 = 54; LU1 = 55
    PK = 64; PM = 71; T0 = 72; T1 = 73; BK = 74; FM = 76; OP = 78; OUT = 80; HD = 84; CB = 85; OWN = 86; RK = 87
    CT = 116; T2 = 117; T3 = 118; AL = 119; FA = 120; TA_ = 121; TB_ = 122; G32 = 123; CH = T3
    K0 = 32; K1 = 33; VW = 34; VWR = 36
    DR = 128; PO = 88; RD = 192; RW = 224; TP = 104
    MT = [32 + 4 * q for q in range(8)] + [88 + 4 * q for q in range(7)] + [124]
    VDA = 35
    a(f"""
    v_mov_b32 v{VDA}, v83
    s_lshr_b32 s72, s2, 3
    s_mul_i32 s72, s72, {NDA}
    s_lshr_b32 s72, s72, 5
    s_lshl_b32 s75, s36, 7
    s_add_u32 s75, s75, {142*7*256}
    s_mov_b32 s76, {142*1008}
    """)
    NB1 = int(os.environ.get("NB1", "8"))
    nd = [0]
    DWIN = int(os.environ.get("DWIN", "99"))
    def nvm(): return sum(1 for l in a.lines if l.strip().startswith("buffer_"))
    lastd = [None]
    def adma(n, restore="-1"):
        n = min(n, NDA - nd[0])
        if n <= 0: return False
        uid[0] += 1
        a(f"s_cmp_lg_u32 s64, 0\ns_cbranch_scc1 {name}_nd{uid[0]}")
        a("s_mov_b64 exec, s[40:41]")
        for c in range(n):
            a(f"""
            s_mul_i32 s73, s72, {4*1008}
            s_mul_i32 s74, s72, {4*7*256}
            s_add_u32 s73, s73, s43
            s_add_u32 s74, s74, s42
            s_min_u32 m0, s73, s76
            s_min_u32 s74, s74, s75
            s_add_u32 s72, s72, 1
            {"s_barrier" if nd[0] + c == NB1 else ""}
            {f"s_waitcnt vmcnt({DWIN-1})" if nd[0] + c >= DWIN else ""}
            buffer_load_dwordx4 v{VDA}, s[20:23], s74 offen lds
            s_cmp_eq_u32 s72, {NDA}
            s_cselect_b32 s72, 0, s72
            """)
        a(f"s_mov_b64 exec, {restore}")
        a.label(f"{name}_nd{uid[0]}")
        nd[0] += n
        lastd[0] = nvm()
        return True
    RLMAP = """
    s_lshl_b32 s57, s51, 2
    s_add_u32 s57, s57, s56
    """
    if os.environ.get("RLM", "1") == "1":
        RLMAP = """
        s_lshr_b32 s38, s51, 4
        s_and_b32 s39, s51, 7
        s_sub_u32 s57, 2, s36
        s_lshl_b32 s57, s39, s57
        s_lshl_b32 s37, s36, 5
        s_add_u32 s57, s57, s37
        s_add_u32 s57, s57, s56
        s_mul_i32 s37, s38, 48
        s_add_u32 s37, s37, s57
        s_lshl_b32 s38, s38, 1
        s_lshr_b32 s39, s39, 2
        s_add_u32 s38, s38, s39
        s_add_u32 s38, s38, 768
        s_and_b32 s57, s57, 7
        s_cmp_eq_u32 s57, 2
        s_cselect_b32 s38, s38, 1000
        s_lshl_b32 s39, s36, 1
        s_and_b32 s39, s39, s56
        s_cselect_b32 s57, s38, s37
        """
    a.label(f"{name}_unit")
    a(f"""
    s_bfe_u32 s36, s51, 0x10003
    {RLMAP}
    s_lshr_b32 s37, s51, 4
    s_lshl_b32 s37, s37, 3
    s_and_b32 s38, s51, 7
    s_or_b32 s37, s37, s38
    s_and_b32 s58, s56, 1
    s_lshl_b32 s59, s37, 1
    s_add_u32 s58, s58, s59
    s_lshr_b32 s59, s56, 1
    s_lshl_b32 s60, s36, 1
    s_add_u32 s59, s59, s60
    s_mul_i32 s60, s58, 25600
    s_mul_i32 s61, s59, 96
    s_add_u32 s60, s60, s61
    s_movk_i32 s61, 400
    v_lshrrev_b32 v1, 3, v{LANE}
    v_and_b32 v2, 7, v{LANE}
    v_mul_u32_u24 v0, s61, v1
    v_cmp_gt_u32 s[48:49], 7, v2
    v_lshl_add_u32 v0, v2, 4, v0
    v_and_b32 v5, 15, v{LANE}
    v_and_b32 v6, 48, v{LANE}
    v_lshl_add_u32 v{VPF}, v5, 8, v6
    s_lshr_b32 s44, s37, 1
    s_lshl_b32 s44, s44, 12
    s_lshl_b32 s38, s36, 1
    s_and_b32 s39, s37, 1
    s_add_u32 s38, s38, s39
    s_lshl_b32 s38, s38, 6
    s_add_u32 s44, s44, s38
    s_lshl_b32 s47, s36, 7
    s_add_u32 s47, s47, s37
    s_lshl_b32 s47, s47, 10
    s_add_u32 s47, s47, {WS_TB2}
    s_lshl_b32 s38, s56, 4
    s_lshl_b64 s[4:5], 0xffff, s38
    """)
    IDXP = int(os.environ.get("IDXP", "12"))
    adma(IDXP)
    a(f"""
    s_lshr_b32 s78, s57, 5
    s_bfe_u32 s79, s57, 0x20003
    s_bfe_u32 s80, s57, 0x20001
    s_and_b32 s81, s57, 1
    s_lshl_b32 s77, s78, 2
    s_lshl_b32 s83, s81, 1
    s_add_u32 s77, s77, s83
    s_lshl_b32 s77, s77, 7
    s_lshl_b32 s83, s79, 5
    s_add_u32 s77, s77, s83
    s_lshl_b32 s83, s80, 3
    s_add_u32 s77, s77, s83
    s_lshl_b32 s77, s77, 10
    s_lshl_b32 s82, s78, 12
    s_lshl_b32 s83, s79, 10
    s_add_u32 s82, s82, s83
    s_lshl_b32 s83, s80, 8
    s_add_u32 s82, s82, s83
    s_lshl_b32 s83, s81, 7
    s_add_u32 s82, s82, s83
    s_mov_b32 s84, {2*SLS}
    v_lshrrev_b32 v3, 2, v{LANE}
    v_and_b32 v4, 3, v{LANE}
    v_mul_lo_u32 v{VST}, v3, s84
    v_lshl_add_u32 v{VST}, v4, 4, v{VST}
    s_cmp_ge_u32 s57, 800
    s_cselect_b32 s83, 0x40000000, 0
    v_or_b32 v{VST}, s83, v{VST}
    s_lshl_b32 s61, s56, 12
    s_add_u32 s61, s61, {SC}
    v_and_b32 v3, 3, v3
    v_lshlrev_b32 v{VWR}, 6, v{LANE}
    v_lshl_add_u32 v{VWR}, v3, 4, v{VWR}
    v_add_u32 v{VWR}, s61, v{VWR}
    v_xor_b32 v{VWR+1}, 16, v{VWR}
    v_xor_b32 v{VWR+2}, 32, v{VWR}
    v_xor_b32 v{VWR+3}, 48, v{VWR}
    v_and_b32 v3, 48, v{LANE}
    v_xor_b32 v{VRD}, v3, v{L16}
    v_add_u32 v{VRD}, s61, v{VRD}
    s_mov_b32 s84, 0x05040100
    s_mov_b32 s85, 0x07060302
    """)
    adma(NDA - IDXP)
    fstamp(8)
    a(f"""
    s_cmp_lg_u32 s64, 0
    s_cbranch_scc1 {name}_nsig
    s_waitcnt vmcnt(0)
    s_barrier
    """)
    a.label(f"{name}_nsig")
    fstamp(5)
    a("s_mov_b64 exec, s[48:49]")
    for i in range(8):
        a(f"buffer_load_dwordx4 v[{RW+4*i}:{RW+4*i+3}], v0, s[16:19], s60 offen")
        a(f"s_add_u32 s60, s60, 3200")
    a("s_mov_b64 exec, -1")
    idx0 = nvm() - 8
    if os.environ.get("MAINONLY"): a(f"s_waitcnt vmcnt(0)\ns_branch {name}_x8")
    a(f"s_setprio {os.environ.get('AP0', '1')}")
    if os.environ.get("SKIPWG", ""):
        a(f"""
        s_cmp_eq_u32 s64, 0
        s_cselect_b32 s45, s2, 1000
        s_and_b32 s45, s45, 31
        s_cmp_eq_u32 s45, 5
        s_cselect_b32 s34, 0, s14
        """)
    rl_loads = []
    for h in range(2):
        for j in range(8):
            u = [f"buffer_load_dwordx4 v[{DR+32*h+4*j}:{DR+32*h+4*j+3}], v{L16}, s[28:31], s77 offen offset:{(j&3)*1024}"]
            if j == 3: u.append("s_add_u32 s77, s77, 4096")
            if j == 7 and h == 0: u.append(f"s_add_u32 s77, s77, {128*1024-4096}")
            rl_loads.append(u)
    rl_st = []
    for u in range(4):
        sh, h = divmod(u, 2)
        for r in range(4):
            rl_st.append([f"s_add_u32 s83, s82, {16*r*2*SLS + sh*SLS + h*64}",
                          f"buffer_store_dwordx4 v[{RD+16*u+4*r}:{RD+16*u+4*r+3}], v{VST}, s[32:35], s83 offen{STF}"])
    rl_st = [rl_st[8 * sh + 4 * h + r] for sh in range(2) for r in range(4) for h in range(2)]
    a(f"""
    s_lshl_b32 s61, s56, 12
    s_add_u32 s61, s61, {SC}
    v_lshlrev_b32 v{OWN}, 2, v{LANE}
    v_add_u32 v{OWN}, s61, v{OWN}
    v_and_b32 v{CB}, 0xffffff80, v{OWN}
    v_and_b32 v{G32}, 32, v{LANE}
    s_add_u32 s61, s61, 256
    v_mul_u32_u24 v{LB}, 56, v{LANE}
    v_add_u32 v{LB}, s61, v{LB}
    v_mul_u32_u24 v{VW}, 56, v1
    v_lshl_add_u32 v{VW}, v2, 3, v{VW}
    v_add_u32 v{VW}, s61, v{VW}
    v_add_u32 v2, s59, v2
    v_subrev_u32 v3, 5, v2
    v_min_u32 v2, v2, v3
    v_mov_b32 v{ZERO}, 0
    v_mul_u32_u24 v2, 0x10001, v2
    v_lshlrev_b32 v2, 12, v2
    v_add_u32 v{K0}, {1024 << 16}, v2
    v_add_u32 v{K1}, {2048 | (3072 << 16)}, v2
    v_mov_b32 v{PM}, 0xf00
    s_lshr_b32 s62, s58, 7
    s_mul_i32 s62, s62, 25
    s_mul_i32 s63, s59, 6
    s_add_u32 s62, s62, s63
    s_lshl_b32 s62, s62, 3
    s_bfe_u32 s63, s58, 0x30004
    s_add_u32 s62, s62, s63
    s_lshl_b32 s62, s62, 13
    s_bfe_u32 s63, s58, 0x30001
    s_lshl_b32 s63, s63, 10
    s_add_u32 s62, s62, s63
    s_and_b32 s63, s58, 1
    s_lshl_b32 s63, s63, 9
    s_add_u32 s62, s62, s63
    s_add_u32 s62, s62, {WS_SCHED}
    v_and_b32 v{VSO}, 31, v{LANE}
    v_lshrrev_b32 v3, 5, v{LANE}
    v_lshlrev_b32 v{VSO}, 4, v{VSO}
    v_lshl_add_u32 v{VSO}, v3, 3, v{VSO}
    s_cmp_eq_u32 s59, 3
    s_cselect_b32 s63, 0xf00, 0
    s_movk_i32 s66, 0x7c
    s_mov_b32 s67, 0x001f001f
    s_mov_b32 s75, 0x06040200
    v_mov_b32 v{LU0}, 0x08040201
    v_mov_b32 v{LU1}, 0x80402010
    s_mov_b64 exec, s[48:49]
    """)
    assert SC % 128 == 0 and 3840 % 128 == 0
    for i in range(8):
        b = RW + 4 * i
        a(f"""
        s_waitcnt vmcnt({nvm() - idx0 - i - 1})
        v_lshl_or_b32 v{b}, v{b+1}, 16, v{b}
        v_lshl_or_b32 v{b+1}, v{b+3}, 16, v{b+2}
        v_add_u32 v{b}, v{K0}, v{b}
        v_add_u32 v{b+1}, v{K1}, v{b+1}
        ds_write_b64 v{VW}, v[{b}:{b+1}] offset:{i*8*56}
        """)
    a("s_mov_b64 exec, -1")
    for k in range(7):
        a(f"ds_read_b64 v[{E+2*k}:{E+2*k+1}], v{LB} offset:{8*k}")
    for k in range(7):
        a(f"""
        s_waitcnt lgkmcnt({6-k})
        v_and_b32 v{T0}, s67, v{E+2*k}
        v_and_b32 v{T1}, s67, v{E+2*k+1}
        v_lshl_or_b32 v{T0}, v{T1}, 10, v{T0}
        v_lshlrev_b32_sdwa v{T1}, 5, v{T0} dst_sel:DWORD dst_unused:UNUSED_PAD src0_sel:DWORD src1_sel:WORD_1
        v_or_b32_sdwa v{PK+k}, v{T1}, v{T0} dst_sel:DWORD dst_unused:UNUSED_PAD src0_sel:DWORD src1_sel:WORD_0
        v_perm_b32 v{T0}, v{E+2*k+1}, v{E+2*k}, s75
        v_lshrrev_b32 v{T1}, 3, v{T0}
        v_and_b32 v{T0}, 0x07070707, v{T0}
        v_and_b32 v{SELQ+k}, 0x03030303, v{T1}
        v_perm_b32 v{OHQ+k}, v{LU1}, v{LU0}, v{T0}
        v_add_u32 v{OWQ+k}, v{LU0}, v{OHQ+k}
        """)
    fstamp(11)
    def relayout():
        a(f"""
        s_cmp_ge_u32 s57, 800
        s_cbranch_scc1 {name}_norl
        s_waitcnt vmcnt(0)
        """)
        stamp(5)
        for u in range(4):
            sh, h = divmod(u, 2)
            for c in range(4):
                col = 4 * sh + c; d = col >> 1
                o = PO + 4 * c
                for jj in range(4):
                    a(f"v_perm_b32 v{o+jj}, v{DR+32*h+8*jj+4+d}, v{DR+32*h+8*jj+d}, s{84+(col&1)}")
            for c in range(4):
                o = PO + 4 * c
                a(f"ds_write_b128 v{VWR+c}, v[{o}:{o+3}]")
            for r in range(4):
                a(f"ds_read_b128 v[{RD+16*u+4*r}:{RD+16*u+4*r+3}], v{VRD} offset:{1024*r}")
            if u < 3: a("s_waitcnt lgkmcnt(4)")
        for k in range(7):
            a(f"ds_write_b64 v{LB}, v[{E+2*k}:{E+2*k+1}] offset:{8*k}")
        a("s_waitcnt lgkmcnt(7)")
        a.label(f"{name}_norl")
        a.label(f"{name}_rld")
        a(f"ds_write_b32 v{OWN}, v{ZERO}")
        stamp(4)
    a(f"ds_write_b32 v{OWN}, v{ZERO}")
    if os.environ.get('AP1'): a(f"s_setprio {os.environ.get('AP1', '0')}")
    APZ = int(os.environ.get("APZ", "4"))
    S3Z = int(os.environ.get("S3Z", "10"))
    DSZ = int(os.environ.get("DSZ", "0"))
    def flush_out():
        a(f"v_lshl_or_b32 v{OP}, v{OUT+1}, 16, v{OUT}")
        a(f"v_lshl_or_b32 v{OP+1}, v{OUT+3}, 16, v{OUT+2}")
        a(f"buffer_store_dwordx2 v[{OP}:{OP+1}], v{VSO}, s[32:35], s62 offen{STF}")
        a(f"s_add_u32 s62, s62, 65536")
    RLL = int(os.environ.get("RLL", "1")); RLN = int(os.environ.get("RLN", "2"))
    RL0 = int(os.environ.get("RL0", "12")); RLU = int(os.environ.get("RLU", "2"))
    assert (24 - RL0) * RLU >= 16 and RLL + 16 // RLN <= RL0
    PRI = os.environ.get("PRI", "1000000000000000000001111111")
    assert len(PRI) == 28
    TPZ = int(os.environ.get("TPZ", "5")); tp0 = [None]
    assert TPZ < RL0
    curp = [os.environ.get('AP0', '1')]
    def setp(p):
        if p != curp[0]: a(f"s_setprio {p}"); curp[0] = p
    mark0 = len(a.lines)
    for k in range(7):
        a(f"v_lshrrev_b32 v{PM}, 4, v{PM}")
        if k < 5: a(f"v_or_b32 v{PM}, 0xf00, v{PM}")
        elif k == 5: a(f"v_or_b32 v{PM}, s63, v{PM}")
        a(f"v_lshlrev_b32 v{BK}, 22, v{PK+k}")
        if k > 0: a(f"v_lshl_or_b32 v{BK}, v{PK+k-1}, 2, v{BK}")
        a(f"v_lshrrev_b32 v{BK+1}, 10, v{PK+k}")
        if k < 6: a(f"v_lshl_or_b32 v{BK+1}, v{PK+k+1}, 10, v{BK+1}")
        for r in range(4):
            z = 4 * k + r
            if z == RL0:
                setp(os.environ.get("RLP", "1"))
                if not os.environ.get("IST"): fstamp(9)
                relayout()
                if not os.environ.get("IST"): fstamp(10)
            setp(PRI[z])
            if True:
                pos = [p for p in range(12) if 0 <= k - 1 + (p >> 2) <= 6]
                a(f"""
                v_ffbl_b32 v{HD}, v{PM}
                v_mul_u32_u24 v{T0}, 5, v{HD}
                v_lshrrev_b64 v[{T0}:{T1}], v{T0}, v[{BK}:{BK+1}]
                v_and_or_b32 v{T0}, v{T0}, s66, v{CB}
                ds_add_rtn_u32 v{RK}, v{T0}, v{ONE}
                ds_wrxchg_rtn_b32 v{CT}, v{OWN}, v{ZERO}
                v_and_b32 v{T2}, 15, v{PM}
                v_bcnt_u32_b32 v{T3}, v{T2}, 0
                v_cmp_eq_u32 vcc, {4-r}, v{T3}
                """)
                fill = []
                if z == 1: fill += [["s_lshl_b32 s45, s2, 8", f"s_add_u32 s45, s45, {WS_TABR}", f"buffer_store_dword v{ZERO}, v{ZERO}, s[12:15], s45 offen sc1"]]
                if z >= RLL: fill += rl_loads[(z - RLL) * RLN:(z - RLL + 1) * RLN]
                if z >= RL0: fill += rl_st[(z - RL0) * RLU:(z - RL0 + 1) * RLU]
                if z == 0:
                    fill += [["s_mov_b64 exec, s[4:5]", f"buffer_load_dwordx4 v[{TP}:{TP+3}], v{VPF}, s[20:23], s44 offen", "s_mov_b64 exec, -1"]]
                    tp0[0] = nvm() + 1
                if z == TPZ:
                    fill = [[f"s_waitcnt vmcnt({nvm() - tp0[0]})", "s_mov_b64 exec, s[4:5]", f"buffer_store_dwordx4 v[{TP}:{TP+3}], v{L16}, s[32:35], s47 offen{STF}", "s_mov_b64 exec, -1"]] + fill
                for u in fill:
                    for l in u: a(l)
                if not fill: a("s_nop 1")
                a(f"""
                v_cndmask_b32 v{AL}, v{PM}, v{T2}, vcc
                s_waitcnt lgkmcnt(0)
                v_cmp_gt_u32 s[68:69], 2, v{CT}
                v_cmp_gt_u32 s[70:71], 2, v{RK}
                """)
                if r == 0 and k > 0: flush_out()
                else: a("s_nop 0")
                a(f"v_lshrrev_b64 v[{FM}:{FM+1}], v{G32}, s[68:69]")
                qs = [q for q in (k + 1, k, k - 1) if 0 <= q <= 6]
                tm = [TA_, TB_, FM + 1]
                for i, q in enumerate(qs): a(f"v_perm_b32 v{tm[i]}, v{FM}, v{FM}, v{SELQ+q}")
                for i, q in enumerate(qs): a(f"v_and_b32 v{tm[i]}, v{tm[i]}, v{OHQ+q}")
                for i, q in enumerate(qs):
                    a(f"v_msad_u8 v{FA}, v{OWQ+q}, v{tm[i]}, {'0' if i == 0 else f'v{FA}'}")
                    if q != k - 1: a(f"v_lshlrev_b32 v{FA}, 4, v{FA}")
                a(f"""
                v_and_b32 v{FA}, v{FA}, v{AL}
                v_cmp_eq_u32 vcc, 0, v{FA}
                v_ffbl_b32 v{CH}, v{FA}
                s_or_b64 vcc, vcc, s[70:71]
                v_cndmask_b32 v{CH}, v{CH}, v{HD}, vcc
                v_lshlrev_b32 v{T0}, v{CH}, v{ONE}
                v_lshl_add_u32 v{T1}, v{CH}, 1, v{LB}
                v_xor_b32 v{PM}, v{PM}, v{T0}
                """)
            off = (k - 1) * 8
            if off < 0:
                a(f"v_subrev_u32 v{T1}, 8, v{T1}"); off = 0
            a(f"ds_read_u16 v{OUT+r}, v{T1} offset:{off}")
        if k == 5:
            a("s_cmp_lg_u32 s59, 3")
            a(f"s_cbranch_scc1 {name}_sdone")
    a.label(f"{name}_sdone")
    a("s_waitcnt lgkmcnt(0)")
    flush_out()
    if os.environ.get("NOSCH"):
        keep = []
        for l in a.lines[mark0:]:
            t = l.strip()
            if t.startswith("v_") or t.startswith("ds_") or t.startswith("buffer_store_dwordx"): continue
            keep.append(l)
        a.lines[mark0:] = keep
    a.label(f"{name}_udone")
    a("s_setprio 0")
    fstamp(1)
    SKIP = os.environ.get("SKIPWG", "")
    a(f"""
    s_waitcnt vmcnt(0)
    """)
    fstamp(2)
    a(f"""
    s_mov_b64 exec, 1
    ds_add_rtn_u32 v{VT}, v{VFA}, v{VF1} offset:20
    v_mov_b32 v0, s51
    s_waitcnt lgkmcnt(0)
    v_readfirstlane_b32 s45, v{VT}
    s_and_b32 s45, s45, 3
    s_cmp_eq_u32 s45, 3
    s_cbranch_scc0 {name}_wdec
    s_mov_b64 exec, 0xff
    s_lshr_b32 s38, s51, 5
    s_lshl_b32 s39, 1, s51
    {"s_cmp_eq_u32 s34, 0" if SKIP else ""}
    {"s_cselect_b32 s39, 0, s39" if SKIP else ""}
    v_cmp_eq_u32 vcc, s38, v{LANE}
    v_mov_b32 v2, s39
    v_lshlrev_b32 v0, 2, v{LANE}
    v_cndmask_b32 v2, 0, v2, vcc
    v_mov_b32 v1, v2
    buffer_atomic_or v1, v0, s[52:55], 0 offen sc0
    s_lshl_b32 s45, s2, 8
    s_add_u32 s45, s45, {WS_TABR}
    s_waitcnt vmcnt(0)
    v_or_b32 v1, v1, v2
    v_cmp_ne_u32 vcc, -1, v1
    s_cbranch_vccnz {name}_poll
    s_mov_b64 exec, -1
    v_lshlrev_b32 v0, 8, v{LANE}
    s_mov_b32 s38, {WS_TABR}
    """)
    for j in range(4):
        a(f"buffer_store_dword v{VF1}, v0, s[12:15], s38 offen sc1")
        if j < 3: a("s_add_u32 s38, s38, 16384")
    a(f"s_branch {name}_go")
    a.label(f"{name}_poll")
    a(f"""
    buffer_load_dword v1, v{ZERO}, s[12:15], s45 offen sc1
    s_add_u32 s65, s65, 1
    s_waitcnt vmcnt(0)
    v_cmp_eq_u32 vcc, 1, v1
    s_cbranch_vccnz {name}_go
    s_cmp_lt_u32 s65, {int(os.environ.get("PLIM", "200"))}
    s_cbranch_scc1 {name}_poll
    buffer_load_dword v1, v0, s[52:55], 0 offen sc1
    s_waitcnt vmcnt(0)
    v_cmp_ne_u32 vcc, -1, v1
    s_cbranch_vccz {name}_go
    s_ff1_i32_b64 s38, vcc
    s_nop 3
    v_readlane_b32 s39, v1, s38
    s_ff0_i32_b32 s39, s39
    s_lshl_b32 s38, s38, 5
    s_add_u32 s38, s38, s39
    s_andn2_b32 s39, s64, 255
    s_add_u32 s39, s39, 256
    s_or_b32 s38, s38, s39
    s_branch {name}_dec
    """)
    a.label(f"{name}_go")
    a(f"""
    {"buffer_inv sc1" if os.environ.get("LSF", " sc1") == "" else ""}
    s_mov_b32 s38, 0x80000000
    """)
    a.label(f"{name}_dec")
    a(f"""
    v_mov_b32 v1, s38
    s_mov_b64 exec, 1
    ds_write_b32 v{VFA}, v1 offset:24
    """)
    a.label(f"{name}_wdec")
    a(f"""
    s_mov_b64 exec, -1
    ds_read_b32 v{VT}, v{VFA} offset:24
    s_waitcnt lgkmcnt(0)
    v_readfirstlane_b32 s45, v{VT}
    s_cmp_lg_u32 s45, s64
    s_cbranch_scc1 {name}_gotd
    s_sleep 2
    s_branch {name}_wdec
    """)
    a.label(f"{name}_gotd")
    a(f"""
    s_mov_b32 s64, s45
    s_and_b32 s51, s45, 255
    s_mov_b32 s65, 0x10000
    s_bitcmp0_b32 s45, 31
    s_cbranch_scc1 {name}_unit
    s_xor_b32 s44, s50, 1
    s_lshl_b32 s44, s44, 3
    s_add_u32 s44, s44, s56
    s_lshl_b32 s44, s44, 14
    s_add_u32 s44, s44, {WS_TB2}
    s_add_u32 s47, s44, 65536
    """)
    fstamp(3)
    TWIN = int(os.environ.get("TWIN", "4"))
    for q in range(32):
        o, qq = divmod(q, 16)
        d = MT[qq] if o == 0 else 128 + 16 * (qq >> 1) + 8 + 4 * (qq & 1)
        if q >= TWIN: a(f"s_waitcnt vmcnt({TWIN-1})")
        a(f"buffer_load_dwordx4 v[{d}:{d+3}], v{L16}, s[12:15], s{47 if o else 44} offen offset:{(q&3)*1024} sc1")
        if q & 3 == 3: a(f"s_add_u32 s{47 if o else 44}, s{47 if o else 44}, 4096")
    gen2.gen_k2(a, name, fstamp, fstamp_out, MT)
    a.label(f"{name}_end")
    a("s_endpgm")
    return (256, 256)

def gen_k3(a, name):
    kernel_header(a, name)
    a(f"""
    s_cmp_ge_u32 s2, 256
    s_cbranch_scc1 {name}_end
    s_load_dwordx4 s[4:7], s[0:1], 48
    s_load_dwordx2 s[8:9], s[0:1], 72
    v_and_b32 v1, 15, v0
    v_lshrrev_b32 v2, 4, v0
    v_lshlrev_b32 v3, 4, v1
    v_lshl_add_u32 v3, v2, 19, v3
    s_lshl_b32 s3, s2, 8
    s_add_u32 s20, s3, {WS_PART}
    s_waitcnt lgkmcnt(0)
    """)
    srd(a, 12, 8, WS_BYTES)
    srd(a, 16, 6, B * 2)
    srd(a, 24, 4, 2)
    for i in range(8):
        a(f"buffer_load_dwordx4 v[{8+4*i}:{11+4*i}], v3, s[12:15], s20 offen")
        a(f"s_add_u32 s20, s20, 65536")
    a(f"""
    v_lshlrev_b32 v4, 2, v0
    s_add_u32 s21, s3, {WS_PNN}
    s_add_u32 s22, s21, 65536
    v_mov_b32 v5, 0
    buffer_load_dword v40, v4, s[12:15], s21 offen
    buffer_load_dword v41, v4, s[12:15], s22 offen
    buffer_load_ushort v42, v5, s[24:27], 0 offen
    v_lshlrev_b32 v6, 4, v0
    """)
    for i in range(1, 8):
        a(f"s_waitcnt vmcnt({10-i})")
        for r in range(4): a(f"v_add_f32 v{8+r}, v{8+r}, v{8+4*i+r}")
    a(f"""
    ds_write_b128 v6, v[8:11]
    s_waitcnt lgkmcnt(0)
    s_barrier
    v_cmp_gt_u32 vcc, 64, v0
    s_and_saveexec_b64 s[30:31], vcc
    s_cbranch_execz {name}_end
    """)
    for i in range(16):
        a(f"ds_read_b32 v{12+i}, v4 offset:{i*256}")
    a("s_waitcnt lgkmcnt(0)")
    for st in (8, 4, 2, 1):
        for i in range(st): a(f"v_add_f32 v{12+i}, v{12+i}, v{12+i+st}")
    a(f"""
    s_waitcnt vmcnt(0)
    v_add_f32 v40, v40, v41
    v_cvt_pk_bf16_f32 v12, v12, v40
    v_lshlrev_b32 v42, 16, v42
    v_lshlrev_b32 v13, 16, v12
    v_and_b32 v14, 0xffff0000, v12
    v_add_f32 v13, v13, v42
    v_cvt_pk_bf16_f32 v13, v13, v13
    v_lshlrev_b32 v13, 16, v13
    v_add_f32 v13, v13, v14
    v_cvt_pk_bf16_f32 v13, v13, v13
    v_lshlrev_b32 v4, 1, v0
    s_lshl_b32 s3, s2, 7
    buffer_store_short v13, v4, s[16:19], s3 offen
    """)
    a.label(f"{name}_end")
    a("s_endpgm")
    return 48

if __name__ == "__main__":
    out = sys.argv[1]
    which = sys.argv[2] if len(sys.argv) > 2 else "all"
    if len(sys.argv) > 3 and sys.argv[3] == "stamp": STAMP1 = True
    k1 = ("k1_kernel", gen_k1, 256, 512, K1_LDS)
    k3 = ("k3_kernel", gen_k3, 256, 256, 4096)
    s = build({"all": [k1, k3], "k1": [k1]}[which])
    open(out, "w").write(s)
```

```python
import sys, struct
from gen import Asm, kernel_header, kernel_desc, srd, build, f32bits, WS_BYTES

B, F, D, V, H = 16384, 100, 128, 1000, 512
SLS = 102656
WS_W1R = 0
WS_SCHED = 0x1000000
WS_PART = 0x1400000
WS_PNN = 0x1C00000
K2_LDS = 131072

STAMP = False
PMAP = False
import os
PSF = os.environ.get('PSF', '')
import os
PFD = int(os.environ.get('PFD', '2'))
PFSEL = 's_bfe_u32 s18, s33, 0x40002' if os.environ.get('PFFIX', '1') == '1' else 's_and_b32 s18, s33, 15'
K2PRIO = os.environ.get('K2PRIO', '')
import os
ABL = set(os.environ.get('ABL', '').split(','))
NOPF = os.environ.get('PF', '0') == '0'
WS_DBG = 0x3000000
WS_TABR = 0x0E00000
K2_LDS = 163840

SHF = int(os.environ.get("SHF", "2"))
PRE = SHF >= 8
class Cnt:
    def __init__(self): self.n = 0; self.tag = {}
    def issue(self, tag=None):
        self.n += 1
        if tag is not None: self.tag[tag] = self.n
    def after(self, tag):
        return self.n - self.tag[tag] if tag in self.tag else None

def gen_final(a, cnts, R, fstamp):
    ACC, SEL, IDX, VL16, VPW, TMP, DAT, SCH, NS, LSF = (R[k] for k in "ACC SEL IDX VL16 VPW TMP DAT SCH NS LSF".split())
    PK = os.environ.get("PK", "1") == "1"
    EPT = [int(x) for x in os.environ.get("EPT", "8,0").split(",")]
    TGAP = int(os.environ.get("TGAP", "3"))
    LAG = int(os.environ.get("LAG", "3"))
    S0 = 10 if SHF else 11
    BLK = int(os.environ.get("BLK", "0")); BULK = BLK > 0
    C2, C1, ONE, W01, W23 = 128, 130, 132, 134, 136
    EB = 140
    NB = 6
    if SHF:
        a(f"""
        s_add_u32 s40, s20, 61440
        s_add_u32 s41, s20, 65536
        s_add_u32 s44, s20, {61440+65536}
        s_add_u32 s45, s20, 131072
        """)
        SB = [[None, 20], [40, 41], [44, 45]]
    else:
        a(f"""
        s_add_u32 s18, s20, 4096
        s_add_u32 s40, s20, 65536
        s_add_u32 s41, s20, {65536+4096}
        """)
        SB = [[20, 18], [40, 41]]
    a(f"""
    s_lshl_b32 s28, s38, 16
    s_and_b32 s29, s38, 0xffff0000
    s_lshl_b32 s30, s39, 16
    s_and_b32 s31, s39, 0xffff0000
    s_lshl_b32 s35, s33, 16
    s_lshl_b32 s42, s34, 15
    s_add_u32 s35, s35, s42
    s_lshl_b32 s42, s3, 12
    s_add_u32 s35, s35, s42
    s_add_u32 s35, s35, {WS_PART}
    """)
    setup = [f"v_mov_b32 v{C2}, {f32bits(-0.1029432397):#x}", f"v_mov_b32 v{C2+1}, {f32bits(-0.1029432397):#x}",
             f"v_mov_b32 v{C1}, {f32bits(-2.302208198):#x}", f"v_mov_b32 v{C1+1}, {f32bits(-2.302208198):#x}",
             f"v_mov_b32 v{ONE}, 1.0", f"v_mov_b32 v{ONE+1}, 1.0"] + [f"v_mov_b32 v{W01+r}, s{28+r}" for r in range(4)] + \
            [f"v_lshrrev_b32 v{VPW}, 2, v{VL16}", f"v_and_b32 v{TMP}, 128, v{VPW}", f"v_add_u32 v{VPW}, v{VPW}, v{TMP}"]
    FW = os.environ.get("FW", "1") == "1" and PK
    if FW:
        setup += [f"v_rcp_f32 v{W01+r}, v{W01+r}" for r in range(4)] + [f"v_mov_b32 v{ONE}, 0x7f7fffff", f"v_mov_b32 v{ONE+1}, 0xff7fffff"] + \
                 [f"v_med3_f32 v{W01+r}, v{W01+r}, v{ONE}, v{ONE+1}" for r in range(4)]
    U = [(0, p) for p in range(LAG)]
    for p in range(8):
        U.append((1, p))
        if p + LAG < 8: U.append((0, p + LAG))
    if LAG == 0:
        U = [(0, 0), (0, 1), (0, 2), (1, 0), (1, 1), (1, 2)] + [(h, p) for p in range(3, 8) for h in range(2)]
    assert len(U) == 16 and U[:3] == [(0, 0), (0, 1), (0, 2)]
    if SHF:
        U = [(0, 1), (0, 2), (0, 3)] + [(h, p) for p in range(4) for h in (1, 2)] + [(h, p) for p in range(4, 8) for h in range(3)]
    if PRE:
        assert SHF == 8
        U = [(0, 4), (0, 5), (0, 6)] + [(h, p) for p in range(7) for h in (1, 2)] + [(0, 7), (1, 7), (2, 7)]
    NU = len(U); HL = 2 if SHF else 1
    def tile(n):
        if n < 0: return (16 + n + SHF) % 16, False
        hf, p = U[n >> 1]; return 2 * p + (n & 1), hf == HL
    pos = [0]
    def emit(txt):
        for l in txt.split("\n"):
            if l.strip(): a(l); pos[0] += 1
    def need(kind, tag):
        n = cnts[kind].after(tag)
        if n is not None: emit(f"s_waitcnt {kind}cnt({n})")
    ops = []
    def pr(x): return f"v[{x}:{x+1}]"
    lastuse = {}
    def add_tile(tt, smpos, k):
        X = ACC + 4 * tt; E = EB + 6 * (k % NB); Q = E + 4
        def o(text, deps, T=False, st=False):
            d = dict(text=text, T=T, deps=list(deps), done=None, ready=smpos + 12, st=st); ops.append(d); return d
        prev = lastuse.get(k % NB, [])
        ex = []; xw = []; rc = []
        for g in range(2):
            x = X + 2 * g; e = E + 2 * g; w = W01 + 2 * g
            if PK:
                m1 = o(f"v_pk_mul_f32 {pr(e)}, {pr(x)}, {pr(x)}", [(p_, 1) for p_ in prev])
                m2 = o(f"v_pk_fma_f32 {pr(e)}, {pr(e)}, {pr(C2)}, {pr(C1)}", [(m1, 2)])
                m3 = o(f"v_pk_mul_f32 {pr(e)}, {pr(e)}, {pr(x)}", [(m2, 2)])
                e0 = o(f"v_exp_f32 v{e}, v{e}", [(m3, 2)], T=True)
                e1 = o(f"v_exp_f32 v{e+1}, v{e+1}", [(m3, 2)], T=True)
                if FW:
                    m4 = m3
                    m5 = o(f"v_pk_fma_f32 {pr(e)}, {pr(e)}, {pr(w)}, {pr(w)}", [(e0, 3), (e1, 3)])
                else:
                    m4 = o(f"v_pk_mul_f32 {pr(x)}, {pr(x)}, {pr(w)}", [(m3, 1)])
                    m5 = o(f"v_pk_add_f32 {pr(e)}, {pr(e)}, {pr(ONE)}", [(e0, 3), (e1, 3)])
                r0 = o(f"v_rcp_f32 v{e}, v{e}", [(m5, 2)], T=True)
                r1 = o(f"v_rcp_f32 v{e+1}, v{e+1}", [(m5, 2)], T=True)
                xw.append(m4); rc += [r0, r1]
            else:
                for u in range(2):
                    m1 = o(f"v_mul_f32 v{e+u}, v{x+u}, v{x+u}", [(p_, 1) for p_ in prev])
                    m2 = o(f"v_fma_f32 v{e+u}, v{e+u}, v{C2}, v{C1}", [(m1, 2)])
                    m3 = o(f"v_mul_f32 v{e+u}, v{e+u}, v{x+u}", [(m2, 2)])
                    e0 = o(f"v_exp_f32 v{e+u}, v{e+u}", [(m3, 2)], T=True)
                    m4 = o(f"v_mul_f32 v{x+u}, v{x+u}, v{w+u}", [(m3, 1)])
                    m5 = o(f"v_add_f32 v{e+u}, 1.0, v{e+u}", [(e0, 3)])
                    r0 = o(f"v_rcp_f32 v{e+u}, v{e+u}", [(m5, 2)], T=True)
                    xw.append(m4); rc.append(r0)
        if PK:
            q0 = o(f"v_pk_mul_f32 {pr(Q)}, {pr(X)}, {pr(E)}", [(xw[0], 2), (rc[0], 3), (rc[1], 3)] + [(p_, 1) for p_ in prev])
            q1 = o(f"v_pk_fma_f32 {pr(Q)}, {pr(X+2)}, {pr(E+2)}, {pr(Q)}", [(xw[1], 2), (rc[2], 3), (rc[3], 3), (q0, 2)])
            q2 = o(f"v_add_f32 v{Q}, v{Q}, v{Q+1}", [(q1, 2)])
        else:
            q2 = o(f"v_mul_f32 v{Q}, v{X}, v{E}", [(xw[0], 2), (rc[0], 3)] + [(p_, 1) for p_ in prev])
            for r in range(1, 4):
                q2 = o(f"v_fma_f32 v{Q}, v{X+r}, v{E+r}, v{Q}", [(xw[r], 2), (rc[r], 3), (q2, 2)])
        st = o(f"buffer_store_dword v{Q}, v{VPW}, s[12:15], s35 offen offset:{(tt>>1)*512+(tt&1)*128}{PSF}" if not os.environ.get("NOST") else "s_nop 0", [(q2, 2)], st=not os.environ.get("NOST"))
        lastuse[k % NB] = [st]
    lastT = [-100]
    def ok(o_):
        return o_["done"] is None and pos[0] >= o_["ready"] and all(d["done"] is not None and pos[0] - d["done"] >= dist for d, dist in o_["deps"])
    def epi(n, force=False):
        while n > 0:
            if setup:
                emit(setup.pop(0)); n -= 1; continue
            cand = [o_ for o_ in ops if ok(o_)]
            if not cand:
                if force and any(o_["done"] is None for o_ in ops): emit("s_nop 0"); continue
                return
            tc = [o_ for o_ in cand if o_["T"]]; nc = [o_ for o_ in cand if not o_["T"]]
            if tc and (pos[0] - lastT[0] >= TGAP or not nc): c = tc[0]
            else: c = nc[0]
            c["done"] = pos[0]
            if c["T"]: lastT[0] = pos[0]
            emit(c["text"])
            if c["st"]: cnts["vm"].issue(None)
            n -= 1
    kk = 0
    FPRI = [int(x) for x in os.environ.get("FPRI", "24,38,46").split(",") if x]
    FL = int(os.environ.get("FL", "2"))
    J0 = 16 * S0 + SHF
    ring = [DAT + 8 * (J0 % 3)] + [224 + 8 * i for i in range(FL - 2)] + [DAT + 8 * ((J0 + 1) % 3), DAT + 8 * ((J0 + 2) % 3)]
    assert not (BULK and FL > 2 and SHF)
    def dbuf(n): return ring[n % (FL + 1)]
    for n in range(2 * NU + FL):
        J = 16 * S0 + SHF + n
        if FPRI and n == 0: emit(f"s_setprio {len(FPRI)}")
        if n in FPRI: emit(f"s_setprio {len(FPRI) - 1 - FPRI.index(n)}")
        if n < 2 * NU:
            sreg = SCH + 4 * ((J >> 1) % NS) + 2 * (J & 1)
            if BULK and n >= 2 * NS: sreg = 176 + 4 * ((n >> 1) - NS) + 2 * (J & 1)
            d = dbuf(n)
            for hh in range(2):
                if BULK:
                    for q in range(NS + BLK * (2 * n + hh), min(NU, NS + BLK * (2 * n + hh + 1))):
                        hf, p = U[q]; sb = SB[hf][p >> 2]; slot = 176 + 4 * (q - NS)
                        emit(f"buffer_load_dwordx4 v[{slot}:{slot+3}], v{VL16}, s[12:15], s{sb} offen offset:{(p&3)*1024}{LSF}")
                        cnts["vm"].issue(("s", 8 * S0 + SHF // 2 + q))
                epi(EPT[hh])
                if hh == 0 and J % 2 == 0: need("vm", ("s", J >> 1))
                for h in (2 * hh, 2 * hh + 1):
                    emit(f"v_lshlrev_b32_sdwa v{d+2*h}, 3, v{sreg+(h>>1)} dst_sel:DWORD dst_unused:UNUSED_PAD src0_sel:DWORD src1_sel:WORD_{h&1}")
                for h in (2 * hh, 2 * hh + 1):
                    emit(f"ds_read_b64 v[{d+2*h}:{d+2*h+1}], v{d+2*h}")
                    cnts["lgkm"].issue(("r", J))
            if n % 2 == 1 and (n >> 1) + NS < NU and not BULK:
                Pn = (J >> 1) + NS; slot = SCH + 4 * (Pn % NS)
                hf, p = U[(n >> 1) + NS]
                sb = SB[hf][p >> 2]
                emit(f"buffer_load_dwordx4 v[{slot}:{slot+3}], v{VL16}, s[12:15], s{sb} offen offset:{(p&3)*1024}{LSF}")
                cnts["vm"].issue(("s", Pn))
        else: epi(EPT[0] + EPT[1])
        if n - FL < -2: continue
        t = J - FL; dt = dbuf(n - FL); tt, hf = tile(n - FL)
        need("lgkm", ("r", t))
        emit(f"v_smfmac_f32_16x16x64_bf16 v[{ACC+4*tt}:{ACC+4*tt+3}], v[{SEL}:{SEL+3}], v[{dt}:{dt+7}], v{IDX}")
        if hf:
            add_tile(tt, pos[0], kk); kk += 1
    if os.environ.get("ESTAMP"): fstamp(3)
    left = sum(o_["done"] is None for o_ in ops)
    print("final: epilogue ops left after gather:", left, file=sys.stderr)
    epi(10000, force=True)
    assert all(o_["done"] is not None for o_ in ops) and kk == 16

def gen_k2(a, name, fstamp, fstamp_out, MT):
    ACC = 0; SEL = 64; IDX = 68; VL16 = 69; VPW = 70; TMP = 71
    W = 72; DAT = 88; PB = 112; SCH = 116
    NS = 3
    LSF = os.environ.get("LSF", " sc1")
    def rstamp(): pass
    def stamp(fixed=None): return False
    def T(i, ks): return f"v[{128+16*i+4*ks}:{128+16*i+4*ks+3}]"
    def wld(reg, ks, sf): return f"buffer_load_dwordx4 v[{reg}:{reg+3}], v{VL16}, s[12:15], s{21 if ks < 2 else 19} offen offset:{(ks&1)*1024}{sf}"
    WINC = "s_add_u32 s21, s21, 4096\ns_add_u32 s19, s19, 4096"
    a.label(f"{name}_k2")
    L = 0
    a(f"""
    s_setprio 0
    s_load_dwordx4 s[8:11], s[0:1], 32
    v_mbcnt_lo_u32_b32 v{L}, -1, 0
    v_mbcnt_hi_u32_b32 v{L}, -1, v{L}
    s_mul_i32 s35, s3, {128*144}
    v_and_b32 v{L+1}, 15, v{L}
    v_lshrrev_b32 v{L+2}, 4, v{L}
    v_mul_u32_u24 v{TMP}, 144, v{L+1}
    v_lshl_add_u32 v{TMP}, v{L+2}, 4, v{TMP}
    v_add_u32 v{TMP}, s35, v{TMP}
    """)
    for i in range(8):
        for ks in range(2):
            a(f"ds_read_b128 {T(i,ks)}, v{TMP} offset:{2304*i+64*ks}")
    a(f"""
    s_lshr_b32 s33, s2, 1
    s_and_b32 s34, s2, 1
    s_mov_b32 s32, 0x8000
    v_lshlrev_b32 v{VL16}, 4, v{L}
    s_mul_i32 s21, s33, {SLS}
    s_lshl_b32 s35, s50, 11
    s_xor_b32 s19, s35, 2048
    s_add_u32 s19, s19, s21
    s_add_u32 s21, s21, s35
    s_mul_i32 s20, s34, {25*65536}
    s_add_u32 s20, s20, {WS_SCHED}
    s_lshl_b32 s35, s3, 13
    s_add_u32 s20, s20, s35
    v_lshlrev_b32 v{VPW}, 13, v{L+2}
    v_lshl_add_u32 v{VPW}, v{L+1}, 3, v{VPW}
    s_lshl_b32 s35, s3, 10
    v_add_u32 v{VPW}, s35, v{VPW}
    v_lshrrev_b32 v{L+4}, 3, v{L}
    v_xor_b32 v{L+4}, v{L+4}, v{L+2}
    v_and_b32 v{L+4}, 1, v{L+4}
    v_bfe_u32 v{L+5}, v{L}, 2, 1
    v_lshl_or_b32 v{L+4}, v{L+4}, 1, v{L+5}
    v_mov_b32 v{L+6}, 0x3f80
    v_cmp_eq_u32 vcc, 0, v{L+4}
    s_nop 1
    v_cndmask_b32 v{SEL}, 0, v{L+6}, vcc
    v_cndmask_b32 v{SEL+1}, 0, v{L+6}, vcc
    v_cmp_eq_u32 vcc, 1, v{L+4}
    s_nop 1
    v_cndmask_b32 v{SEL+2}, 0, v{L+6}, vcc
    v_cndmask_b32 v{SEL+3}, 0, v{L+6}, vcc
    v_and_b32 v{L+5}, 3, v{L}
    v_mul_u32_u24 v{IDX}, 0x5555, v{L+5}
    """)
    def wl(base):
        for ks in range(4): a(wld(base + 4 * ks, ks, " sc1"))
        a(WINC)
    def first_loads():
        wl(0); wl(16)
        if SHF: a("s_mov_b32 s44, s21\ns_mov_b32 s45, s19\n" + WINC)
        if not PRE: wl(W)
        sched_load(0); sched_load(1)
    fillers = []
    def pphase(wb, first_waits=None, off=0, f0=1):
        for i in range(10):
            if i < 8:
                if first_waits is not None:
                    a(f"s_waitcnt vmcnt({first_waits(i)})")
                pb = DAT + 4 * (i % 3)
                for ks in range(4):
                    c = "0" if ks == 0 else f"v[{pb}:{pb+3}]"
                    a(f"v_mfma_f32_16x16x32_bf16 v[{pb}:{pb+3}], v[{wb+4*ks}:{wb+4*ks+3}], {T(i,ks)}, {c}")
                    if fillers and i >= f0: a(fillers.pop(0))
            if i >= 2:
                t = i - 2
                pb = DAT + 4 * (t % 3); cv = DAT + 12 + 2 * (t & 1)
                if i == 9: a("s_nop 1")
                a(f"v_cvt_pk_bf16_f32 v{cv}, v{pb}, v{pb+1}")
                a(f"v_cvt_pk_bf16_f32 v{cv+1}, v{pb+2}, v{pb+3}")
                a(f"ds_write_b64 v{VPW}, v[{cv}:{cv+1}] offset:{t*128+off}")
        a(f"v_add_u32 v{VPW}, 0x8000, v{VPW}")
    def sched_load(Pp):
        t = Pp % 8
        slot = SCH + 4 * (Pp % NS)
        a(f"buffer_load_dwordx4 v[{slot}:{slot+3}], v{VL16}, s[12:15], s20 offen offset:{(t&3)*1024} sc1")
        if t == 3: a("s_add_u32 s20, s20, 4096")
        if t == 7: a("s_add_u32 s20, s20, 61440")
    a(f"s_cmp_lt_u32 s3, 4\ns_cbranch_scc1 {name}_k2n")
    first_loads()
    a.label(f"{name}_k2n")
    a(f"""
    s_and_b32 s35, s3, 3
    s_lshl_b32 s35, s35, 14
    s_add_u32 s35, s35, 98304
    v_add_u32 v{TMP}, s35, v{VL16}
    s_lshl_b32 s35, s33, 3
    s_waitcnt lgkmcnt(0)
    s_add_u32 s8, s8, s35
    s_addc_u32 s9, s9, 0
    s_add_u32 s10, s10, s35
    s_addc_u32 s11, s11, 0
    s_barrier
    """)
    fstamp(4)
    a(f"""
    s_load_dwordx2 s[36:37], s[8:9], 0
    s_load_dwordx2 s[38:39], s[10:11], 0
    s_cmp_lt_u32 s3, 4
    s_cbranch_scc1 {name}_k2m
    """)
    TR2 = os.environ.get("TR2", "1") == "1" and SHF
    pend = []
    def pphase2(wb, off, drain):
        for p in range(4):
            for ks in range(4):
                for u in range(2):
                    a(mf(DAT + 8 * (pc[0] % 3) + 4 * u, wb, 2 * p + u, ks, ks == 0))
                    if ks >= 1 and pend: a(pend.pop(0))
                    if fillers and (p or ks >= 2): a(fillers.pop(0))
            assert not pend
            for u in range(2): pend.extend(fin(DAT + 8 * (pc[0] % 3) + 4 * u, 2 * p + u, off))
            pc[0] += 1
        if drain:
            while fillers: a(fillers.pop(0))
            a("s_nop 7")
            while pend: a(pend.pop(0))
    pc = [0]
    TST = os.environ.get("TSTAMP")
    def ini(r0, r1): return [f"v_mov_b32 v{ACC+i}, s{24+(i&3)}" for i in range(r0, r1)]
    def w2ld(r):
        for ks in range(4): a(f"buffer_load_dwordx4 v[{r+4*ks}:{r+3+4*ks}], v{VL16}, s[12:15], s{44 if ks < 2 else 45} offen offset:{(ks&1)*1024} sc1")
    BIAS = """
        s_lshl_b32 s24, s36, 16
        s_and_b32 s25, s36, 0xffff0000
        s_lshl_b32 s26, s37, 16
        s_and_b32 s27, s37, 0xffff0000
        """
    def mf(pb, wb, i, ks, zero): return f"v_mfma_f32_16x16x32_bf16 v[{pb}:{pb+3}], v[{wb+4*ks}:{wb+4*ks+3}], {T(i,ks)}, {'0' if zero else f'v[{pb}:{pb+3}]'}"
    def fin(pb, t, off): return [f"v_cvt_pk_bf16_f32 v{pb}, v{pb}, v{pb+1}", f"v_cvt_pk_bf16_f32 v{pb+1}, v{pb+2}, v{pb+3}", f"ds_write_b64 v{VPW}, v[{pb}:{pb+1}] offset:{t*128+off}"]
    assert TR2
    if TR2:
        assert MT[:8] == [32 + 4 * i for i in range(8)]
        a(f"s_waitcnt vmcnt({6 if PRE else 10})")
        def mtw(q): a(f"ds_write_b128 v{TMP}, v[{MT[q]}:{MT[q]+3}] offset:{1024*q}")
        for q in range(4): mtw(q)
        BPOS = int(os.environ.get("BPOS", "28"))
        c = 0
        for g in range(2):
            for ks in range(4):
                for i in range(4 * g, 4 * g + 4):
                    a(mf(32 + 4 * i, 0, i, ks, ks == 0)); c += 1
                    if c % 2 == 0 and 3 + c // 2 < 16: mtw(3 + c // 2)
                    if c == BPOS: a("s_waitcnt lgkmcnt(0)\ns_barrier")
        sched_load(2)
        if PRE:
            a("s_waitcnt vmcnt(3)" + BIAS)
            fl = [x for t in range(8) for x in fin(32 + 4 * t, t, 0)]
            for ks in range(4):
                fl[12 + ks] += f"\nbuffer_load_dwordx4 v[{32+4*ks}:{35+4*ks}], v{VL16}, s[12:15], s{44 if ks < 2 else 45} offen offset:{(ks&1)*1024} sc1"
            i0 = ini(0, 16)
            for k_ in range(16): fl[k_ + 4] += "\n" + i0[k_]
            fillers += fl + ["s_nop 0"] * 4 + ini(48, 64) + ini(16, 32)
            pphase2(16, 0x8000, True)
            a(f"v_add_u32 v{VPW}, 0x10000, v{VPW}")
        else:
            w2ld(0)
            a("s_waitcnt vmcnt(11)" + BIAS)
            if TST: fstamp(5)
            fillers += [x for t in range(8) for x in fin(32 + 4 * t, t, 0)]
            pphase2(16, 0x8000, False)
            assert not fillers
            a(f"v_add_u32 v{VPW}, 0x8000, v{VPW}\ns_waitcnt vmcnt(0)")
            pend[:] = [x.replace(f"offset:{t*128+0x8000}", f"offset:{t*128}") for x in pend for t in (6, 7) if "offset" not in x and t == 6 or f"offset:{t*128+0x8000}" in x]
            fillers += [x + "\n" + y for x, y in zip(ini(16, 40), ini(40, 64))] + ["s_nop 0"] * 4 + ini(0, 16)
            pphase2(0, 0x8000, True)
            a(f"v_add_u32 v{VPW}, 0x10000, v{VPW}")
        a(f"s_branch {name}_k2j")
        a.label(f"{name}_k2m")
        first_loads()
        sched_load(2)
        w2ld(32)
        PBM = [48 + 4 * i for i in range(4)] + [DAT + 4 * i for i in range(4)]
        MPB = os.environ.get("MPB", "0") == "1"
        def own():
            a(f"s_waitcnt vmcnt({11 if PRE else 15})")
            for ks in range(2):
                for i in range(8): a(mf(PBM[i], 0, i, ks, ks == 0))
        if MPB: own()
        a("s_waitcnt lgkmcnt(0)\ns_barrier")
        for q in range(16):
            a(f"ds_read_b128 {T(q>>1, 2+(q&1))}, v{TMP} offset:{1024*q}")
        if not MPB: own()
        a(BIAS)
        if TST: fstamp(5)
        nw = 0
        for i in range(0, 12, 2):
            if i < 8:
                a(f"s_waitcnt lgkmcnt({12 - 2 * i + nw})")
                for ks in (2, 3):
                    for u in range(2): a(mf(PBM[i + u], 0, i + u, ks, False))
            else: a("s_nop 3")
            if i >= 4:
                for u in range(2):
                    for l in fin(PBM[i - 4 + u], i - 4 + u, 0): a(l)
                    nw += 1
        a(f"v_add_u32 v{VPW}, 0x8000, v{VPW}\ns_waitcnt vmcnt({7 if PRE else 11})")
        fillers += ini(48, 64) + ini(0, 12)
        pc[0] = 2
        if PRE:
            fillers += ini(12, 32)
            pphase2(16, 0, True)
            a(f"v_add_u32 v{VPW}, 0x8000, v{VPW}")
        else:
            pphase2(16, 0, False)
            a("s_waitcnt vmcnt(0)")
            fillers += ini(12, 32) + ["s_nop 0"] * 8 + ini(32, 48)
            pphase2(32, 0x8000, True)
            a(f"v_add_u32 v{VPW}, 0x10000, v{VPW}")
        a.label(f"{name}_k2j")
    else:
        for q in range(16):
            a(f"ds_write_b128 v{TMP}, v[{MT[q]}:{MT[q]+3}] offset:{1024*q}")
        a(f"""
        s_waitcnt lgkmcnt(0)
        s_barrier
        s_branch {name}_k2j
        """)
        a.label(f"{name}_k2m")
        a("s_barrier")
        for q in range(16):
            a(f"ds_read_b128 {T(q>>1, 2+(q&1))}, v{TMP} offset:{1024*q}")
        a.label(f"{name}_k2j")
        sched_load(2)
    if SHF and not TR2:
        for ks in range(4): a(f"buffer_load_dwordx4 v[{32+4*ks}:{35+4*ks}], v{VL16}, s[12:15], s{44 if ks < 2 else 45} offen offset:{(ks&1)*1024} sc1")
        a(f"""
        s_waitcnt vmcnt(15) lgkmcnt(0)
        s_lshl_b32 s24, s36, 16
        s_and_b32 s25, s36, 0xffff0000
        s_lshl_b32 s26, s37, 16
        s_and_b32 s27, s37, 0xffff0000
        """)
        if TST: fstamp(5)
        fillers += ini(48, 64)
        pphase(0)
        a("s_waitcnt vmcnt(11)")
        fillers += ini(0, 16)
        pphase(16)
        a("s_waitcnt vmcnt(0)")
        fillers += ini(16, 32)
        pphase(32)
        assert not fillers
        for l in ini(32, 48): a(l)
    if SHF:
        if TST: fstamp(1)
        a(f"""
        s_mov_b32 s22, 0
        s_mov_b32 s23, {2 if PRE else 3}
        s_waitcnt {"vmcnt(0) " if PRE else ""}lgkmcnt(0)
        s_barrier
        """)
        fstamp(6)
        for J in range(0 if PRE else 2):
            d = DAT + 8 * J
            for h in range(4):
                a(f"v_lshlrev_b32_sdwa v{d+2*h}, 3, v{SCH+2*J+(h>>1)} dst_sel:DWORD dst_unused:UNUSED_PAD src0_sel:DWORD src1_sel:WORD_{h&1}")
            for h in range(4):
                a(f"ds_read_b64 v[{d+2*h}:{d+2*h+1}], v{d+2*h}")
        if not PRE: sched_load(3)
    else:
        a("s_waitcnt vmcnt(11) lgkmcnt(0)")
        pphase(0)
        a("s_waitcnt vmcnt(7)")
        pphase(16)
    PRIOTXT = ""
    if K2PRIO == "hi": PRIOTXT = f"s_cmp_lt_u32 s3, 4\ns_cbranch_scc1 {name}_np\ns_setprio 1\n{name}_np:"
    if K2PRIO == "lo": PRIOTXT = f"s_cmp_ge_u32 s3, 4\ns_cbranch_scc1 {name}_np\ns_setprio 1\n{name}_np:"
    FIN = os.environ.get("FIN", "1") == "1"
    if not SHF:
        if FIN:
            a(f"""
            s_lshl_b32 s24, s36, 16
            s_and_b32 s25, s36, 0xffff0000
            s_lshl_b32 s26, s37, 16
            s_and_b32 s27, s37, 0xffff0000
            s_nop 3
            """)
        else: a("s_nop 7")
        for i in range(64):
            a(f"v_mov_b32 v{ACC+i}, {f's{24+(i&3)}' if FIN else 0}")
        for i in range(24):
            a(f"v_mov_b32 v{DAT+i}, 0")
        a(f"""
        s_mov_b32 s22, 0
        s_mov_b32 s23, 2
        {PRIOTXT}
        s_waitcnt vmcnt(0) lgkmcnt(0)
        s_barrier
        """)
        fstamp(6)
    vm = Cnt(); lg = Cnt(); uid = [0]
    cnts = {"vm": vm, "lgkm": lg}
    log = []
    RATE = float(os.environ.get("RATE", "1.9")); START = int(os.environ.get("START", "2")); GAP = int(os.environ.get("GAP", "2"))
    SMPOS = int(os.environ.get("SMPOS", "4"))
    LPRI = [int(x) for x in os.environ.get("LPRI", "8,12,15").split(",") if x]
    def op(text, kind="x", needs=(), issues=None):
        return dict(text=text, kind=kind, needs=list(needs), issues=issues)
    def build_step(S, last):
        G = []
        pre_ = S < 0
        j0 = 16 - SHF if pre_ else 0
        WB = 32 if pre_ else W
        for j in range(j0, 16 + (2 if last else 0)):
            J = 16 * S + j + SHF
            t = J - 2; dt = DAT + 8 * (t % 3); tt = t % 16
            smop = op(f"v_smfmac_f32_16x16x64_bf16 v[{ACC+4*tt}:{ACC+4*tt+3}], v[{SEL}:{SEL+3}], v[{dt}:{dt+7}], v{IDX}" if "nosm" not in ABL else "", "sm", [("lgkm", ("r", t))])
            if t < 0: smop = op("", "sm")
            if j < 16:
                sreg = SCH + 4 * ((J >> 1) % NS) + 2 * (J & 1)
                d = DAT + 8 * (J % 3)
                for h in range(4):
                    if h == SMPOS: G.append(smop)
                    G.append(op(f"v_lshlrev_b32_sdwa v{d+2*h}, 3, v{sreg+(h>>1)} dst_sel:DWORD dst_unused:UNUSED_PAD src0_sel:DWORD src1_sel:WORD_{h&1}",
                                "va", [("vm", ("s", J >> 1))] if (h == 0 and J % 2 == 0 and "nos" not in ABL) else []))
                    G.append(op(f"ds_read_b64 v[{d+2*h}:{d+2*h+1}], v{d+2*h}" if "nor" not in ABL else "", "rd", [], ("lgkm", ("r", J)) if "nor" not in ABL else None))
                if J % 2 == 1 and not (last and (j >> 1) + NS >= 8) and "nos" not in ABL:
                    Pn = (J >> 1) + NS
                    tq = Pn % 8; slot = SCH + 4 * (Pn % NS)
                    txt = f"buffer_load_dwordx4 v[{slot}:{slot+3}], v{VL16}, s[12:15], s20 offen offset:{(tq&3)*1024}{LSF}"
                    if tq == 3: txt += "\ns_add_u32 s20, s20, 4096"
                    if tq == 7: txt += "\ns_add_u32 s20, s20, 61440"
                    G.append(op(txt, "vl", [], ("vm", ("s", Pn))))
            if SMPOS >= 4 or j >= 16: G.append(smop)
        if last: return G
        P = []
        for i in range(8):
            for ks in range(4):
                c = "0" if ks == 0 else f"v[{PB}:{PB+3}]"
                grp = [op(f"v_mfma_f32_16x16x32_bf16 v[{PB}:{PB+3}], v[{WB+4*ks}:{WB+4*ks+3}], {T(i,ks)}, {c}" if "nop" not in ABL else "",
                          "m3" if ks == 3 else "m", [("vm", ("w", S, ks))] if (i == 0 and "now" not in ABL) else [])]
                kw = ks if (i == 7 and not pre_) else (2 * (i - 4) + (ks >> 1) if (pre_ and i in (4, 5) and ks % 2 == 0) else None)
                if kw is not None and "now" not in ABL:
                    txt = wld(W + 4 * kw, kw, LSF)
                    if kw == 3: txt += "\n" + WINC
                    grp.append(op(txt, "vl", [], ("vm", ("w", S + 1, kw))))
                P.append(grp)
            for g in range(GAP): P.append([])
            P.append([op(f"v_cvt_pk_bf16_f32 v{PB}, v{PB}, v{PB+1}", "cv")])
            P.append([op(f"v_cvt_pk_bf16_f32 v{PB+1}, v{PB+2}, v{PB+3}", "va")])
            P.append([op(f"ds_write_b64 v{VPW}, v[{PB}:{PB+1}] offset:{i*128}" if "nodw" not in ABL else "", "dw", [], ("lgkm", ("pw", S, i)) if "nodw" not in ABL else None)])
        P.append([op(f"""s_add_u32 s23, s23, 1
            s_cmp_eq_u32 s23, 5
            s_cselect_b32 s35, {(-131072) & 0xffffffff}, s32
            s_cselect_b32 s23, 0, s23
            v_add_u32 v{VPW}, s35, v{VPW}""", "va")])
        if "nopf" not in ABL and not NOPF:
            P.append([op("PF", "pf")])
        ORDER = os.environ.get("ORDER", "1sfsfssfs")
        if pre_:
            ORDER = "8ffffffff"
            P.append([op("\n".join(ini(32, 48)), "va")])
        if ORDER:
            flat = [p for p in P if p]
            tilesP = [flat[7 * i:7 * i + 7] for i in range(8)]; tail = flat[56:]
            pre = {}; post = {}
            j = int(ORDER[0])
            for i, c in enumerate(ORDER[1:]):
                m = tilesP[i]
                if c == "f":
                    pre[(j, 0)] = m[0] + m[1]; pre[(j, 1)] = m[2] + m[3]; post[j] = m[4] + m[5] + m[6]; j += 1
                else:
                    pre[(j, 0)] = m[0]; pre[(j, 1)] = m[1]; pre[(j + 1, 0)] = m[2]; pre[(j + 1, 1)] = m[3]; post[j + 1] = m[4] + m[5] + m[6]; j += 2
            assert j <= 16
            post[j - 1] = post[j - 1] + [x for t_ in tail for x in t_]
            out = []
            gi = 0
            for jj in range(j0, 16):
                va = []; rd = []; vl = []; sm = None
                while True:
                    g = G[gi]; gi += 1
                    if g["kind"] == "va": va.append(g)
                    elif g["kind"] == "rd": rd.append(g)
                    elif g["kind"] == "vl": vl.append(g)
                    elif g["kind"] == "sm": sm = g; break
                if LPRI and jj == 0: out.append(op(f"s_setprio {len(LPRI)}", "x"))
                if jj in LPRI: out.append(op(f"s_setprio {len(LPRI) - 1 - LPRI.index(jj)}", "x"))
                out += pre.get((jj, 0), []) + va[0:2] + rd[0:2] + pre.get((jj, 1), []) + va[2:4] + rd[2:4] + vl + [sm] + post.get(jj, [])
            assert gi == len(G)
            if "nobar" not in ABL: out.append(op("s_barrier", "bar", [("lgkm", ("pw", S, 7))] if "nodw" not in ABL else []))
            return out
        out = []
        k = 0
        for gi, g in enumerate(G):
            out.append(g)
            while k < len(P) and gi >= START + k * RATE:
                ism = P[k] and P[k][0]["kind"] in ("m", "m3")
                nxt = G[gi + 1]["kind"] if gi + 1 < len(G) else None
                if ism and (g["kind"] == "sm" or nxt == "sm") and gi + 1 < len(G): break
                out.extend(P[k]); k += 1
        while k < len(P):
            out.extend(P[k]); k += 1
        if "nobar" not in ABL:
            out.append(op("s_barrier", "bar", [("lgkm", ("pw", S, 7))] if "nodw" not in ABL else []))
        return out
    since_m3 = [100]
    def emit_line(txt):
        for l in txt.split("\n"):
            if l.strip():
                a(l); since_m3[0] += 1
    def step(S, emit, last=False, waits=None):
        for o in build_step(S, last):
            for kind, tag in o["needs"]:
                n = cnts[kind].after(tag)
                log.append((kind, n))
                if waits is not None:
                    k2, n2 = next(waits)
                    assert k2 == kind and (n is None or n2 <= n), (kind, tag, n, n2)
                    n = n2
                if emit and n is not None:
                    emit_line(f"s_waitcnt {kind}cnt({n})")
            if emit:
                if o["kind"] == "pf":
                    uid[0] += 1
                    emit_line(f"""s_cmp_gt_u32 s3, 1
                    s_cbranch_scc1 {name}_pf{uid[0]}
                    v_lshlrev_b32 v{TMP}, 2, v{VL16}
                    s_cmp_eq_u32 s3, 0
                    s_cselect_b32 s19, s21, s18
                    buffer_load_dword v{TMP}, v{TMP}, s[12:15], s19 offen""")
                    a.label(f"{name}_pf{uid[0]}")
                    emit_line("s_add_u32 s18, s18, 65536")
                else:
                    if o["kind"] == "cv" and since_m3[0] < 8:
                        emit_line(f"s_nop {7 - since_m3[0]}"); print("nop inserted", file=sys.stderr)
                    emit_line(o["text"])
                    if o["kind"] == "m3": since_m3[0] = 0
            if o["issues"]: cnts[o["issues"][0]].issue(o["issues"][1])
            if o["kind"] == "bar":
                if emit: stamp()
                if STAMP: vm.issue(None)
    for S in range(3): step(S, False)
    log.clear()
    for S in range(3, 6): step(S, False)
    steady = list(log); log.clear()
    for S in range(6, 9): step(S, False)
    assert steady == log
    assert all(n is not None for _, n in steady) or ABL != {""}
    if PRE:
        keep = dict(cnts); cnts["vm"] = Cnt(); cnts["lgkm"] = Cnt()
        step(-1, True)
        it = iter(steady)
        for S in range(3): step(S, False, waits=it)
        cnts.update(keep)
    a.label(f"{name}_gloop")
    it = iter(steady)
    if FIN:
        import copy
        for S in range(9, 10 if SHF else 11): step(S, True, waits=it)
        snap = copy.deepcopy(cnts)
        a(f"""
        s_cmp_eq_u32 s22, 7
        s_cbranch_scc1 {name}_fin
        """)
        for S in range(10 if SHF else 11, 12): step(S, True, waits=it)
        a(f"""
        s_add_u32 s22, s22, 1
        s_branch {name}_gloop
        """)
        a.label(f"{name}_fin")
        if os.environ.get("ESTAMP"): fstamp(4)
        cnts.update(snap)
        gen_final(a, cnts, dict(ACC=ACC, SEL=SEL, IDX=IDX, VL16=VL16, VPW=VPW, TMP=TMP, DAT=DAT, SCH=SCH, NS=NS, LSF=LSF), fstamp)
        fstamp(7)
        fstamp_out(VL16)
        return
    for S in range(9, 12): step(S, True, waits=it)
    a(f"""
    s_add_u32 s22, s22, 1
    s_cmp_lt_u32 s22, 8
    s_cbranch_scc1 {name}_gloop
    """)
    if os.environ.get("ESTAMP"): fstamp(4)
    step(12, True, last=True)
    PMAPTXT = f"v_lshrrev_b32 v{VPW}, 2, v{VL16}"
    if PMAP: PMAPTXT += f"\nv_and_b32 v{DAT}, 128, v{VPW}\nv_add_u32 v{VPW}, v{VPW}, v{DAT}"
    a.label(f"{name}_epi")
    a('s_nop 7')
    if os.environ.get("ESTAMP"): fstamp(3)
    rstamp()
    stamp()
    a(f"""
    s_lshl_b32 s24, s36, 16
    s_and_b32 s25, s36, 0xffff0000
    s_lshl_b32 s26, s37, 16
    s_and_b32 s27, s37, 0xffff0000
    s_lshl_b32 s28, s38, 16
    s_and_b32 s29, s38, 0xffff0000
    s_lshl_b32 s30, s39, 16
    s_and_b32 s31, s39, 0xffff0000
    s_mov_b32 s40, {f32bits(-0.1029432397):#x}
    s_mov_b32 s41, {f32bits(-2.302208198):#x}
    s_waitcnt vmcnt(0)
    v_mov_b32 v{TMP}, s41
    {PMAPTXT}
    s_lshl_b32 s35, s33, 16
    s_lshl_b32 s42, s34, 15
    s_add_u32 s35, s35, s42
    s_lshl_b32 s42, s3, 12
    s_add_u32 s35, s35, s42
    s_add_u32 s35, s35, {WS_PART}
    """)
    for tp in range(8):
        X = DAT; E = DAT + 8; S = W + 2 * (tp & 1)
        for h in range(2):
            t = 2 * tp + h
            for r in range(4): a(f"v_add_f32 v{X+4*h+r}, s{24+r}, v{ACC+4*t+r}")
        for r in range(8): a(f"v_mul_f32 v{E+r}, v{X+r}, v{X+r}")
        for r in range(8): a(f"v_fma_f32 v{E+r}, v{E+r}, s40, v{TMP}")
        for r in range(8): a(f"v_mul_f32 v{E+r}, v{E+r}, v{X+r}")
        for r in range(8): a(f"v_exp_f32 v{E+r}, v{E+r}")
        for r in range(8): a(f"v_mul_f32 v{X+r}, s{28+(r&3)}, v{X+r}")
        for r in range(8): a(f"v_add_f32 v{E+r}, 1.0, v{E+r}")
        for r in range(8): a(f"v_rcp_f32 v{E+r}, v{E+r}")
        a("s_nop 0")
        for h in range(2):
            a(f"v_mul_f32 v{S+h}, v{X+4*h}, v{E+4*h}")
        for r in range(1, 4):
            for h in range(2):
                a(f"v_fma_f32 v{S+h}, v{X+4*h+r}, v{E+4*h+r}, v{S+h}")
        for h in range(2):
            a(f"buffer_store_dword v{S+h}, v{VPW}, s[12:15], s35 offen offset:{(tp*512+h*128) if PMAP else (2*tp+h)*256}{PSF}")
    fstamp(7)
    fstamp_out(VL16)
```

```python
import sys, os
from gen import Asm, kernel_header, kernel_desc, srd, build, f32bits, WS_BYTES
import gen2f as gen2
from gen2f import SLS, WS_W1R, WS_SCHED, WS_PART, WS_PNN, WS_TABR, WS_DBG, Cnt

B, F, D, V, H = 16384, 100, 128, 1000, 512
gen2.PMAP = True
gen2.PSF = os.environ.get("PSF", " sc1")
K1_LDS = 163840
ROWB = 144
SC = 147456
FLAG = 1018 * 144
R2 = SC - 24576
assert R2 + 23 * 1024 <= FLAG
R1 = R2
NR = 30
NTL = 6
NDA = int(os.environ.get("NDA", "30"))
NDM1 = int(os.environ.get("NDM1", "99"))
K1ABL = set(os.environ.get("K1ABL", "").split(","))
STAMP1 = False
SCHED = os.environ.get("SCHED", "mask")
STF = os.environ.get("STF", " sc1")
assert NR * 4 * 1008 <= R2 and (NR * 4 + 4 * NTL) * 7 >= 1001 and (NR * 4 + 4 * NTL) * 1008 <= FLAG

TILES = []
for c in range(4):
    for r in range(c + 1): TILES.append((r, c))
for r in range(4):
    for c in range(4, 7): TILES.append((r, c))
TILES += [(4, 4), (4, 5), (4, 6), (5, 5), (5, 6), (6, 6)]
NEED = {}; REL = {}
for t, (r, c) in enumerate(TILES):
    for k in (r, c):
        NEED.setdefault(k, t); REL[k] = t


def gen_k1(a, name):
    kernel_header(a, name)
    LANE = 255; L16 = 254; VF1 = 253; VFA = 252; VT = 251
    uid = [0]
    XST = os.environ.get("XST", "")
    def stamp(k):
        if XST and LANE == 8 and k in (3, 4, 5): fstamp({3: 4, 5: 6, 4: 7}[k], True)
    def fstamp(k, x=False):
        if not STAMP1: return
        if XST and not x and k in (4, 6, 7): return
        a("s_memrealtime s[94:95]" if os.environ.get("RT") else "s_memtime s[94:95]")
        a("s_waitcnt lgkmcnt(0)")
        a(f"s_mov_b32 s{86+k}, s94")
    def fstamp_out(vl16):
        if not STAMP1: return
        a(f"""
        s_barrier
        s_lshl_b32 s94, s2, 3
        s_add_u32 s94, s94, s3
        s_lshl_b32 s94, s94, 11
        s_add_u32 s94, s94, {WS_DBG}
        v_lshlrev_b32 v1, 1, v{vl16}
        """)
        for k in range(8):
            a(f"v_mov_b32 v0, s{86+k}")
            a(f"buffer_store_dword v0, v1, s[12:15], s94 offen offset:{4*k}")
    def signal(j):
        a(f"""
        s_mov_b64 exec, 1
        ds_add_u32 v{VFA}, v{VF1} offset:{4*j}
        s_mov_b64 exec, -1
        """)
    def waitflag(j, n):
        uid[0] += 1
        a.label(f"{name}_wf{uid[0]}")
        a(f"""
        ds_read_b32 v{VT}, v{VFA} offset:{4*j}
        s_waitcnt lgkmcnt(0)
        v_readfirstlane_b32 s45, v{VT}
        s_cmp_lt_u32 s45, {n}
        s_cbranch_scc1 {name}_wf{uid[0]}
        """)
    a(f"""
    s_cmp_ge_u32 s2, 256
    s_cbranch_scc1 {name}_end
    s_load_dwordx8 s[4:11], s[0:1], 0
    s_load_dwordx2 s[12:13], s[0:1], 72
    s_load_dwordx2 s[52:53], s[0:1], 64
    v_lshrrev_b32 v1, 6, v0
    v_and_b32 v{LANE}, 63, v0
    s_bfe_u32 s36, s2, 0x10003
    v_readfirstlane_b32 s3, v1
    s_lshr_b32 s37, s2, 4
    s_lshl_b32 s37, s37, 3
    s_and_b32 s38, s2, 7
    s_or_b32 s37, s37, s38
    v_lshlrev_b32 v{L16}, 4, v{LANE}
    v_mov_b32 v{VFA}, {FLAG}
    v_mov_b32 v{VF1}, 1
    v_mov_b32 v40, {1000 | (1000 << 16)}
    v_cmp_gt_u32 vcc, 8, v0
    v_lshl_add_u32 v41, v0, 2, v{VFA}
    v_cndmask_b32 v40, v40, 0, vcc
    v_cmp_gt_u32 vcc, 12, v0
    s_and_saveexec_b64 s[46:47], vcc
    ds_write_b32 v41, v40
    s_mov_b64 exec, s[46:47]
    v_mul_u32_u24 v6, 57, v{LANE}
    v_lshrrev_b32 v6, 9, v6
    v_mul_u32_u24 v5, 9, v6
    v_sub_u32 v5, v{LANE}, v5
    v_cmp_gt_u32 s[40:41], 8, v5
    v_lshlrev_b32 v5, 4, v5
    v_lshl_add_u32 v83, v6, 8, v5
    s_and_b32 s56, s3, 3
    s_mul_i32 s42, s56, {7*256}
    s_mul_i32 s43, s56, 1008
    s_lshl_b32 s38, s36, 7
    s_add_u32 s42, s42, s38
    s_bitset0_b32 s41, 31
    s_waitcnt lgkmcnt(0)
    s_barrier
    """)
    srd(a, 16, 4, B * F * 4)
    srd(a, 20, 6, V * D * 2)
    srd(a, 24, 8, F * F * 2)
    srd(a, 28, 10, F * D * H * 2)
    srd(a, 32, 12, WS_BYTES)
    srd(a, 12, 12, WS_BYTES)
    srd(a, 52, 52, 256)
    a("s_mov_b32 s50, s36")
    fstamp(0)
    def dma(first, n):
        if n <= 0: return
        a(f"""
        s_lshr_b32 s38, s2, 3
        s_mul_i32 s38, s38, {n}
        s_lshr_b32 s38, s38, 5
        s_add_u32 s38, s38, {first}
        """)
        for c in range(n):
            a(f"""
            s_mul_i32 s44, s38, {4*1008}
            s_mul_i32 s39, s38, {4*7*256}
            s_add_u32 m0, s44, s43
            s_add_u32 s39, s39, s42
            s_add_u32 s38, s38, 1
            buffer_load_dwordx4 v83, s[20:23], s39 offen lds
            s_cmp_eq_u32 s38, {first+n}
            s_cselect_b32 s38, {first}, s38
            """)
    a(f"""
    s_cmp_ge_u32 s3, 4
    s_cbranch_scc1 {name}_aux
    """)
    W = 0; FR = 96; TA = 212; IDQ = 240; S0 = 244; S1 = 245; R = 246; RES = 247; KG = 248; VSL = 249
    RAW = 168; TB = FR; PX = 200; PY = 201; PW = 202; VSW = 203; VIO = 204; VTW = 206; C1K = 207; VDM = 208
    NTA = 7
    OFFJ = [0, 7, 13, 19]
    WL = [(t, j) for t, (m1, m2) in enumerate(TILES) if m2 != 6 for j in range(4)] + [(t, 0) for t, (m1, m2) in enumerate(TILES) if m2 == 6]
    WREG = {x: W + i for i, x in enumerate(WL)}
    NWQ = 23
    def AB(t):
        m1, m2 = TILES[t]
        return (6, m1) if m2 == 6 else (m1, m2)
    a(f"""
    s_setprio {os.environ.get("MP0", "3")}
    s_lshl_b32 s38, s3, 10
    s_add_u32 m0, s38, {R1}
    v_and_b32 v5, 15, v{LANE}
    """)
    for c in range(5):
        a(f"buffer_load_dwordx4 v{L16}, s[24:27], s38 offen lds")
        a(f"s_add_u32 m0, m0, 4096")
        a(f"s_add_u32 s38, s38, 4096")
    a(f"""
    v_lshrrev_b32 v6, 4, v{LANE}
    v_add_u32 v7, 3, v5
    v_lshrrev_b32 v7, 2, v7
    v_mad_u32_u24 v7, v5, 6, v7
    v_lshlrev_b32 v{VIO}, 2, v7
    s_movk_i32 s45, 400
    v_mad_u32_u24 v{VIO}, v6, s45, v{VIO}
    s_lshl_b32 s72, s37, 7
    s_lshl_b32 s73, s3, 5
    s_add_u32 s72, s72, s73
    s_mul_i32 s74, s72, 400
    s_mul_i32 s45, s36, 6400
    s_add_u32 s74, s74, s45
    """)
    NE = int(os.environ.get("NE", "4"))
    def rawload(ts=range(4)):
        for t in ts:
            a(f"buffer_load_dwordx4 v[{RAW+8*t}:{RAW+8*t+3}], v{VIO}, s[16:19], s74 offen")
            a(f"buffer_load_dwordx3 v[{RAW+8*t+4}:{RAW+8*t+6}], v{VIO}, s[16:19], s74 offen offset:16")
            a("s_add_u32 s74, s74, 1600")
    def pack(ts=range(4)):
        for t in ts:
            b = RAW + 8 * t
            a(f"v_lshl_or_b32 v{b}, v{b+1}, 16, v{b}")
            a(f"v_lshl_or_b32 v{b+1}, v{b+3}, 16, v{b+2}")
            a(f"v_lshl_or_b32 v{b+2}, v{b+5}, 16, v{b+4}")
            a(f"v_cndmask_b32 v{b+3}, v{C1K}, v{b+6}, s[48:49]")
    def padwrite(ts=range(4)):
        for t in ts:
            a(f"ds_write_b128 v{VSW}, v[{RAW+8*t}:{RAW+8*t+3}] offset:{t*64*ROWB}")
    rawload(range(NE))
    nm = NR - NDA; nm1 = min(nm, NDM1)
    a("s_mov_b64 exec, s[40:41]")
    dma(NDA, nm1)
    def tail_loads():
        a(f"s_add_u32 s39, s42, {NR*4*7*256}")
        for c in range(NTL):
            a(f"buffer_load_dwordx4 v[{TB+4*c}:{TB+4*c+3}], v83, s[20:23], s39 offen")
            a(f"s_add_u32 s39, s39, {4*7*256}")
    nafter = 2 * NE + nm1
    if nm1 == nm:
        tail_loads(); nafter += NTL
    a(f"""
    s_mov_b64 exec, -1
    v_and_b32 v8, 3, v{LANE}
    v_cmp_eq_u32 s[48:49], 0, v8
    v_mul_u32_u24 v{PX}, {25*100*2}, v6
    v_mul_u32_u24 v{PY}, 50, v6
    v_lshl_add_u32 v{PX}, v7, 1, v{PX}
    s_movk_i32 s45, 200
    v_mad_u32_u24 v{PY}, v7, s45, v{PY}
    v_add_u32 v{PX}, {R1}, v{PX}
    v_add_u32 v{PY}, {R1}, v{PY}
    v_add_u32 v{PW}, {R2}, v{L16}
    v_and_b32 v{KG}, 48, v{LANE}
    s_mul_i32 s45, s3, {256*ROWB}
    s_add_u32 s45, s45, 128
    v_mul_u32_u24 v{VSL}, {ROWB}, v5
    v_add_u32 v{VSL}, s45, v{VSL}
    v_mul_u32_u24 v{VSW}, {ROWB}, v{LANE}
    v_add_u32 v{VSW}, s45, v{VSW}
    v_mov_b32 v{RES}, 0
    v_mov_b32 v{VDM}, v83
    s_add_u32 s45, s43, {NR*4*1008}
    v_add_u32 v{VTW}, s45, v{L16}
    v_mov_b32 v{C1K}, 1000
    s_movk_i32 s57, {ROWB}
    """)
    for i in range(48): a(f"v_mov_b32 v{W+i}, 0")
    if os.environ.get("MPW"): a(f"s_setprio {os.environ.get('MPW')}")
    a(f"s_waitcnt vmcnt({nafter})")
    signal(0)
    waitflag(0, 4)
    stamp(2)
    for w in range(3):
        a(f"s_cmp_eq_u32 s3, {w+1}")
        a(f"s_cbranch_scc1 {name}_wb{w+1}")
    X = W; Y = W + 24
    for w in range(4):
        a.label(f"{name}_wb{w}")
        wl = WL[24 * w:24 * w + 24]
        for c, (t, j) in enumerate(wl):
            m1, m2 = AB(t)
            a(f"ds_read_u16_d16_hi v{X+c}, v{PX} offset:{((OFFJ[j]+m1)*100+m2)*2}")
            if m1 != m2:
                a(f"ds_read_u16_d16_hi v{Y+c}, v{PY} offset:{(m2*100+OFFJ[j]+m1)*2}")
        a("s_waitcnt lgkmcnt(0)")
        signal(1)
        for c, (t, j) in enumerate(wl):
            m1, m2 = AB(t)
            if m1 != m2: a(f"v_add_f32 v{X+c}, v{X+c}, v{Y+c}")
            if m2 == 6: a(f"v_cndmask_b32 v{X+c}, 0, v{X+c}, s[48:49]")
        if w < 3: a(f"s_branch {name}_wbd")
    a.label(f"{name}_wbd")
    a(f"""
    s_mul_i32 s45, s3, 6144
    v_add_u32 v{PX}, s45, v{PW}
    """)
    waitflag(1, 4)
    for c in range(6):
        if c == 5:
            a("s_cmp_eq_u32 s3, 3")
            a(f"s_cbranch_scc1 {name}_wsk")
        a(f"ds_write_b128 v{PX}, v[{X+4*c}:{X+4*c+3}] offset:{c*1024}")
    a.label(f"{name}_wsk")
    signal(2)
    if nm1 < nm:
        a("s_mov_b64 exec, s[40:41]")
        a(f"v_mov_b32 v83, v{VDM}")
        dma(NDA + nm1, nm - nm1)
        tail_loads()
        a("s_mov_b64 exec, -1")
    waitflag(2, 4)
    stamp(3)
    for t in range(NWQ):
        a(f"ds_read_b128 v[{W+4*t}:{W+4*t+3}], v{PW} offset:{t*1024}")
    a(f"s_waitcnt vmcnt({nm + NTL})")
    pack(range(NE))
    a("s_waitcnt lgkmcnt(0)")
    signal(3)
    waitflag(3, 4)
    padwrite(range(NE))
    a("s_mov_b64 exec, s[40:41]")
    for c in range(NTL):
        a(f"s_waitcnt vmcnt({NTL-1-c})")
        a(f"ds_write_b128 v{VTW}, v[{TB+4*c}:{TB+4*c+3}] offset:{c*4*1008}")
    a("s_mov_b64 exec, -1")
    fstamp(5)
    signal(4)
    rawload(range(NE, 4))
    if os.environ.get("MPX"): a(f"s_setprio {os.environ.get('MPX')}")
    def quad(k, ks): return FR + 8 * k + 4 * ks
    def madL(k): return f"v_mad_u32_u16 v{quad(k,1)}, v{IDQ+(k>>1)}, s57, v{KG} op_sel:[{k&1},0,0,0]"
    def rdL(k, ks): return f"ds_read_b128 v[{quad(k,ks)}:{quad(k,ks)+3}], v{quad(k,1)} offset:{64*ks}"
    idq = [f"ds_read_b128 v[{IDQ}:{IDQ+3}], v{VSL}", f"v_add_u32 v{VSL}, {16*ROWB}, v{VSL}"]
    red = [f"v_add_f32 v{R}, v{S0}, v{S1}",
           f"v_add_f32_dpp v{R}, v{R}, v{R} row_shr:1 row_mask:0xf bank_mask:0xf bound_ctrl:0",
           f"v_add_f32_dpp v{R}, v{R}, v{R} row_shr:2 row_mask:0xf bank_mask:0xf bound_ctrl:0",
           f"v_add_f32_dpp v{R}, v{R}, v{R} row_shr:4 row_mask:0xf bank_mask:0xf bound_ctrl:0",
           f"v_add_f32_dpp v{R}, v{R}, v{R} row_shr:8 row_mask:0xf bank_mask:0xf bound_ctrl:0",
           f"v_add_f32_dpp v{R}, v{R}, v{R} row_bcast:15 row_mask:0xa bank_mask:0xf",
           f"v_add_f32_dpp v{R}, v{R}, v{R} row_bcast:31 row_mask:0xc bank_mask:0xf",
           f"v_readlane_b32 s76, v{R}, 63",
           f"v_writelane_b32 v{RES}, s76, m0",
           "s_add_u32 m0, m0, 1"]
    NP = 56
    FL = sorted(WL)
    def F_(i):
        t, j = FL[i]
        tb = TA + 4 * (t % NTA)
        s = S0 if i % 2 == 0 else S1
        return f"v_{'mul' if i < 2 else 'fmac'}_f32 v{s}, v{tb+j}, v{WREG[(t,j)]}"
    def M_(t, ks):
        m1, m2 = AB(t)
        tb = TA + 4 * (t % NTA)
        c = "0" if ks == 0 else f"v[{tb}:{tb+3}]"
        return f"v_mfma_f32_16x16x32_bf16 v[{tb}:{tb+3}], v[{quad(m1,ks)}:{quad(m1,ks)+3}], v[{quad(m2,ks)}:{quad(m2,ks)+3}], {c}"
    def plan(P0, extra3):
        occ = {p: [] for p in range(NP)}; post = {p: [] for p in range(NP)}
        cnt = lambda p: len(occ[p % NP]) + len(post[p % NP]) + (2 if p % NP == NP - 1 else 0)
        late = []
        for k in range(7):
            p = 2 * REL[k] + 1
            if k == 6: p = NP
            ch = [(madL(k), None, None)] + ([(idq[0], "lgkm", None)] if k == 6 else []) + [(rdL(k, 0), "lgkm", None), (rdL(k, 1), "lgkm", ("L", k))]
            if k == 5: ch.append(("W", "lgkm", ("L", 2)))
            if k == 6: ch.append(("W", "lgkm", ("L", 3)))
            post[p % NP] += ch
            if p >= NP: late += [x[0] for x in ch]
        occ[3].append((idq[1], None, None)); late.append(idq[1])
        post[2 * NEED[4] - 1].append(("W", "lgkm", ("L", 6)))
        p = P0 + 1
        for l in red[1:]:
            while cnt(p) >= 2: p += 1
            occ[p].append((l, None, None)); p += 2
        cap = lambda p: 3 if (p % NP) in extra3 else 2
        p = P0; tailF = []
        for i in range(len(FL) + 1):
            t = FL[i][0] if i < len(FL) else 27
            p = max(p, 2 * t + 4)
            while cnt(p) >= cap(p) and p < 2 * NP: p += 1
            if p >= NP + P0 or p >= 2 * (t + NTA): return None
            txt = F_(i) if i < len(FL) else red[0]
            occ[p % NP].append((txt, None, None))
            if p >= NP: tailF.append(txt)
        return occ, post, late, tailF
    best = None
    for P0 in range(4, 10):
        for n3 in range(0, 40):
            for ph in range(3):
                ex = set((ph + (i * NP) // max(n3, 1)) % NP for i in range(n3))
                r = plan(P0, ex)
                if r is None: continue
                cost = sum(max(16, 8 + 4 * (len(r[0][p]) + len(r[1][p]) + (2 if p == NP - 1 else 0))) for p in range(NP))
                if best is None or cost < best[0]: best = (cost, P0, n3, ph, r)
    print("pnn plan", best[:4], file=sys.stderr)
    occ, post, late, tailF = best[4]
    cn = {"lgkm": Cnt()}
    def body(emit, pro=False):
        ws = []
        for p in range(NP):
            t, q = divmod(p, 2)
            if pro and t < 12: continue
            if emit and not pro: a(M_(t, q))
            for it in occ[p] + post[p]:
                if it[0] == "W":
                    n = cn[it[1]].after(it[2]); ws.append(n)
                    if emit: a(f"s_waitcnt {it[1]}cnt({n})")
                else:
                    if pro and not (it[0].startswith("ds_") or it[0].startswith("v_mad") or it[0] == idq[1]): continue
                    if emit: a(it[0])
                    if it[1]: cn[it[1]].issue(it[2])
        return ws
    for l in idq: a(l)
    a("s_mov_b32 m0, 0")
    waitflag(4, 8 if NDA else 4)
    fstamp(1)
    a(f"s_setprio {os.environ.get('MP1', '0')}")
    body(True, True)
    w0 = body(False); w1 = body(False); assert w0 == w1, (w0, w1)
    MID = 15 if idq[0] in late else 14
    MIDADJ = 16 if (idq[0] in late) == (idq[1] in late) else 17
    a(f"s_movk_i32 s58, {os.environ.get('RAWM', '1') if NE == 4 else MID - 16 + 4 * NE}")
    a.label(f"{name}_loop")
    body(True)
    a(f"""
    s_cmp_lt_u32 m0, s58
    s_cbranch_scc1 {name}_loop
    s_cmp_lt_u32 m0, 32
    s_cbranch_scc1 {name}_mid
    """)
    a("s_nop 7")
    for l in tailF: a(l)
    a("s_nop 1")
    for l in red[1:]:
        a(l); a("s_nop 1")
    a(f"""
    v_add_u32 v40, -1, v{LANE}
    v_cmp_gt_u32 vcc, 32, v40
    s_lshl_b32 s74, s72, 2
    s_lshl_b32 s76, s36, 16
    s_add_u32 s74, s74, s76
    s_add_u32 s74, s74, {WS_PNN}
    v_lshlrev_b32 v40, 2, v40
    s_lshl_b32 s76, s36, 6
    v_xor_b32 v40, s76, v40
    s_and_saveexec_b64 s[46:47], vcc
    buffer_store_dword v{RES}, v40, s[32:35], s74 offen
    s_mov_b64 exec, s[46:47]
    """)
    fstamp(2)
    fstamp(3)
    a(f"s_branch {name}_k2")
    RAW2 = int(os.environ.get("RAW2", "0"))
    SPL = NE < 4 and RAW2 > MID - 16 + 4 * NE
    a.label(f"{name}_mida")
    if SPL:
        a(f"s_waitcnt vmcnt(0)\ns_movk_i32 s58, {RAW2}")
        pack(range(NE, 4)); padwrite(range(NE, 4))
        a(f"s_branch {name}_loop")
    a.label(f"{name}_mid")
    a(f"""
    s_cmp_eq_u32 m0, {MID}
    s_cbranch_scc1 {name}_mid2
    s_cmp_eq_u32 m0, {MID - 16 + 4 * NE if SPL else 99}
    s_cbranch_scc1 {name}_mida
    s_movk_i32 s58, {MID}
    s_mul_i32 s45, s36, 12800
    s_sub_u32 s74, s74, s45
    """)
    if NE < 4 and not SPL:
        a("s_waitcnt vmcnt(0)")
        pack(range(NE, 4)); padwrite(range(NE, 4))
    rawload()
    a(f"s_branch {name}_loop")
    a.label(f"{name}_mid2")
    a("s_waitcnt vmcnt(0)")
    a("s_movk_i32 s58, 32")
    pack()
    a(f"v_subrev_u32 v{VSL}, {16*16*ROWB}, v{VSL}")
    padwrite()
    a(f"s_branch {name}_loop")
    a.label(f"{name}_aux")
    a(f"""
    s_setprio {os.environ.get("AUXPRIO", "0")}
    v_mov_b32 v8, v{LANE}
    v_mov_b32 v9, v{L16}
    v_mov_b32 v10, v{VF1}
    v_mov_b32 v11, v{VFA}
    s_mov_b32 s51, s2
    s_mov_b32 s64, 0
    s_mov_b32 s65, 0
    """)
    LANE = 8; L16 = 9; VF1 = 10; VFA = 11; VT = 12; ZERO = 13; VST = 14; VRD = 15; ONE = VF1; VPF = 7
    E = 40; VSO = 30; LB = 31; SELQ = 0; OHQ = 16; OWQ = 23; LU0 = 54; LU1 = 55
    PK = 64; PM = 71; T0 = 72; T1 = 73; BK = 74; FM = 76; OP = 78; OUT = 80; HD = 84; CB = 85; OWN = 86; RK = 87
    CT = 116; T2 = 117; T3 = 118; AL = 119; FA = 120; TA_ = 121; TB_ = 122; G32 = 123; CH = T3
    K0 = 32; K1 = 33; VW = 34; VWR = 36
    DR = 128; PO = 192; RD = 224; RW = 224
    MT = [32 + 4 * q for q in range(8)] + [88 + 4 * q for q in range(7)] + [124]
    VDA = 35
    a(f"""
    v_mov_b32 v{VDA}, v83
    s_lshr_b32 s72, s2, 3
    s_mul_i32 s72, s72, {NDA}
    s_lshr_b32 s72, s72, 5
    """)
    nd = [0]
    def nvm(): return sum(1 for l in a.lines if l.strip().startswith("buffer_"))
    lastd = [None]
    def adma(n, restore="-1"):
        n = min(n, NDA - nd[0])
        if n <= 0: return False
        a("s_mov_b64 exec, s[40:41]")
        for c in range(n):
            a(f"""
            s_mul_i32 s73, s72, {4*1008}
            s_mul_i32 s74, s72, {4*7*256}
            s_add_u32 m0, s73, s43
            s_add_u32 s74, s74, s42
            s_add_u32 s72, s72, 1
            buffer_load_dwordx4 v{VDA}, s[20:23], s74 offen lds
            s_cmp_eq_u32 s72, {NDA}
            s_cselect_b32 s72, 0, s72
            """)
        a(f"s_mov_b64 exec, {restore}")
        nd[0] += n
        lastd[0] = nvm()
        return True
    DB0 = int(os.environ.get("DB0", "30")); DBE = int(os.environ.get("DBE", "1")); DPR = [int(x) for x in os.environ.get("DPR", "2").split(",")]
    DLAG = int(os.environ.get("DLAG", "1"))
    RLMAP = """
    s_lshl_b32 s57, s51, 2
    s_add_u32 s57, s57, s56
    """
    if os.environ.get("RLM", "1") == "1":
        RLMAP = """
        s_lshr_b32 s38, s51, 4
        s_and_b32 s39, s51, 7
        s_sub_u32 s57, 2, s36
        s_lshl_b32 s57, s39, s57
        s_lshl_b32 s37, s36, 5
        s_add_u32 s57, s57, s37
        s_add_u32 s57, s57, s56
        s_mul_i32 s37, s38, 48
        s_add_u32 s37, s37, s57
        s_lshl_b32 s38, s38, 1
        s_lshr_b32 s39, s39, 2
        s_add_u32 s38, s38, s39
        s_add_u32 s38, s38, 768
        s_and_b32 s57, s57, 7
        s_cmp_eq_u32 s57, 2
        s_cselect_b32 s38, s38, 1000
        s_lshl_b32 s39, s36, 1
        s_and_b32 s39, s39, s56
        s_cselect_b32 s57, s38, s37
        """
    a.label(f"{name}_unit")
    a(f"""
    s_bfe_u32 s36, s51, 0x10003
    {RLMAP}
    s_lshr_b32 s37, s51, 4
    s_lshl_b32 s37, s37, 3
    s_and_b32 s38, s51, 7
    s_or_b32 s37, s37, s38
    s_and_b32 s58, s56, 1
    s_lshl_b32 s59, s37, 1
    s_add_u32 s58, s58, s59
    s_lshr_b32 s59, s56, 1
    s_lshl_b32 s60, s36, 1
    s_add_u32 s59, s59, s60
    s_mul_i32 s60, s58, 25600
    s_mul_i32 s61, s59, 96
    s_add_u32 s60, s60, s61
    s_movk_i32 s61, 400
    v_lshrrev_b32 v1, 3, v{LANE}
    v_and_b32 v2, 7, v{LANE}
    v_mul_u32_u24 v0, s61, v1
    v_cmp_gt_u32 s[48:49], 7, v2
    v_lshl_add_u32 v0, v2, 4, v0
    v_and_b32 v5, 15, v{LANE}
    v_and_b32 v6, 48, v{LANE}
    v_lshl_add_u32 v{VPF}, v5, 8, v6
    s_lshl_b32 s44, s56, 15
    s_xor_b32 s38, s50, 1
    s_lshl_b32 s38, s38, 7
    s_add_u32 s44, s44, s38
    """)
    IDXP = int(os.environ.get("IDXP", "30"))
    adma(IDXP)
    a("s_mov_b64 exec, s[48:49]")
    for i in range(8):
        a(f"buffer_load_dwordx4 v[{RW+4*i}:{RW+4*i+3}], v0, s[16:19], s60 offen")
        a(f"s_add_u32 s60, s60, 3200")
    a("s_mov_b64 exec, -1")
    idx0 = nvm() - 8
    adma(DB0 - IDXP)
    a(f"""
    s_lshr_b32 s78, s57, 5
    s_bfe_u32 s79, s57, 0x20003
    s_bfe_u32 s80, s57, 0x20001
    s_and_b32 s81, s57, 1
    s_lshl_b32 s77, s78, 2
    s_lshl_b32 s83, s81, 1
    s_add_u32 s77, s77, s83
    s_lshl_b32 s77, s77, 7
    s_lshl_b32 s83, s79, 5
    s_add_u32 s77, s77, s83
    s_lshl_b32 s83, s80, 3
    s_add_u32 s77, s77, s83
    s_lshl_b32 s77, s77, 10
    s_lshl_b32 s82, s78, 12
    s_lshl_b32 s83, s79, 10
    s_add_u32 s82, s82, s83
    s_lshl_b32 s83, s80, 8
    s_add_u32 s82, s82, s83
    s_lshl_b32 s83, s81, 7
    s_add_u32 s82, s82, s83
    s_mov_b32 s84, {2*SLS}
    v_lshrrev_b32 v3, 2, v{LANE}
    v_and_b32 v4, 3, v{LANE}
    v_mul_lo_u32 v{VST}, v3, s84
    v_lshl_add_u32 v{VST}, v4, 4, v{VST}
    s_lshl_b32 s61, s56, 12
    s_add_u32 s61, s61, {SC}
    v_and_b32 v3, 3, v3
    v_lshlrev_b32 v{VWR}, 6, v{LANE}
    v_lshl_add_u32 v{VWR}, v3, 4, v{VWR}
    v_add_u32 v{VWR}, s61, v{VWR}
    v_xor_b32 v{VWR+1}, 16, v{VWR}
    v_xor_b32 v{VWR+2}, 32, v{VWR}
    v_xor_b32 v{VWR+3}, 48, v{VWR}
    v_and_b32 v3, 48, v{LANE}
    v_xor_b32 v{VRD}, v3, v{L16}
    v_add_u32 v{VRD}, s61, v{VRD}
    s_mov_b32 s84, 0x05040100
    s_mov_b32 s85, 0x07060302
    s_cmp_eq_u32 s64, 0
    s_cbranch_scc1 {name}_nsig0
    s_waitcnt vmcnt(0)
    """)
    a.label(f"{name}_nsig0")
    def dsignal():
        a(f"""
        s_waitcnt vmcnt({nvm() - lastd[0]})
        s_cmp_lg_u32 s64, 0
        s_cbranch_scc1 {name}_nsig
        """)
        signal(4)
        a.label(f"{name}_nsig")
        fstamp(5)
        a(f"s_setprio {os.environ.get('AP0', '1')}")
    dsig = [False]
    if nd[0] == NDA: dsignal(); dsig[0] = True
    if os.environ.get("SKIPWG", ""):
        a(f"""
        s_cmp_eq_u32 s64, 0
        s_cselect_b32 s45, s2, 1000
        s_and_b32 s45, s45, 31
        s_cmp_eq_u32 s45, 5
        s_cselect_b32 s34, 0, s14
        """)
    rl_loads = []
    for h in range(2):
        for j in range(8):
            u = [f"buffer_load_dwordx4 v[{DR+32*h+4*j}:{DR+32*h+4*j+3}], v{L16}, s[28:31], s77 offen offset:{(j&3)*1024}"]
            if j == 3: u.append("s_add_u32 s77, s77, 4096")
            if j == 7 and h == 0: u.append(f"s_add_u32 s77, s77, {128*1024-4096}")
            rl_loads.append(u)
    rl_units = []; pf_early = []
    for o in range(2):
        for i in range(8):
            for ks in range(2):
                d = MT[2 * i + ks] if o == 0 else 128 + 16 * i + 8 + 4 * ks
                u = [f"s_add_u32 s47, s44, {o*131072 + i*4096}"] if ks == 0 else []
                u += [f"buffer_load_dwordx4 v[{d}:{d+3}], v{VPF}, s[20:23], s47 offen offset:{64*ks}"]
                (pf_early if (o == 0 and i >= 3) else rl_units).append(u)
    a(f"""
    s_lshl_b32 s61, s56, 12
    s_add_u32 s61, s61, {SC}
    v_lshlrev_b32 v{OWN}, 2, v{LANE}
    v_add_u32 v{OWN}, s61, v{OWN}
    v_and_b32 v{CB}, 0xffffff80, v{OWN}
    v_and_b32 v{G32}, 32, v{LANE}
    s_add_u32 s61, s61, 256
    v_mul_u32_u24 v{LB}, 56, v{LANE}
    v_add_u32 v{LB}, s61, v{LB}
    v_mul_u32_u24 v{VW}, 56, v1
    v_lshl_add_u32 v{VW}, v2, 3, v{VW}
    v_add_u32 v{VW}, s61, v{VW}
    v_add_u32 v2, s59, v2
    v_subrev_u32 v3, 5, v2
    v_min_u32 v2, v2, v3
    v_mov_b32 v{ZERO}, 0
    v_mul_u32_u24 v2, 0x10001, v2
    v_lshlrev_b32 v2, 12, v2
    v_add_u32 v{K0}, {1024 << 16}, v2
    v_add_u32 v{K1}, {2048 | (3072 << 16)}, v2
    v_mov_b32 v{PM}, 0xf00
    s_lshr_b32 s62, s58, 7
    s_mul_i32 s62, s62, 25
    s_mul_i32 s63, s59, 6
    s_add_u32 s62, s62, s63
    s_lshl_b32 s62, s62, 3
    s_bfe_u32 s63, s58, 0x30004
    s_add_u32 s62, s62, s63
    s_lshl_b32 s62, s62, 13
    s_bfe_u32 s63, s58, 0x30001
    s_lshl_b32 s63, s63, 10
    s_add_u32 s62, s62, s63
    s_and_b32 s63, s58, 1
    s_lshl_b32 s63, s63, 9
    s_add_u32 s62, s62, s63
    s_add_u32 s62, s62, {WS_SCHED}
    v_and_b32 v{VSO}, 31, v{LANE}
    v_lshrrev_b32 v3, 5, v{LANE}
    v_lshlrev_b32 v{VSO}, 4, v{VSO}
    v_lshl_add_u32 v{VSO}, v3, 3, v{VSO}
    s_cmp_eq_u32 s59, 3
    s_cselect_b32 s63, 0xf00, 0
    s_movk_i32 s66, 0x7c
    s_mov_b32 s67, 0x001f001f
    s_mov_b32 s75, 0x06040200
    v_mov_b32 v{LU0}, 0x08040201
    v_mov_b32 v{LU1}, 0x80402010
    s_mov_b64 exec, s[48:49]
    """)
    assert SC % 128 == 0 and 3840 % 128 == 0
    for i in range(8):
        b = RW + 4 * i
        a(f"""
        s_waitcnt vmcnt({nvm() - idx0 - i - 1})
        v_lshl_or_b32 v{b}, v{b+1}, 16, v{b}
        v_lshl_or_b32 v{b+1}, v{b+3}, 16, v{b+2}
        v_add_u32 v{b}, v{K0}, v{b}
        v_add_u32 v{b+1}, v{K1}, v{b+1}
        ds_write_b64 v{VW}, v[{b}:{b+1}] offset:{i*8*56}
        """)
        adma(DBE, "s[48:49]")
    a("s_mov_b64 exec, -1")
    for k in range(7):
        a(f"ds_read_b64 v[{E+2*k}:{E+2*k+1}], v{LB} offset:{8*k}")
    for k in range(7):
        a(f"""
        s_waitcnt lgkmcnt({6-k})
        v_and_b32 v{T0}, s67, v{E+2*k}
        v_and_b32 v{T1}, s67, v{E+2*k+1}
        v_lshl_or_b32 v{T0}, v{T1}, 10, v{T0}
        v_lshlrev_b32_sdwa v{T1}, 5, v{T0} dst_sel:DWORD dst_unused:UNUSED_PAD src0_sel:DWORD src1_sel:WORD_1
        v_or_b32_sdwa v{PK+k}, v{T1}, v{T0} dst_sel:DWORD dst_unused:UNUSED_PAD src0_sel:DWORD src1_sel:WORD_0
        v_perm_b32 v{T0}, v{E+2*k+1}, v{E+2*k}, s75
        v_lshrrev_b32 v{T1}, 3, v{T0}
        v_and_b32 v{T0}, 0x07070707, v{T0}
        v_and_b32 v{SELQ+k}, 0x03030303, v{T1}
        v_perm_b32 v{OHQ+k}, v{LU1}, v{LU0}, v{T0}
        v_add_u32 v{OWQ+k}, v{LU0}, v{OHQ+k}
        """)
    stamp(3)
    def relayout():
        a(f"""
        s_cmp_ge_u32 s57, 800
        s_cbranch_scc1 {name}_norl
        s_waitcnt vmcnt(0)
        """)
        stamp(5)
        def rl_store(u):
            sh, h = divmod(u, 2)
            for r in range(4):
                a(f"s_add_u32 s83, s82, {16*r*2*SLS + sh*SLS + h*64}")
                a(f"buffer_store_dwordx4 v[{RD+16*(u&1)+4*r}:{RD+16*(u&1)+4*r+3}], v{VST}, s[32:35], s83 offen{STF}")
        for u in range(4):
            sh, h = divmod(u, 2)
            for c in range(4):
                col = 4 * sh + c; d = col >> 1
                o = PO + 16 * (u & 1) + 4 * c
                for jj in range(4):
                    a(f"v_perm_b32 v{o+jj}, v{DR+32*h+8*jj+4+d}, v{DR+32*h+8*jj+d}, s{84+(col&1)}")
            if u:
                a("s_waitcnt lgkmcnt(0)")
                rl_store(u - 1)
            for c in range(4):
                o = PO + 16 * (u & 1) + 4 * c
                a(f"ds_write_b128 v{VWR+c}, v[{o}:{o+3}]")
            for r in range(4):
                a(f"ds_read_b128 v[{RD+16*(u&1)+4*r}:{RD+16*(u&1)+4*r+3}], v{VRD} offset:{1024*r}")
        for k in range(7):
            a(f"ds_write_b64 v{LB}, v[{E+2*k}:{E+2*k+1}] offset:{8*k}")
        a("s_waitcnt lgkmcnt(7)")
        rl_store(3)
        a.label(f"{name}_norl")
        a.label(f"{name}_rld")
        a(f"ds_write_b32 v{OWN}, v{ZERO}")
        stamp(4)
    a(f"ds_write_b32 v{OWN}, v{ZERO}")
    if os.environ.get('AP1'): a(f"s_setprio {os.environ.get('AP1', '0')}")
    APZ = int(os.environ.get("APZ", "4"))
    S3Z = int(os.environ.get("S3Z", "10"))
    DSZ = int(os.environ.get("DSZ", "0"))
    def flush_out():
        a(f"v_lshl_or_b32 v{OP}, v{OUT+1}, 16, v{OUT}")
        a(f"v_lshl_or_b32 v{OP+1}, v{OUT+3}, 16, v{OUT+2}")
        a(f"buffer_store_dwordx2 v[{OP}:{OP+1}], v{VSO}, s[32:35], s62 offen{STF}")
        a(f"s_add_u32 s62, s62, 65536")
    RLL = int(os.environ.get("RLL", "1")); RLN = int(os.environ.get("RLN", "4"))
    RL0 = int(os.environ.get("RL0", "12")); RLU = int(os.environ.get("RLU", "4"))
    assert (24 - RL0) * RLU >= 22 and RLL + 16 // RLN <= RL0
    zl = -1
    PRI = os.environ.get("PRI", "1000000000000000000001111111")
    assert len(PRI) == 28
    PF0 = int(os.environ.get("PF0", "5")); PFN = int(os.environ.get("PFN", "2"))
    assert PF0 + 10 // PFN <= RL0 and PFN % 2 == 0 and RLU % 2 == 0
    curp = [os.environ.get('AP0', '1')]
    def setp(p):
        if p != curp[0]: a(f"s_setprio {p}"); curp[0] = p
    for k in range(7):
        a(f"v_lshrrev_b32 v{PM}, 4, v{PM}")
        if k < 5: a(f"v_or_b32 v{PM}, 0xf00, v{PM}")
        elif k == 5: a(f"v_or_b32 v{PM}, s63, v{PM}")
        a(f"v_lshlrev_b32 v{BK}, 22, v{PK+k}")
        if k > 0: a(f"v_lshl_or_b32 v{BK}, v{PK+k-1}, 2, v{BK}")
        a(f"v_lshrrev_b32 v{BK+1}, 10, v{PK+k}")
        if k < 6: a(f"v_lshl_or_b32 v{BK+1}, v{PK+k+1}, 10, v{BK+1}")
        for r in range(4):
            z = 4 * k + r
            if nd[0] == NDA and z == zl + DLAG and not dsig[0]: dsignal(); assert z <= RLL
            if z == RL0:
                setp(os.environ.get("RLP", "1"))
                relayout()
            setp(PRI[z])
            if SCHED == "att":
                a(f"""
                v_and_b32 v{T2}, 15, v{PM}
                v_bcnt_u32_b32 v{T3}, v{T2}, 0
                v_cmp_eq_u32 vcc, {4-r}, v{T3}
                """)
                fill = []
                if z >= RLL: fill += rl_loads[(z - RLL) * RLN:(z - RLL + 1) * RLN]
                if z >= RL0: fill += rl_units[(z - RL0) * RLU:(z - RL0 + 1) * RLU]
                for u in fill:
                    for l in u: a(l)
                if not fill: a("s_nop 1")
                a(f"v_cndmask_b32 v{AL}, v{PM}, v{T2}, vcc")
                a.label(f"{name}_att{z}")
                a(f"""
                v_ffbl_b32 v{CH}, v{AL}
                v_mul_u32_u24 v{T0}, 5, v{CH}
                v_lshrrev_b64 v[{T0}:{T1}], v{T0}, v[{BK}:{BK+1}]
                v_and_or_b32 v{T0}, v{T0}, s66, v{CB}
                ds_add_rtn_u32 v{RK}, v{T0}, v{ONE}
                v_add_u32 v{T3}, -1, v{AL}
                v_and_b32 v{AL}, v{AL}, v{T3}
                v_cmpx_ne_u32 vcc, 0, v{AL}
                s_waitcnt lgkmcnt(0)
                v_cmpx_lt_u32 vcc, 1, v{RK}
                s_cbranch_execnz {name}_att{z}
                s_mov_b64 exec, -1
                ds_write_b32 v{OWN}, v{ZERO}
                """)
                if r == 0 and k > 0: flush_out()
                a(f"""
                v_lshlrev_b32 v{T0}, v{CH}, v{ONE}
                v_lshl_add_u32 v{T1}, v{CH}, 1, v{LB}
                v_xor_b32 v{PM}, v{PM}, v{T0}
                """)
            else:
                pos = [p for p in range(12) if 0 <= k - 1 + (p >> 2) <= 6]
                a(f"""
                v_ffbl_b32 v{HD}, v{PM}
                v_mul_u32_u24 v{T0}, 5, v{HD}
                v_lshrrev_b64 v[{T0}:{T1}], v{T0}, v[{BK}:{BK+1}]
                v_and_or_b32 v{T0}, v{T0}, s66, v{CB}
                ds_add_rtn_u32 v{RK}, v{T0}, v{ONE}
                ds_wrxchg_rtn_b32 v{CT}, v{OWN}, v{ZERO}
                v_and_b32 v{T2}, 15, v{PM}
                v_bcnt_u32_b32 v{T3}, v{T2}, 0
                v_cmp_eq_u32 vcc, {4-r}, v{T3}
                """)
                fill = []
                if z == 1: fill += [["s_lshl_b32 s45, s2, 8", f"s_add_u32 s45, s45, {WS_TABR}", f"buffer_store_dword v{ZERO}, v{ZERO}, s[12:15], s45 offen sc1"]]
                if z >= RLL: fill += rl_loads[(z - RLL) * RLN:(z - RLL + 1) * RLN]
                if z >= PF0: fill += pf_early[(z - PF0) * PFN:(z - PF0 + 1) * PFN]
                if z >= RL0: fill += rl_units[(z - RL0) * RLU:(z - RL0 + 1) * RLU]
                for u in fill:
                    for l in u: a(l)
                if adma(DPR[min(z, len(DPR) - 1)]): zl = z
                elif not fill: a("s_nop 1")
                a(f"""
                v_cndmask_b32 v{AL}, v{PM}, v{T2}, vcc
                s_waitcnt lgkmcnt(0)
                v_cmp_gt_u32 s[68:69], 2, v{CT}
                v_cmp_gt_u32 s[70:71], 2, v{RK}
                """)
                if r == 0 and k > 0: flush_out()
                else: a("s_nop 0")
                a(f"v_lshrrev_b64 v[{FM}:{FM+1}], v{G32}, s[68:69]")
                qs = [q for q in (k + 1, k, k - 1) if 0 <= q <= 6]
                tm = [TA_, TB_, FM + 1]
                for i, q in enumerate(qs): a(f"v_perm_b32 v{tm[i]}, v{FM}, v{FM}, v{SELQ+q}")
                for i, q in enumerate(qs): a(f"v_and_b32 v{tm[i]}, v{tm[i]}, v{OHQ+q}")
                for i, q in enumerate(qs):
                    a(f"v_msad_u8 v{FA}, v{OWQ+q}, v{tm[i]}, {'0' if i == 0 else f'v{FA}'}")
                    if q != k - 1: a(f"v_lshlrev_b32 v{FA}, 4, v{FA}")
                a(f"""
                v_and_b32 v{FA}, v{FA}, v{AL}
                v_cmp_eq_u32 vcc, 0, v{FA}
                v_ffbl_b32 v{CH}, v{FA}
                s_or_b64 vcc, vcc, s[70:71]
                v_cndmask_b32 v{CH}, v{CH}, v{HD}, vcc
                v_lshlrev_b32 v{T0}, v{CH}, v{ONE}
                v_lshl_add_u32 v{T1}, v{CH}, 1, v{LB}
                v_xor_b32 v{PM}, v{PM}, v{T0}
                """)
            off = (k - 1) * 8
            if off < 0:
                a(f"v_subrev_u32 v{T1}, 8, v{T1}"); off = 0
            a(f"ds_read_u16 v{OUT+r}, v{T1} offset:{off}")
        if k == 5:
            a("s_cmp_lg_u32 s59, 3")
            a(f"s_cbranch_scc1 {name}_sdone")
    a.label(f"{name}_sdone")
    a("s_waitcnt lgkmcnt(0)")
    flush_out()
    a.label(f"{name}_udone")
    a("s_setprio 0")
    fstamp(1)
    SKIP = os.environ.get("SKIPWG", "")
    a(f"""
    s_waitcnt vmcnt(0)
    """)
    fstamp(2)
    a(f"""
    s_mov_b64 exec, 1
    ds_add_rtn_u32 v{VT}, v{VFA}, v{VF1} offset:20
    v_mov_b32 v0, s51
    s_waitcnt lgkmcnt(0)
    v_readfirstlane_b32 s45, v{VT}
    s_and_b32 s45, s45, 3
    s_cmp_eq_u32 s45, 3
    s_cbranch_scc0 {name}_wdec
    s_mov_b64 exec, 0xff
    s_lshr_b32 s38, s51, 5
    s_lshl_b32 s39, 1, s51
    {"s_cmp_eq_u32 s34, 0" if SKIP else ""}
    {"s_cselect_b32 s39, 0, s39" if SKIP else ""}
    v_cmp_eq_u32 vcc, s38, v{LANE}
    v_mov_b32 v2, s39
    v_lshlrev_b32 v0, 2, v{LANE}
    v_cndmask_b32 v2, 0, v2, vcc
    v_mov_b32 v1, v2
    buffer_atomic_or v1, v0, s[52:55], 0 offen sc0
    s_lshl_b32 s45, s2, 8
    s_add_u32 s45, s45, {WS_TABR}
    s_waitcnt vmcnt(0)
    v_or_b32 v1, v1, v2
    v_cmp_ne_u32 vcc, -1, v1
    s_cbranch_vccnz {name}_poll
    s_mov_b64 exec, -1
    v_lshlrev_b32 v0, 8, v{LANE}
    s_mov_b32 s38, {WS_TABR}
    """)
    for j in range(4):
        a(f"buffer_store_dword v{VF1}, v0, s[12:15], s38 offen sc1")
        if j < 3: a("s_add_u32 s38, s38, 16384")
    a(f"s_branch {name}_go")
    a.label(f"{name}_poll")
    a(f"""
    buffer_load_dword v1, v{ZERO}, s[12:15], s45 offen sc1
    s_add_u32 s65, s65, 1
    s_waitcnt vmcnt(0)
    v_cmp_eq_u32 vcc, 1, v1
    s_cbranch_vccnz {name}_go
    s_cmp_lt_u32 s65, {int(os.environ.get("PLIM", "200"))}
    s_cbranch_scc1 {name}_poll
    buffer_load_dword v1, v0, s[52:55], 0 offen sc1
    s_waitcnt vmcnt(0)
    v_cmp_ne_u32 vcc, -1, v1
    s_cbranch_vccz {name}_go
    s_ff1_i32_b64 s38, vcc
    s_nop 3
    v_readlane_b32 s39, v1, s38
    s_ff0_i32_b32 s39, s39
    s_lshl_b32 s38, s38, 5
    s_add_u32 s38, s38, s39
    s_andn2_b32 s39, s64, 255
    s_add_u32 s39, s39, 256
    s_or_b32 s38, s38, s39
    s_branch {name}_dec
    """)
    a.label(f"{name}_go")
    a(f"""
    {"buffer_inv sc1" if os.environ.get("LSF", " sc1") == "" else ""}
    s_mov_b32 s38, 0x80000000
    """)
    a.label(f"{name}_dec")
    a(f"""
    v_mov_b32 v1, s38
    s_mov_b64 exec, 1
    ds_write_b32 v{VFA}, v1 offset:24
    """)
    a.label(f"{name}_wdec")
    a(f"""
    s_mov_b64 exec, -1
    ds_read_b32 v{VT}, v{VFA} offset:24
    s_waitcnt lgkmcnt(0)
    v_readfirstlane_b32 s45, v{VT}
    s_cmp_lg_u32 s45, s64
    s_cbranch_scc1 {name}_gotd
    s_sleep 2
    s_branch {name}_wdec
    """)
    a.label(f"{name}_gotd")
    a(f"""
    s_mov_b32 s64, s45
    s_and_b32 s51, s45, 255
    s_mov_b32 s65, 0x10000
    s_mov_b64 s[40:41], 0
    s_bitcmp0_b32 s45, 31
    s_cbranch_scc1 {name}_unit
    """)
    fstamp(3)
    gen2.gen_k2(a, name, fstamp, fstamp_out, MT)
    a.label(f"{name}_end")
    a("s_endpgm")
    return (256, 256)

def gen_k3(a, name):
    kernel_header(a, name)
    a(f"""
    s_cmp_ge_u32 s2, 256
    s_cbranch_scc1 {name}_end
    {"s_memrealtime s[44:45]" if os.environ.get("DK3") else ""}
    s_load_dwordx4 s[4:7], s[0:1], 48
    s_load_dwordx2 s[8:9], s[0:1], 72
    v_and_b32 v1, 15, v0
    v_lshrrev_b32 v2, 4, v0
    v_lshlrev_b32 v3, 4, v1
    v_lshl_add_u32 v3, v2, 19, v3
    s_lshl_b32 s3, s2, 8
    s_add_u32 s20, s3, {WS_PART}
    s_waitcnt lgkmcnt(0)
    """)
    srd(a, 12, 8, WS_BYTES)
    srd(a, 16, 6, B * 2)
    srd(a, 24, 4, 2)
    for i in range(8):
        a(f"buffer_load_dwordx4 v[{8+4*i}:{11+4*i}], v3, s[12:15], s20 offen")
        a(f"s_add_u32 s20, s20, 65536")
    a(f"""
    v_lshlrev_b32 v4, 2, v0
    s_add_u32 s21, s3, {WS_PNN}
    s_add_u32 s22, s21, 65536
    v_mov_b32 v5, 0
    buffer_load_dword v40, v4, s[12:15], s21 offen
    buffer_load_dword v41, v4, s[12:15], s22 offen
    buffer_load_ushort v42, v5, s[24:27], 0 offen
    v_lshlrev_b32 v6, 4, v0
    """)
    for i in range(1, 8):
        a(f"s_waitcnt vmcnt({10-i})")
        for r in range(4): a(f"v_add_f32 v{8+r}, v{8+r}, v{8+4*i+r}")
    a(f"""
    ds_write_b128 v6, v[8:11]
    s_waitcnt lgkmcnt(0)
    s_barrier
    v_cmp_gt_u32 vcc, 64, v0
    s_and_saveexec_b64 s[30:31], vcc
    s_cbranch_execz {name}_end
    """)
    for i in range(16):
        a(f"ds_read_b32 v{12+i}, v4 offset:{i*256}")
    a("s_waitcnt lgkmcnt(0)")
    for st in (8, 4, 2, 1):
        for i in range(st): a(f"v_add_f32 v{12+i}, v{12+i}, v{12+i+st}")
    a(f"""
    s_waitcnt vmcnt(0)
    v_add_f32 v40, v40, v41
    v_cvt_pk_bf16_f32 v12, v12, v40
    v_lshlrev_b32 v42, 16, v42
    v_lshlrev_b32 v13, 16, v12
    v_and_b32 v14, 0xffff0000, v12
    v_add_f32 v13, v13, v42
    v_cvt_pk_bf16_f32 v13, v13, v13
    v_lshlrev_b32 v13, 16, v13
    v_add_f32 v13, v13, v14
    v_cvt_pk_bf16_f32 v13, v13, v13
    v_lshlrev_b32 v4, 1, v0
    s_lshl_b32 s3, s2, 7
    buffer_store_short v13, v4, s[16:19], s3 offen
    """)
    if os.environ.get("DK3"):
        sel = [tuple(int(y) for y in x.split(".")) for x in os.environ["DK3"].split(",")]
        assert len(sel) <= 15
        RT = bool(os.environ.get("RT"))
        a(f"""
        s_cmp_lg_u32 s2, 0
        s_cbranch_scc1 {name}_end
        s_load_dwordx2 s[36:37], s[0:1], 64
        s_waitcnt lgkmcnt(0)
        """)
        srd(a, 36, 36, 256)
        a("s_mov_b64 exec, 0xffff\nv_mov_b32 v1, 0\nv_mov_b32 v2, 0")
        for i, (w, k) in enumerate(sel):
            a(f"s_movk_i32 s40, {w*2048+4*k}\ns_movk_i32 s41, {w*2048}\ns_nop 0\nv_writelane_b32 v1, s40, {i}\nv_writelane_b32 v2, s41, {i}")
        a(f"""
        s_mov_b32 s40, {WS_DBG}
        v_mov_b32 v8, 0
        buffer_load_dword v7, v8, s[12:15], s40 offen
        v_mov_b32 v5, 0
        v_mov_b32 v6, 0
        v_mov_b32 v9, 0
        s_mov_b32 s41, 0
        """)
        a.label(f"{name}_dl")
        a(f"""
        buffer_load_dword v3, v1, s[12:15], s40 offen
        buffer_load_dword v4, v2, s[12:15], s40 offen
        s_waitcnt vmcnt(0)
        v_sub_u32 v3, v3, v{7 if RT else 4}
        v_sub_u32 v4, v4, v7
        v_add_u32 v5, v5, v3
        v_min_i32 v6, v6, v4
        v_max_i32 v9, v9, v3
        s_add_u32 s40, s40, 16384
        s_add_u32 s41, s41, 1
        s_cmp_lt_u32 s41, 256
        s_cbranch_scc1 {name}_dl
        v_ashrrev_i32 v5, 8, v5
        """)
        if os.environ.get("DMAX"): a("v_mov_b32 v5, v9")
        if RT:
            a(f"""
            v_sub_u32 v5, v5, v6
            v_sub_u32 v7, s44, v7
            v_sub_u32 v7, v7, v6
            v_cmp_eq_u32 vcc, 15, v0
            v_cndmask_b32 v5, v5, v7, vcc
            """)
        a(f"""
        v_lshlrev_b32 v4, 2, v0
        buffer_store_dword v5, v4, s[36:39], 0 offen
        """)
    a.label(f"{name}_end")
    a("s_endpgm")
    return 48

if __name__ == "__main__":
    out = sys.argv[1]
    which = sys.argv[2] if len(sys.argv) > 2 else "all"
    if len(sys.argv) > 3 and sys.argv[3] == "stamp": STAMP1 = True
    k1 = ("k1_kernel", gen_k1, 256, 512, K1_LDS)
    k3 = ("k3_kernel", gen_k3, 256, 256, 4096)
    s = build({"all": [k1, k3], "k1": [k1]}[which])
    open(out, "w").write(s)
```

```python
import sys, os, re
from gen import Asm, kernel_header, kernel_desc, srd, build, f32bits, WS_BYTES
import gen2h as gen2
from gen2h import SLS, WS_W1R, WS_SCHED, WS_PART, WS_PNN, WS_TABR, WS_DBG, Cnt

B, F, D, V, H = 16384, 100, 128, 1000, 512
gen2.PMAP = True
gen2.PSF = os.environ.get("PSF", " sc1")
K1_LDS = 163840
ROWB = 144
SC = 144256
FLAG = 163712
R1 = 1001 * 144
assert R1 + 19 * 1024 <= FLAG and SC + 16384 <= FLAG and SC >= R1
NDA = 36
WS_TB2 = 0x0E80000
K1ABL = set(os.environ.get("K1ABL", "").split(","))
STAMP1 = False
SCHED = os.environ.get("SCHED", "mask")
STF = os.environ.get("STF", " sc1")

TILES = []
for c in range(4):
    for r in range(c + 1): TILES.append((r, c))
for r in range(4):
    for c in range(4, 7): TILES.append((r, c))
TILES += [(4, 4), (4, 5), (4, 6), (5, 5), (5, 6), (6, 6)]
NEED = {}; REL = {}
for t, (r, c) in enumerate(TILES):
    for k in (r, c):
        NEED.setdefault(k, t); REL[k] = t


def gen_k1(a, name):
    kernel_header(a, name)
    LANE = 255; L16 = 254; VF1 = 253; VFA = 252; VT = 251
    uid = [0]
    XST = os.environ.get("XST", "")
    def stamp(k):
        if XST and LANE == 8 and k in (3, 4, 5): fstamp({3: 4, 5: 6, 4: 7}[k], True)
    def fstamp(k, x=False):
        if not STAMP1: return
        if XST and not x and k in (4, 6, 7): return
        a("s_memrealtime s[94:95]" if os.environ.get("RT") else "s_memtime s[94:95]")
        a("s_waitcnt lgkmcnt(0)")
        a(f"s_mov_b32 s{86+k if k < 8 else 89+k}, s94")
    def fstamp_out(vl16):
        if not STAMP1: return
        a(f"""
        s_barrier
        s_lshl_b32 s94, s2, 3
        s_add_u32 s94, s94, s3
        s_lshl_b32 s94, s94, 11
        s_add_u32 s94, s94, {WS_DBG}
        v_mov_b32 v1, 0
        """)
        for k in range(12):
            a(f"v_mov_b32 v0, s{86+k if k < 8 else 89+k}")
            a(f"buffer_store_dword v0, v1, s[12:15], s94 offen offset:{4*k}")
    def signal(j):
        a(f"""
        s_mov_b64 exec, 1
        ds_add_u32 v{VFA}, v{VF1} offset:{4*j}
        s_mov_b64 exec, -1
        """)
    def waitflag(j, n):
        uid[0] += 1
        a.label(f"{name}_wf{uid[0]}")
        a(f"""
        ds_read_b32 v{VT}, v{VFA} offset:{4*j}
        s_waitcnt lgkmcnt(0)
        v_readfirstlane_b32 s45, v{VT}
        s_cmp_lt_u32 s45, {n}
        s_cbranch_scc1 {name}_wf{uid[0]}
        """)
    a(f"""
    s_cmp_ge_u32 s2, 256
    s_cbranch_scc1 {name}_end
    s_load_dwordx8 s[4:11], s[0:1], 0
    s_load_dwordx2 s[12:13], s[0:1], 72
    s_load_dwordx2 s[52:53], s[0:1], 64
    v_lshrrev_b32 v1, 6, v0
    v_and_b32 v{LANE}, 63, v0
    s_bfe_u32 s36, s2, 0x10003
    v_readfirstlane_b32 s3, v1
    s_lshr_b32 s37, s2, 4
    s_lshl_b32 s37, s37, 3
    s_and_b32 s38, s2, 7
    s_or_b32 s37, s37, s38
    v_lshlrev_b32 v{L16}, 4, v{LANE}
    v_mov_b32 v{VFA}, {FLAG}
    v_mov_b32 v{VF1}, 1
    v_mov_b32 v40, 0
    v_cmp_gt_u32 vcc, 8, v0
    v_lshl_add_u32 v41, v0, 2, v{VFA}
    s_and_saveexec_b64 s[46:47], vcc
    ds_write_b32 v41, v40
    s_mov_b64 exec, s[46:47]
    v_mul_u32_u24 v6, 57, v{LANE}
    v_lshrrev_b32 v6, 9, v6
    v_mul_u32_u24 v5, 9, v6
    v_sub_u32 v5, v{LANE}, v5
    v_cmp_gt_u32 s[40:41], 8, v5
    v_lshlrev_b32 v5, 4, v5
    v_lshl_add_u32 v83, v6, 8, v5
    s_and_b32 s56, s3, 3
    s_mul_i32 s42, s56, {7*256}
    s_mul_i32 s43, s56, 1008
    s_lshl_b32 s38, s36, 7
    s_add_u32 s42, s42, s38
    s_bitset0_b32 s41, 31
    s_waitcnt lgkmcnt(0)
    """)
    srd(a, 16, 4, B * F * 4)
    srd(a, 20, 6, V * D * 2)
    srd(a, 24, 8, F * F * 2)
    srd(a, 28, 10, F * D * H * 2)
    srd(a, 32, 12, WS_BYTES)
    srd(a, 12, 12, WS_BYTES)
    srd(a, 52, 52, 256)
    a("s_mov_b32 s50, s36")
    fstamp(0)
    a(f"""
    s_cmp_ge_u32 s3, 4
    s_cbranch_scc1 {name}_aux
    """)
    NDB = int(os.environ.get("NDB", "4"))
    NTA = int(os.environ.get("NTA", "7"))
    NSB = 6 - NDB
    W = 0
    FR = 96
    GF = FR + 8 * (NSB + 2 * NDB)
    TA = GF + 8
    IX = TA + 4 * NTA
    GI = IX + 24
    ACC = GI + 1; R0 = ACC + 4; R1_ = R0 + 1; RES = R0 + 2; KG = R0 + 3; VIO = R0 + 4; VGO = R0 + 5
    assert VGO < VT, VGO
    PX = TA; PY = TA + 1; PY2 = TA + 2; GX = TA + 4; I0 = TA + 8; TM = TA + 16; YR = FR
    T21 = [(k1, k2) for k1 in range(6) for k2 in range(k1, 6)]
    WL = [(t, j) for t in T21 for j in range(4)] + [(("G", k), 0) for k in range(6)] + [(("G", "G"), 0)]
    WREG = {x: W + i for i, x in enumerate(WL)}
    GGW = WREG[(("G", "G"), 0)]
    a(f"""
    s_setprio {os.environ.get("MP0", "3")}
    s_lshl_b32 s38, s3, 10
    s_add_u32 m0, s38, {R1}
    v_and_b32 v5, 15, v{LANE}
    """)
    for c in range(5):
        if c == 4: a(f"s_cmp_eq_u32 s3, 3\ns_cselect_b32 s45, 1024, 0\ns_sub_u32 m0, m0, s45\ns_sub_u32 s38, s38, s45")
        a(f"buffer_load_dwordx4 v{L16}, s[24:27], s38 offen lds")
        if c < 4:
            a(f"s_add_u32 m0, m0, 4096")
            a(f"s_add_u32 s38, s38, 4096")
    a(f"""
    v_lshrrev_b32 v6, 4, v{LANE}
    v_and_b32 v8, 3, v{LANE}
    v_bfe_u32 v7, v{LANE}, 2, 2
    v_mul_u32_u24 v{VIO}, 24, v5
    s_movk_i32 s45, 400
    v_lshlrev_b32 v{VGO}, 2, v7
    v_mad_u32_u24 v{VGO}, v8, s45, v{VGO}
    s_lshl_b32 s72, s37, 7
    s_lshl_b32 s73, s3, 5
    s_add_u32 s72, s72, s73
    s_mul_i32 s74, s72, 400
    s_add_u32 s58, s74, {8*1600}
    s_mov_b32 s18, s58
    v_mul_u32_u24 v{PX}, 12, v5
    s_movk_i32 s45, 200
    v_mad_u32_u24 v{PY}, v6, s45, v{PX}
    v_lshlrev_b32 v{PY2}, 1, v7
    v_mad_u32_u24 v{PY2}, v6, s45, v{PY2}
    v_mov_b32 v{GGW}, 0
    s_movk_i32 s45, {96*200}
    """)
    def ixl(slot, off):
        return [f"buffer_load_dwordx4 v[{IX+6*slot}:{IX+6*slot+3}], v{VIO}, s[16:19], s74 offen offset:{off}",
                f"buffer_load_dwordx2 v[{IX+6*slot+4}:{IX+6*slot+5}], v{VIO}, s[16:19], s74 offen offset:{off+16}"]
    def gl(off): return f"buffer_load_dword v{GI}, v{VGO}, s[16:19], s74 offen offset:{off+384}"
    a(f"buffer_load_dwordx3 v[{GX}:{GX+2}], v{PY}, s[24:27], s45 offen")
    a(f"buffer_load_short_d16_hi v{GGW}, v{PY2}, s[24:27], s45 offen offset:192")
    a(f"buffer_load_dwordx4 v[{I0}:{I0+3}], v{VIO}, s[16:19], s74 offen")
    a(f"buffer_load_dwordx2 v[{I0+4}:{I0+5}], v{VIO}, s[16:19], s74 offen offset:16")
    a(f"buffer_load_dword v{I0+6}, v{VGO}, s[16:19], s74 offen offset:384")
    for l in ixl(1, 400) + ixl(2, 800) + ixl(3, 1200) + ixl(0, 1600) + [gl(1600)]: a(l)
    a(f"""
    v_add_u32 v{PX}, {R1}, v{PX}
    s_movk_i32 s45, 4800
    v_mad_u32_u24 v{PX}, v6, s45, v{PX}
    v_mul_u32_u24 v{PY2}, 1200, v5
    v_add_u32 v{PY2}, {R1}, v{PY2}
    v_mad_u32_u24 v{PY}, v6, 48, v{PY2}
    v_lshl_add_u32 v{PY2}, v6, 1, v{PY2}
    v_and_b32 v{KG}, 48, v{LANE}
    s_movk_i32 s57, {ROWB}
    v_cmp_eq_u32 s[60:61], 0, v8
    v_cmp_eq_u32 s[62:63], 1, v8
    v_cmp_eq_u32 s[66:67], 2, v8
    v_cmp_eq_u32 s[68:69], 3, v8
    s_mov_b32 s70, 0x00010001
    s_mov_b32 s71, 0x00010001
    """)
    for i in range(90): a(f"v_mov_b32 v{W+i}, 0")
    if os.environ.get("MPW"): a(f"s_setprio {os.environ.get('MPW')}")
    fstamp(8)
    a(f"s_waitcnt vmcnt(14)")
    fstamp(9)
    a("s_barrier")
    if os.environ.get("MAINONLY"): fstamp(4)
    yq = {}
    for k2 in range(1, 6):
        for q in sorted(set((6 * j + k1) // 4 for j in range(4) for k1 in range(k2))):
            yq[(k2, q)] = YR + 2 * len(yq)
            a(f"ds_read_b64 v[{yq[(k2,q)]}:{yq[(k2,q)]+1}], v{PY} offset:{200*k2+8*q}")
    assert YR + 2 * len(yq) <= TA
    for k in range(6): a(f"ds_read_u16_d16_hi v{WREG[(('G', k), 0)]}, v{PY2} offset:{200*k+192}")
    for dg in (0, 1):
        for ((k1, k2), j) in WL[:84]:
            if (k1 == k2) == dg: a(f"ds_read_u16_d16_hi v{WREG[((k1,k2),j)]}, v{PX} offset:{((6*j+k1)*100+k2)*2}")
    def unp(d, r, hi): return f"v_and_b32 v{d}, 0xffff0000, v{r}" if hi else f"v_lshlrev_b32 v{d}, 16, v{r}"
    a("s_waitcnt vmcnt(9) lgkmcnt(15)")
    n_ = 0
    for ((k1, k2), j) in WL[:90]:
        if k1 == k2: continue
        if k1 == "G": u = unp(TM + (n_ & 1), GX + k2 // 2, k2 & 1)
        else:
            e = 6 * j + k1
            u = unp(TM + (n_ & 1), yq[(k2, e // 4)] + (e % 4) // 2, e & 1)
        a(u); a(f"v_add_f32 v{WREG[((k1,k2),j)]}, v{WREG[((k1,k2),j)]}, v{TM+(n_&1)}"); n_ += 1
    def mad(r): return f"v_mad_u32_u24 v{r}, v{r}, s57, v{KG}"
    for k in range(7): a(mad(I0 + k))
    for s_, m_ in ((3, 68), (2, 66), (1, 62), (0, 60)):
        a(f"v_cndmask_b32 v{GGW+s_}, 0, v{GGW}, s[{m_}:{m_+1}]")
    a("s_waitcnt lgkmcnt(0)")
    fstamp(5)
    if os.environ.get("MPX"): a(f"s_setprio {os.environ.get('MPX')}")
    def fbuf(k, s):
        if k == "G": return GF
        return FR + 8 * k if k < NSB else FR + 8 * (NSB + 2 * (k - NSB) + (s & 1))
    def rr(k, s):
        b = fbuf(k, s); ad = GI if k == "G" else IX + 6 * (s & 3) + k
        return [f"ds_read_b128 v[{b+4*ks}:{b+4*ks+3}], v{ad} offset:{64*ks}" for ks in range(2)]
    def order(s):
        o = []
        for k in range(NSB):
            o += [(k, k2) for k2 in range(k, 6)]
            o.insert(len(o) - 3, ("G", k))
        rest = [(k1, k2) for k1 in range(NSB, 6) for k2 in range(k1, 6)]
        gs = [("G", k) for k in range(NSB, 6)]
        if s == 3:
            GP = [int(x) for x in os.environ.get("GP3", "2,6,11,15").split(",")]
            for g, p in zip(gs, GP): o.insert(p, g)
            o += rest
        else:
            step = len(rest) // len(gs)
            for i, g in enumerate(gs): rest.insert(i * (step + 1) + 1, g)
            o += rest
        if s == 1: o.insert(int(os.environ.get("GGP", "20")), ("G", "G"))
        return o
    TL = [(s, t) for s in range(4) for t in order(s)]
    NT = len(TL); NP = 2 * NT
    assert NT == 109 and len(set(TL)) == 109
    S0 = [min(i for i, x in enumerate(TL) if x[0] == s) * 2 for s in range(4)]
    nb_ = next(b for b in range(NTA) if (NT - b * (NTA - 1)) % NTA == 0)
    na_ = (NT - nb_ * (NTA - 1)) // NTA
    TAB = []
    for i in range(na_ + nb_):
        short = (i + 1) * nb_ // (na_ + nb_) > i * nb_ // (na_ + nb_)
        TAB += list(range(NTA - 1 if short else NTA))
    assert len(TAB) == NT
    def tab(T): return TA + 4 * TAB[T % NT]
    def M_(p):
        T, ks = divmod(p, 2); s, (k1, k2) = TL[T]
        tb = tab(T); A = fbuf(k1, s) + 4 * ks; B_ = fbuf(k2, s) + 4 * ks
        c = "0" if ks == 0 else f"v[{tb}:{tb+3}]"
        return f"v_mfma_f32_16x16x32_bf16 v[{tb}:{tb+3}], v[{A}:{A+3}], v[{B_}:{B_+3}], {c}"
    DBP = [int(x) for x in os.environ.get("DBP", "3,8,19,31").split(",")]
    G_ = 4
    excl = {}; lastop = {}; ops = []
    def op(text, e, l, g, deps=(), w=1, kind="v"):
        d = dict(text=text, e=e, l=l, g=g, deps=list(deps), w=w, kind=kind, at=None, n=len(ops)); ops.append(d); return d
    prevf = None; cnd = None; firstf = {}; lastf = {}; k32 = {}
    for g in range(G_):
        o0 = g * NP
        for s in range(4):
            s1 = s + 1
            rel = {}
            for T, (ss, t) in enumerate(TL):
                if ss == s or t == ("G", "G"):
                    for k in t: rel[k] = max(rel.get(k, 0), 2 * T + 1)
            pl = {k: rel[k] for k in range(NSB)}
            if s == 3: pl["G"] = max(2 * T + 1 for T, (ss, t) in enumerate(TL) if "G" in t)
            for k in range(NSB, 6): pl[k] = S0[s] + DBP[k - NSB]
            used = []
            for k in sorted(pl, key=lambda k_: (pl[k_], str(k_))):
                p = pl[k]
                while p in used: p += 1
                used.append(p)
                excl[o0 + p] = [(x, "lgkm", None) for x in rr(k, s1)]
                op(mad(GI if k == "G" else IX + 6 * (s1 & 3) + k), o0 + S0[s], o0 + p - 1, g, kind="mad")
            p = max(used) + int(os.environ.get("LLD", "2"))
            ll = ixl(s1 & 3, (s + 5) * 400) + ([gl(3200)] if s == 3 else [])
            excl[o0 + p] = [(x, "vm", ("X", g * 4 + s + 5)) for x in ll]
            if s == 3: lastll = p
            lastop[o0 + S0[s] - 1] = [("W", g * 4 + s + 1)]
        inited = set()
        for T, (s, t) in enumerate(TL):
            nxt = min(T2 for T2 in range(T + 1, T + 3 * NTA) if tab(T2) == tab(T))
            if t == ("G", "G"): fl = [(j, j, GGW + j) for j in range(4)]
            elif t[0] == "G": fl = [(s, s, WREG[(t, 0)])]
            else: fl = [(s, j, WREG[(t, j)]) for j in range(4)]
            for (sa, j, wr) in fl:
                deps = [(prevf, 0)] if prevf else []
                if sa not in inited and (g - 1, sa >> 1) in k32: deps.append((k32[(g - 1, sa >> 1)], 0))
                f = op(f"v_{'fmac' if sa in inited else 'mul'}_f32 v{ACC+sa}, v{tab(T)+j}, v{wr}", o0 + 2 * T + 4, o0 + 2 * nxt - 1, g, deps, kind="f")
                f["T"] = o0 // 2 + T
                inited.add(sa); lastf[(g, sa)] = f; prevf = f
        RD0 = o0 + NP + int(os.environ.get("RDL", "30"))
        x = op(f"v_permlane32_swap_b32 v{ACC}, v{ACC+1}", 0, o0 + NP - 8, g, [(lastf[(g, 0)], 2), (lastf[(g, 1)], 2)] + ([(cnd, 0)] if cnd else []), w=2)
        a0 = op(f"v_add_f32 v{R0}, v{ACC}, v{ACC+1}", 0, o0 + NP - 6, g, [(x, 1)]); k32[(g, 0)] = a0
        x = op(f"v_permlane32_swap_b32 v{ACC+2}, v{ACC+3}", 0, RD0, g, [(lastf[(g, 2)], 2), (lastf[(g, 3)], 2)], w=2)
        a1 = op(f"v_add_f32 v{R1_}, v{ACC+2}, v{ACC+3}", 0, RD0 + 2, g, [(x, 1)]); k32[(g, 1)] = a1
        x = op(f"v_permlane16_swap_b32 v{R0}, v{R1_}", 0, RD0 + 4, g, [(a0, 2), (a1, 2)], w=2)
        x = op(f"v_add_f32 v{R0}, v{R0}, v{R1_}", 0, RD0 + 6, g, [(x, 1)])
        for i, r in enumerate((8, 4, 2, 1)):
            x = op(f"v_add_f32_dpp v{R0}, v{R0}, v{R0} row_ror:{r} row_mask:0xf bank_mask:0xf", 0, RD0 + 8 + 2 * i, g, [(x, 2)])
        cnd = op(f"v_cndmask_b32 v{RES}, v{RES}, v{R0}, s[70:71]", 0, RD0 + 16, g, [(x, 1)])
        op("s_lshl_b64 s[70:71], s[70:71], 1", 0, RD0 + 18, g, [(cnd, 1)], kind="s")
        x = op("s_add_u32 s74, s74, 1600", o0 + lastll + 1, o0 + NP - 8, g, kind="c")
        op("s_cmp_lt_u32 s74, s58", 0, o0 + NP - 6, g, [(x, 1)], kind="c")
    for _ in range(3):
        for o in reversed(ops):
            while o["l"] in excl: o["l"] -= 1
            for d, dist in o["deps"]: d["l"] = min(d["l"], o["l"] - dist)
    sched = {}
    for p in range(G_ * NP):
        if p in excl:
            sched[p] = []
            late = [o for o in ops if o["at"] is None and o["l"] <= p and o["g"] < G_ - 1]
            assert not late, (p, [(o["text"], o["e"], o["l"], [(d["text"], d["at"], d["l"]) for d, _ in o["deps"]]) for o in late])
            continue
        cur = []; wsum = len(lastop.get(p, [])) + (2 if p % NP == NP - 1 else 0)
        def eff_l(o):
            l = o["l"]
            while l in excl: l -= 1
            return l
        while True:
            cand = [o for o in ops if o["at"] is None and o["e"] <= p and all(d["at"] is not None and p - d["at"] >= dist for d, dist in o["deps"])]
            if not cand: break
            c = min(cand, key=lambda o: (eff_l(o), o["n"]))
            if wsum >= 2 and eff_l(c) > p: break
            c["at"] = p; cur.append(c); wsum += c["w"]
        sched[p] = cur
        late = [o for o in ops if o["at"] is None and eff_l(o) <= p and o["g"] < G_ - 1]
        assert not late, (p, [(o["text"], o["e"], o["l"], [(d["text"], d["at"], d["l"]) for d, _ in o["deps"]]) for o in late])
    txt = lambda g: [[o["text"] for o in sched[g * NP + p]] for p in range(NP)]
    assert txt(1) == txt(2), "not periodic"
    wt = lambda p: sum(o["w"] for o in sched[p]) + len(excl.get(p, [])) + len(lastop.get(p, [])) + (7 if p % NP == NP - 1 else 0)
    cost = sum(max(16, 8 + 4 * wt(2 * NP + p)) for p in range(NP))
    print("pnn plan: group", cost, "per sample", cost / 4, "empties", sum(max(0, 2 - wt(2 * NP + p)) for p in range(NP)), "VT margin", VT - VGO, file=sys.stderr)
    vmc = Cnt()
    def body(g, emit):
        ws = []
        for p in range(g * NP, (g + 1) * NP):
            if emit: a(M_(p % NP))
            for (x, kind, tag) in excl.get(p, []):
                if emit: a(x)
                if kind == "vm": vmc.issue(tag)
            for o in sched[p]:
                if emit: a(o["text"])
            for (_, smp) in lastop.get(p, []):
                n = vmc.after(("X", smp)); ws.append(n)
                if emit: a(f"s_waitcnt vmcnt({n}) lgkmcnt(0)")
        return ws
    body(0, False); w1 = body(1, False)
    a("s_barrier")
    fstamp(1)
    a(f"s_setprio {os.environ.get('MP1', '0')}")
    if os.environ.get("AUXONLY"): a(f"s_waitcnt vmcnt(0) lgkmcnt(0)\ns_branch {name}_k2")
    for i_, k in enumerate(list(range(6)) + ["G"]):
        for l in rr(k, 0): a(re.sub(r", v\d+ offset", f", v{I0+i_} offset", l))
    a(f"s_waitcnt vmcnt({w1[-1]}) lgkmcnt(0)")
    assert w1[-1] == 7, w1
    a.label(f"{name}_loop")
    l0 = len(a.lines)
    w2 = body(2, True); assert w1 == w2
    bl = [l.strip() for l in a.lines[l0:]] + ["s_cbranch"]
    def regs(tok):
        m = re.match(r"v\[(\d+):(\d+)\]", tok)
        if m: return set(range(int(m.group(1)), int(m.group(2)) + 1))
        m = re.match(r"v(\d+)$", tok)
        return {int(m.group(1))} if m else set()
    seq = [(l.split()[0], [regs(t.strip(",")) for t in l.split()[1:]]) for l in bl + bl]
    for i, (o_, rs) in enumerate(seq):
        if not o_.startswith("v_"): continue
        wr = rs[0] | (rs[1] if "swap" in o_ else set())
        for d in range(1, 9):
            if i + d >= len(seq): break
            o2, r2 = seq[i + d]
            if not o2.startswith("v_"): continue
            use = set().union(*r2)
            if "mfma" in o_ and "mfma" not in o2: assert not (wr & use), (i, d, bl[i % len(bl)])
            if "mfma" not in o_ and d <= 2 and ("dpp" in o2 or "swap" in o2 or "mfma" in o2): assert not (wr & use), (i, d, bl[i % len(bl)])
    a(f"s_cbranch_scc1 {name}_loop")
    a("s_nop 7")
    for p in range(3 * NP, 4 * NP):
        for o in sched[p]:
            if o["g"] == 2 and o["kind"] in ("f", "v"):
                if o["kind"] == "v": a("s_nop 1")
                a(o["text"])
    a(f"""
    v_and_b32 v40, 15, v{LANE}
    v_add_u32 v40, -1, v40
    v_cmp_gt_u32 vcc, 8, v40
    s_lshl_b32 s74, s72, 2
    s_lshl_b32 s76, s36, 16
    s_add_u32 s74, s74, s76
    s_add_u32 s74, s74, {WS_PNN}
    v_lshlrev_b32 v40, 4, v40
    v_lshrrev_b32 v41, 5, v{LANE}
    v_lshl_add_u32 v40, v41, 2, v40
    v_bfe_u32 v41, v{LANE}, 4, 1
    v_lshl_add_u32 v40, v41, 3, v40
    s_waitcnt vmcnt(0)
    s_and_saveexec_b64 s[46:47], vcc
    buffer_store_dword v{RES}, v40, s[32:35], s74 offen
    s_mov_b64 exec, s[46:47]
    """)
    fstamp(2)
    fstamp(3)
    if os.environ.get("MAINONLY"):
        a.label(f"{name}_x8")
        fstamp_out(L16)
        a("s_endpgm")
    a(f"s_branch {name}_k2")
    a.label(f"{name}_aux")
    a(f"""
    s_setprio {os.environ.get("AUXPRIO", "0")}
    v_mov_b32 v8, v{LANE}
    v_mov_b32 v9, v{L16}
    v_mov_b32 v10, v{VF1}
    v_mov_b32 v11, v{VFA}
    s_mov_b32 s51, s2
    s_mov_b32 s64, 0
    s_mov_b32 s65, 0
    """)
    LANE = 8; L16 = 9; VF1 = 10; VFA = 11; VT = 12; ZERO = 13; VST = 14; VRD = 15; ONE = VF1; VPF = 7
    E = 40; VSO = 30; LB = 31; SELQ = 0; OHQ = 16; OWQ = 23; LU0 = 54; LU1 = 55
    PK = 64; PM = 71; T0 = 72; T1 = 73; BK = 74; FM = 76; OP = 78; OUT = 80; HD = 84; CB = 85; OWN = 86; RK = 87
    CT = 116; T2 = 117; T3 = 118; AL = 119; FA = 120; TA_ = 121; TB_ = 122; G32 = 123; CH = T3
    K0 = 32; K1 = 33; VW = 34; VWR = 36
    DR = 128; PO = 88; RD = 192; RW = 224; TP = 104
    MT = [32 + 4 * q for q in range(8)] + [88 + 4 * q for q in range(7)] + [124]
    VDA = 35
    a(f"""
    v_mov_b32 v{VDA}, v83
    s_lshr_b32 s72, s2, 3
    s_mul_i32 s72, s72, {NDA}
    s_lshr_b32 s72, s72, 5
    s_lshl_b32 s75, s36, 7
    s_add_u32 s75, s75, {142*7*256}
    s_mov_b32 s76, {142*1008}
    """)
    NB1 = int(os.environ.get("NB1", "8"))
    nd = [0]
    DWIN = int(os.environ.get("DWIN", "99"))
    def nvm(): return sum(1 for l in a.lines if l.strip().startswith("buffer_"))
    lastd = [None]
    def adma(n, restore="-1"):
        n = min(n, NDA - nd[0])
        if n <= 0: return False
        uid[0] += 1
        a(f"s_cmp_lg_u32 s64, 0\ns_cbranch_scc1 {name}_nd{uid[0]}")
        a("s_mov_b64 exec, s[40:41]")
        for c in range(n):
            a(f"""
            s_mul_i32 s73, s72, {4*1008}
            s_mul_i32 s74, s72, {4*7*256}
            s_add_u32 s73, s73, s43
            s_add_u32 s74, s74, s42
            s_min_u32 m0, s73, s76
            s_min_u32 s74, s74, s75
            s_add_u32 s72, s72, 1
            {"s_barrier" if nd[0] + c == NB1 else ""}
            {f"s_waitcnt vmcnt({DWIN-1})" if nd[0] + c >= DWIN else ""}
            buffer_load_dwordx4 v{VDA}, s[20:23], s74 offen lds
            s_cmp_eq_u32 s72, {NDA}
            s_cselect_b32 s72, 0, s72
            """)
        a(f"s_mov_b64 exec, {restore}")
        a.label(f"{name}_nd{uid[0]}")
        nd[0] += n
        lastd[0] = nvm()
        return True
    RLMAP = """
    s_lshl_b32 s57, s51, 2
    s_add_u32 s57, s57, s56
    """
    if os.environ.get("RLM", "1") == "1":
        RLMAP = """
        s_lshr_b32 s38, s51, 4
        s_and_b32 s39, s51, 7
        s_sub_u32 s57, 2, s36
        s_lshl_b32 s57, s39, s57
        s_lshl_b32 s37, s36, 5
        s_add_u32 s57, s57, s37
        s_add_u32 s57, s57, s56
        s_mul_i32 s37, s38, 48
        s_add_u32 s37, s37, s57
        s_lshl_b32 s38, s38, 1
        s_lshr_b32 s39, s39, 2
        s_add_u32 s38, s38, s39
        s_add_u32 s38, s38, 768
        s_and_b32 s57, s57, 7
        s_cmp_eq_u32 s57, 2
        s_cselect_b32 s38, s38, 1000
        s_lshl_b32 s39, s36, 1
        s_and_b32 s39, s39, s56
        s_cselect_b32 s57, s38, s37
        """
    a.label(f"{name}_unit")
    a(f"""
    s_bfe_u32 s36, s51, 0x10003
    {RLMAP}
    s_lshr_b32 s37, s51, 4
    s_lshl_b32 s37, s37, 3
    s_and_b32 s38, s51, 7
    s_or_b32 s37, s37, s38
    s_and_b32 s58, s56, 1
    s_lshl_b32 s59, s37, 1
    s_add_u32 s58, s58, s59
    s_lshr_b32 s59, s56, 1
    s_lshl_b32 s60, s36, 1
    s_add_u32 s59, s59, s60
    s_mul_i32 s60, s58, 25600
    s_mul_i32 s61, s59, 96
    s_add_u32 s60, s60, s61
    s_movk_i32 s61, 400
    v_lshrrev_b32 v1, 3, v{LANE}
    v_and_b32 v2, 7, v{LANE}
    v_mul_u32_u24 v0, s61, v1
    v_cmp_gt_u32 s[48:49], 7, v2
    v_lshl_add_u32 v0, v2, 4, v0
    v_and_b32 v5, 15, v{LANE}
    v_and_b32 v6, 48, v{LANE}
    v_lshl_add_u32 v{VPF}, v5, 8, v6
    s_lshr_b32 s44, s37, 1
    s_lshl_b32 s44, s44, 12
    s_lshl_b32 s38, s36, 1
    s_and_b32 s39, s37, 1
    s_add_u32 s38, s38, s39
    s_lshl_b32 s38, s38, 6
    s_add_u32 s44, s44, s38
    s_lshl_b32 s47, s36, 7
    s_add_u32 s47, s47, s37
    s_lshl_b32 s47, s47, 10
    s_add_u32 s47, s47, {WS_TB2}
    s_lshl_b32 s38, s56, 4
    s_lshl_b64 s[4:5], 0xffff, s38
    """)
    IDXP = int(os.environ.get("IDXP", "12"))
    adma(IDXP)
    a(f"""
    s_lshr_b32 s78, s57, 5
    s_bfe_u32 s79, s57, 0x20003
    s_bfe_u32 s80, s57, 0x20001
    s_and_b32 s81, s57, 1
    s_lshl_b32 s77, s78, 2
    s_lshl_b32 s83, s81, 1
    s_add_u32 s77, s77, s83
    s_lshl_b32 s77, s77, 7
    s_lshl_b32 s83, s79, 5
    s_add_u32 s77, s77, s83
    s_lshl_b32 s83, s80, 3
    s_add_u32 s77, s77, s83
    s_lshl_b32 s77, s77, 10
    s_lshl_b32 s82, s78, 12
    s_lshl_b32 s83, s79, 10
    s_add_u32 s82, s82, s83
    s_lshl_b32 s83, s80, 8
    s_add_u32 s82, s82, s83
    s_lshl_b32 s83, s81, 7
    s_add_u32 s82, s82, s83
    s_mov_b32 s84, {2*SLS}
    v_lshrrev_b32 v3, 2, v{LANE}
    v_and_b32 v4, 3, v{LANE}
    v_mul_lo_u32 v{VST}, v3, s84
    v_lshl_add_u32 v{VST}, v4, 4, v{VST}
    s_cmp_ge_u32 s57, 800
    s_cselect_b32 s83, 0x40000000, 0
    v_or_b32 v{VST}, s83, v{VST}
    s_lshl_b32 s61, s56, 12
    s_add_u32 s61, s61, {SC}
    v_and_b32 v3, 3, v3
    v_lshlrev_b32 v{VWR}, 6, v{LANE}
    v_lshl_add_u32 v{VWR}, v3, 4, v{VWR}
    v_add_u32 v{VWR}, s61, v{VWR}
    v_xor_b32 v{VWR+1}, 16, v{VWR}
    v_xor_b32 v{VWR+2}, 32, v{VWR}
    v_xor_b32 v{VWR+3}, 48, v{VWR}
    v_and_b32 v3, 48, v{LANE}
    v_xor_b32 v{VRD}, v3, v{L16}
    v_add_u32 v{VRD}, s61, v{VRD}
    s_mov_b32 s84, 0x05040100
    s_mov_b32 s85, 0x07060302
    """)
    adma(NDA - IDXP)
    fstamp(8)
    a(f"""
    s_cmp_lg_u32 s64, 0
    s_cbranch_scc1 {name}_nsig
    s_waitcnt vmcnt(0)
    s_barrier
    """)
    a.label(f"{name}_nsig")
    fstamp(5)
    a("s_mov_b64 exec, s[48:49]")
    for i in range(8):
        a(f"buffer_load_dwordx4 v[{RW+4*i}:{RW+4*i+3}], v0, s[16:19], s60 offen")
        a(f"s_add_u32 s60, s60, 3200")
    a("s_mov_b64 exec, -1")
    idx0 = nvm() - 8
    if os.environ.get("MAINONLY"): a(f"s_waitcnt vmcnt(0)\ns_branch {name}_x8")
    a(f"s_setprio {os.environ.get('AP0', '1')}")
    if os.environ.get("SKIPWG", ""):
        a(f"""
        s_cmp_eq_u32 s64, 0
        s_cselect_b32 s45, s2, 1000
        s_and_b32 s45, s45, 31
        s_cmp_eq_u32 s45, 5
        s_cselect_b32 s34, 0, s14
        """)
    rl_loads = []
    for h in range(2):
        for j in range(8):
            u = [f"buffer_load_dwordx4 v[{DR+32*h+4*j}:{DR+32*h+4*j+3}], v{L16}, s[28:31], s77 offen offset:{(j&3)*1024}"]
            if j == 3: u.append("s_add_u32 s77, s77, 4096")
            if j == 7 and h == 0: u.append(f"s_add_u32 s77, s77, {128*1024-4096}")
            rl_loads.append(u)
    rl_st = []
    for u in range(4):
        sh, h = divmod(u, 2)
        for r in range(4):
            rl_st.append([f"s_add_u32 s83, s82, {16*r*2*SLS + sh*SLS + h*64}",
                          f"buffer_store_dwordx4 v[{RD+16*u+4*r}:{RD+16*u+4*r+3}], v{VST}, s[32:35], s83 offen{STF}"])
    rl_st = [rl_st[8 * sh + 4 * h + r] for sh in range(2) for r in range(4) for h in range(2)]
    a(f"""
    s_lshl_b32 s61, s56, 12
    s_add_u32 s61, s61, {SC}
    v_lshlrev_b32 v{OWN}, 2, v{LANE}
    v_add_u32 v{OWN}, s61, v{OWN}
    v_and_b32 v{CB}, 0xffffff80, v{OWN}
    v_and_b32 v{G32}, 32, v{LANE}
    s_add_u32 s61, s61, 256
    v_mul_u32_u24 v{LB}, 56, v{LANE}
    v_add_u32 v{LB}, s61, v{LB}
    v_mul_u32_u24 v{VW}, 56, v1
    v_lshl_add_u32 v{VW}, v2, 3, v{VW}
    v_add_u32 v{VW}, s61, v{VW}
    v_add_u32 v2, s59, v2
    v_subrev_u32 v3, 5, v2
    v_min_u32 v2, v2, v3
    v_mov_b32 v{ZERO}, 0
    v_mul_u32_u24 v2, 0x10001, v2
    v_lshlrev_b32 v2, 12, v2
    v_add_u32 v{K0}, {1024 << 16}, v2
    v_add_u32 v{K1}, {2048 | (3072 << 16)}, v2
    v_mov_b32 v{PM}, 0xf00
    s_lshr_b32 s62, s58, 7
    s_mul_i32 s62, s62, 25
    s_mul_i32 s63, s59, 6
    s_add_u32 s62, s62, s63
    s_lshl_b32 s62, s62, 3
    s_bfe_u32 s63, s58, 0x30004
    s_add_u32 s62, s62, s63
    s_lshl_b32 s62, s62, 13
    s_bfe_u32 s63, s58, 0x30001
    s_lshl_b32 s63, s63, 10
    s_add_u32 s62, s62, s63
    s_and_b32 s63, s58, 1
    s_lshl_b32 s63, s63, 9
    s_add_u32 s62, s62, s63
    s_add_u32 s62, s62, {WS_SCHED}
    v_and_b32 v{VSO}, 31, v{LANE}
    v_lshrrev_b32 v3, 5, v{LANE}
    v_lshlrev_b32 v{VSO}, 4, v{VSO}
    v_lshl_add_u32 v{VSO}, v3, 3, v{VSO}
    s_cmp_eq_u32 s59, 3
    s_cselect_b32 s63, 0xf00, 0
    s_movk_i32 s66, 0x7c
    s_mov_b32 s67, 0x001f001f
    s_mov_b32 s75, 0x06040200
    v_mov_b32 v{LU0}, 0x08040201
    v_mov_b32 v{LU1}, 0x80402010
    s_mov_b64 exec, s[48:49]
    """)
    assert SC % 128 == 0 and 3840 % 128 == 0
    for i in range(8):
        b = RW + 4 * i
        a(f"""
        s_waitcnt vmcnt({nvm() - idx0 - i - 1})
        v_lshl_or_b32 v{b}, v{b+1}, 16, v{b}
        v_lshl_or_b32 v{b+1}, v{b+3}, 16, v{b+2}
        v_add_u32 v{b}, v{K0}, v{b}
        v_add_u32 v{b+1}, v{K1}, v{b+1}
        ds_write_b64 v{VW}, v[{b}:{b+1}] offset:{i*8*56}
        """)
    a("s_mov_b64 exec, -1")
    for k in range(7):
        a(f"ds_read_b64 v[{E+2*k}:{E+2*k+1}], v{LB} offset:{8*k}")
    for k in range(7):
        a(f"""
        s_waitcnt lgkmcnt({6-k})
        v_and_b32 v{T0}, s67, v{E+2*k}
        v_and_b32 v{T1}, s67, v{E+2*k+1}
        v_lshl_or_b32 v{T0}, v{T1}, 10, v{T0}
        v_lshlrev_b32_sdwa v{T1}, 5, v{T0} dst_sel:DWORD dst_unused:UNUSED_PAD src0_sel:DWORD src1_sel:WORD_1
        v_or_b32_sdwa v{PK+k}, v{T1}, v{T0} dst_sel:DWORD dst_unused:UNUSED_PAD src0_sel:DWORD src1_sel:WORD_0
        v_perm_b32 v{T0}, v{E+2*k+1}, v{E+2*k}, s75
        v_lshrrev_b32 v{T1}, 3, v{T0}
        v_and_b32 v{T0}, 0x07070707, v{T0}
        v_and_b32 v{SELQ+k}, 0x03030303, v{T1}
        v_perm_b32 v{OHQ+k}, v{LU1}, v{LU0}, v{T0}
        v_add_u32 v{OWQ+k}, v{LU0}, v{OHQ+k}
        """)
    fstamp(11)
    def relayout():
        a(f"""
        s_cmp_ge_u32 s57, 800
        s_cbranch_scc1 {name}_norl
        s_waitcnt vmcnt(0)
        """)
        stamp(5)
        for u in range(4):
            sh, h = divmod(u, 2)
            for c in range(4):
                col = 4 * sh + c; d = col >> 1
                o = PO + 4 * c
                for jj in range(4):
                    a(f"v_perm_b32 v{o+jj}, v{DR+32*h+8*jj+4+d}, v{DR+32*h+8*jj+d}, s{84+(col&1)}")
            for c in range(4):
                o = PO + 4 * c
                a(f"ds_write_b128 v{VWR+c}, v[{o}:{o+3}]")
            for r in range(4):
                a(f"ds_read_b128 v[{RD+16*u+4*r}:{RD+16*u+4*r+3}], v{VRD} offset:{1024*r}")
            if u < 3: a("s_waitcnt lgkmcnt(4)")
        for k in range(7):
            a(f"ds_write_b64 v{LB}, v[{E+2*k}:{E+2*k+1}] offset:{8*k}")
        a("s_waitcnt lgkmcnt(7)")
        a.label(f"{name}_norl")
        a.label(f"{name}_rld")
        a(f"ds_write_b32 v{OWN}, v{ZERO}")
        stamp(4)
    a(f"ds_write_b32 v{OWN}, v{ZERO}")
    if os.environ.get('AP1'): a(f"s_setprio {os.environ.get('AP1', '0')}")
    APZ = int(os.environ.get("APZ", "4"))
    S3Z = int(os.environ.get("S3Z", "10"))
    DSZ = int(os.environ.get("DSZ", "0"))
    def flush_out():
        a(f"v_lshl_or_b32 v{OP}, v{OUT+1}, 16, v{OUT}")
        a(f"v_lshl_or_b32 v{OP+1}, v{OUT+3}, 16, v{OUT+2}")
        a(f"buffer_store_dwordx2 v[{OP}:{OP+1}], v{VSO}, s[32:35], s62 offen{STF}")
        a(f"s_add_u32 s62, s62, 65536")
    RLL = int(os.environ.get("RLL", "1")); RLN = int(os.environ.get("RLN", "2"))
    RL0 = int(os.environ.get("RL0", "12")); RLU = int(os.environ.get("RLU", "2"))
    assert (24 - RL0) * RLU >= 16 and RLL + 16 // RLN <= RL0
    PRI = os.environ.get("PRI", "1000000000000000000001111111")
    assert len(PRI) == 28
    TPZ = int(os.environ.get("TPZ", "5")); tp0 = [None]
    assert TPZ < RL0
    curp = [os.environ.get('AP0', '1')]
    def setp(p):
        if p != curp[0]: a(f"s_setprio {p}"); curp[0] = p
    mark0 = len(a.lines)
    for k in range(7):
        a(f"v_lshrrev_b32 v{PM}, 4, v{PM}")
        if k < 5: a(f"v_or_b32 v{PM}, 0xf00, v{PM}")
        elif k == 5: a(f"v_or_b32 v{PM}, s63, v{PM}")
        a(f"v_lshlrev_b32 v{BK}, 22, v{PK+k}")
        if k > 0: a(f"v_lshl_or_b32 v{BK}, v{PK+k-1}, 2, v{BK}")
        a(f"v_lshrrev_b32 v{BK+1}, 10, v{PK+k}")
        if k < 6: a(f"v_lshl_or_b32 v{BK+1}, v{PK+k+1}, 10, v{BK+1}")
        for r in range(4):
            z = 4 * k + r
            if z == RL0:
                setp(os.environ.get("RLP", "1"))
                if not os.environ.get("IST"): fstamp(9)
                relayout()
                if not os.environ.get("IST"): fstamp(10)
            setp(PRI[z])
            if True:
                pos = [p for p in range(12) if 0 <= k - 1 + (p >> 2) <= 6]
                a(f"""
                v_ffbl_b32 v{HD}, v{PM}
                v_mul_u32_u24 v{T0}, 5, v{HD}
                v_lshrrev_b64 v[{T0}:{T1}], v{T0}, v[{BK}:{BK+1}]
                v_and_or_b32 v{T0}, v{T0}, s66, v{CB}
                ds_add_rtn_u32 v{RK}, v{T0}, v{ONE}
                ds_wrxchg_rtn_b32 v{CT}, v{OWN}, v{ZERO}
                v_and_b32 v{T2}, 15, v{PM}
                v_bcnt_u32_b32 v{T3}, v{T2}, 0
                v_cmp_eq_u32 vcc, {4-r}, v{T3}
                """)
                fill = []
                if z == 1: fill += [["s_lshl_b32 s45, s2, 8", f"s_add_u32 s45, s45, {WS_TABR}", f"buffer_store_dword v{ZERO}, v{ZERO}, s[12:15], s45 offen sc1"]]
                if z >= RLL: fill += rl_loads[(z - RLL) * RLN:(z - RLL + 1) * RLN]
                if z >= RL0: fill += rl_st[(z - RL0) * RLU:(z - RL0 + 1) * RLU]
                if z == 0:
                    fill += [["s_mov_b64 exec, s[4:5]", f"buffer_load_dwordx4 v[{TP}:{TP+3}], v{VPF}, s[20:23], s44 offen", "s_mov_b64 exec, -1"]]
                    tp0[0] = nvm() + 1
                if z == TPZ:
                    fill = [[f"s_waitcnt vmcnt({nvm() - tp0[0]})", "s_mov_b64 exec, s[4:5]", f"buffer_store_dwordx4 v[{TP}:{TP+3}], v{L16}, s[32:35], s47 offen{STF}", "s_mov_b64 exec, -1"]] + fill
                for u in fill:
                    for l in u: a(l)
                if not fill: a("s_nop 1")
                a(f"""
                v_cndmask_b32 v{AL}, v{PM}, v{T2}, vcc
                s_waitcnt lgkmcnt(0)
                v_cmp_gt_u32 s[68:69], 2, v{CT}
                v_cmp_gt_u32 s[70:71], 2, v{RK}
                """)
                if r == 0 and k > 0: flush_out()
                else: a("s_nop 0")
                a(f"v_lshrrev_b64 v[{FM}:{FM+1}], v{G32}, s[68:69]")
                qs = [q for q in (k + 1, k, k - 1) if 0 <= q <= 6]
                tm = [TA_, TB_, FM + 1]
                for i, q in enumerate(qs): a(f"v_perm_b32 v{tm[i]}, v{FM}, v{FM}, v{SELQ+q}")
                for i, q in enumerate(qs): a(f"v_and_b32 v{tm[i]}, v{tm[i]}, v{OHQ+q}")
                for i, q in enumerate(qs):
                    a(f"v_msad_u8 v{FA}, v{OWQ+q}, v{tm[i]}, {'0' if i == 0 else f'v{FA}'}")
                    if q != k - 1: a(f"v_lshlrev_b32 v{FA}, 4, v{FA}")
                a(f"""
                v_and_b32 v{FA}, v{FA}, v{AL}
                v_cmp_eq_u32 vcc, 0, v{FA}
                v_ffbl_b32 v{CH}, v{FA}
                s_or_b64 vcc, vcc, s[70:71]
                v_cndmask_b32 v{CH}, v{CH}, v{HD}, vcc
                v_lshlrev_b32 v{T0}, v{CH}, v{ONE}
                v_lshl_add_u32 v{T1}, v{CH}, 1, v{LB}
                v_xor_b32 v{PM}, v{PM}, v{T0}
                """)
            off = (k - 1) * 8
            if off < 0:
                a(f"v_subrev_u32 v{T1}, 8, v{T1}"); off = 0
            a(f"ds_read_u16 v{OUT+r}, v{T1} offset:{off}")
        if k == 5:
            a("s_cmp_lg_u32 s59, 3")
            a(f"s_cbranch_scc1 {name}_sdone")
    a.label(f"{name}_sdone")
    a("s_waitcnt lgkmcnt(0)")
    flush_out()
    if os.environ.get("NOSCH"):
        keep = []
        for l in a.lines[mark0:]:
            t = l.strip()
            if t.startswith("v_") or t.startswith("ds_") or t.startswith("buffer_store_dwordx"): continue
            keep.append(l)
        a.lines[mark0:] = keep
    a.label(f"{name}_udone")
    a("s_setprio 0")
    fstamp(1)
    SKIP = os.environ.get("SKIPWG", "")
    a(f"""
    s_waitcnt vmcnt(0)
    """)
    fstamp(2)
    a(f"""
    s_mov_b64 exec, 1
    ds_add_rtn_u32 v{VT}, v{VFA}, v{VF1} offset:20
    v_mov_b32 v0, s51
    s_waitcnt lgkmcnt(0)
    v_readfirstlane_b32 s45, v{VT}
    s_and_b32 s45, s45, 3
    s_cmp_eq_u32 s45, 3
    s_cbranch_scc0 {name}_wdec
    s_mov_b64 exec, 0xff
    s_lshr_b32 s38, s51, 5
    s_lshl_b32 s39, 1, s51
    {"s_cmp_eq_u32 s34, 0" if SKIP else ""}
    {"s_cselect_b32 s39, 0, s39" if SKIP else ""}
    v_cmp_eq_u32 vcc, s38, v{LANE}
    v_mov_b32 v2, s39
    v_lshlrev_b32 v0, 2, v{LANE}
    v_cndmask_b32 v2, 0, v2, vcc
    v_mov_b32 v1, v2
    buffer_atomic_or v1, v0, s[52:55], 0 offen sc0
    s_lshl_b32 s45, s2, 8
    s_add_u32 s45, s45, {WS_TABR}
    s_waitcnt vmcnt(0)
    v_or_b32 v1, v1, v2
    v_cmp_ne_u32 vcc, -1, v1
    s_cbranch_vccnz {name}_poll
    s_mov_b64 exec, -1
    v_lshlrev_b32 v0, 8, v{LANE}
    s_mov_b32 s38, {WS_TABR}
    """)
    for j in range(4):
        a(f"buffer_store_dword v{VF1}, v0, s[12:15], s38 offen sc1")
        if j < 3: a("s_add_u32 s38, s38, 16384")
    a(f"s_branch {name}_go")
    a.label(f"{name}_poll")
    a(f"""
    buffer_load_dword v1, v{ZERO}, s[12:15], s45 offen sc1
    s_add_u32 s65, s65, 1
    s_waitcnt vmcnt(0)
    v_cmp_eq_u32 vcc, 1, v1
    s_cbranch_vccnz {name}_go
    s_cmp_lt_u32 s65, {int(os.environ.get("PLIM", "200"))}
    s_cbranch_scc1 {name}_poll
    buffer_load_dword v1, v0, s[52:55], 0 offen sc1
    s_waitcnt vmcnt(0)
    v_cmp_ne_u32 vcc, -1, v1
    s_cbranch_vccz {name}_go
    s_ff1_i32_b64 s38, vcc
    s_nop 3
    v_readlane_b32 s39, v1, s38
    s_ff0_i32_b32 s39, s39
    s_lshl_b32 s38, s38, 5
    s_add_u32 s38, s38, s39
    s_andn2_b32 s39, s64, 255
    s_add_u32 s39, s39, 256
    s_or_b32 s38, s38, s39
    s_branch {name}_dec
    """)
    a.label(f"{name}_go")
    a(f"""
    {"buffer_inv sc1" if os.environ.get("LSF", " sc1") == "" else ""}
    s_mov_b32 s38, 0x80000000
    """)
    a.label(f"{name}_dec")
    a(f"""
    v_mov_b32 v1, s38
    s_mov_b64 exec, 1
    ds_write_b32 v{VFA}, v1 offset:24
    """)
    a.label(f"{name}_wdec")
    a(f"""
    s_mov_b64 exec, -1
    ds_read_b32 v{VT}, v{VFA} offset:24
    s_waitcnt lgkmcnt(0)
    v_readfirstlane_b32 s45, v{VT}
    s_cmp_lg_u32 s45, s64
    s_cbranch_scc1 {name}_gotd
    s_sleep 2
    s_branch {name}_wdec
    """)
    a.label(f"{name}_gotd")
    a(f"""
    s_mov_b32 s64, s45
    s_and_b32 s51, s45, 255
    s_mov_b32 s65, 0x10000
    s_bitcmp0_b32 s45, 31
    s_cbranch_scc1 {name}_unit
    s_xor_b32 s44, s50, 1
    s_lshl_b32 s44, s44, 3
    s_add_u32 s44, s44, s56
    s_lshl_b32 s44, s44, 14
    s_add_u32 s44, s44, {WS_TB2}
    s_add_u32 s47, s44, 65536
    """)
    fstamp(3)
    TWIN = int(os.environ.get("TWIN", "4"))
    for q in range(32):
        o, qq = divmod(q, 16)
        d = MT[qq] if o == 0 else 128 + 16 * (qq >> 1) + 8 + 4 * (qq & 1)
        if q >= TWIN: a(f"s_waitcnt vmcnt({TWIN-1})")
        a(f"buffer_load_dwordx4 v[{d}:{d+3}], v{L16}, s[12:15], s{47 if o else 44} offen offset:{(q&3)*1024} sc1")
        if q & 3 == 3: a(f"s_add_u32 s{47 if o else 44}, s{47 if o else 44}, 4096")
    gen2.gen_k2(a, name, fstamp, fstamp_out, MT)
    a.label(f"{name}_end")
    a("s_endpgm")
    return (256, 256)

def gen_k3(a, name):
    kernel_header(a, name)
    a(f"""
    s_cmp_ge_u32 s2, 256
    s_cbranch_scc1 {name}_end
    {"s_memrealtime s[44:45]" if os.environ.get("DK3") else ""}
    s_load_dwordx4 s[4:7], s[0:1], 48
    s_load_dwordx2 s[8:9], s[0:1], 72
    v_and_b32 v1, 15, v0
    v_lshrrev_b32 v2, 4, v0
    v_lshlrev_b32 v3, 4, v1
    v_lshl_add_u32 v3, v2, 19, v3
    s_lshl_b32 s3, s2, 8
    s_add_u32 s20, s3, {WS_PART}
    s_waitcnt lgkmcnt(0)
    """)
    srd(a, 12, 8, WS_BYTES)
    srd(a, 16, 6, B * 2)
    srd(a, 24, 4, 2)
    for i in range(8):
        a(f"buffer_load_dwordx4 v[{8+4*i}:{11+4*i}], v3, s[12:15], s20 offen")
        a(f"s_add_u32 s20, s20, 65536")
    a(f"""
    v_lshlrev_b32 v4, 2, v0
    s_add_u32 s21, s3, {WS_PNN}
    s_add_u32 s22, s21, 65536
    v_mov_b32 v5, 0
    buffer_load_dword v40, v4, s[12:15], s21 offen
    buffer_load_dword v41, v4, s[12:15], s22 offen
    buffer_load_ushort v42, v5, s[24:27], 0 offen
    v_lshlrev_b32 v6, 4, v0
    """)
    for i in range(1, 8):
        a(f"s_waitcnt vmcnt({10-i})")
        for r in range(4): a(f"v_add_f32 v{8+r}, v{8+r}, v{8+4*i+r}")
    a(f"""
    ds_write_b128 v6, v[8:11]
    s_waitcnt lgkmcnt(0)
    s_barrier
    v_cmp_gt_u32 vcc, 64, v0
    s_and_saveexec_b64 s[30:31], vcc
    s_cbranch_execz {name}_end
    """)
    for i in range(16):
        a(f"ds_read_b32 v{12+i}, v4 offset:{i*256}")
    a("s_waitcnt lgkmcnt(0)")
    for st in (8, 4, 2, 1):
        for i in range(st): a(f"v_add_f32 v{12+i}, v{12+i}, v{12+i+st}")
    a(f"""
    s_waitcnt vmcnt(0)
    v_add_f32 v40, v40, v41
    v_cvt_pk_bf16_f32 v12, v12, v40
    v_lshlrev_b32 v42, 16, v42
    v_lshlrev_b32 v13, 16, v12
    v_and_b32 v14, 0xffff0000, v12
    v_add_f32 v13, v13, v42
    v_cvt_pk_bf16_f32 v13, v13, v13
    v_lshlrev_b32 v13, 16, v13
    v_add_f32 v13, v13, v14
    v_cvt_pk_bf16_f32 v13, v13, v13
    v_lshlrev_b32 v4, 1, v0
    s_lshl_b32 s3, s2, 7
    buffer_store_short v13, v4, s[16:19], s3 offen
    """)
    if os.environ.get("DK3"):
        sel = [tuple(int(y) for y in x.split(".")) for x in os.environ["DK3"].split(",")]
        assert len(sel) <= 15
        RT = bool(os.environ.get("RT"))
        a(f"""
        s_cmp_lg_u32 s2, 0
        s_cbranch_scc1 {name}_end
        s_load_dwordx2 s[36:37], s[0:1], 64
        s_waitcnt lgkmcnt(0)
        """)
        srd(a, 36, 36, 256)
        a("s_mov_b64 exec, 0xffff\nv_mov_b32 v1, 0\nv_mov_b32 v2, 0")
        for i, (w, k) in enumerate(sel):
            a(f"s_movk_i32 s40, {w*2048+4*k}\ns_movk_i32 s41, {w*2048}\ns_nop 0\nv_writelane_b32 v1, s40, {i}\nv_writelane_b32 v2, s41, {i}")
        a(f"""
        s_mov_b32 s40, {WS_DBG}
        v_mov_b32 v8, 0
        buffer_load_dword v7, v8, s[12:15], s40 offen
        v_mov_b32 v5, 0
        v_mov_b32 v6, 0
        v_mov_b32 v9, 0
        s_mov_b32 s41, 0
        """)
        a.label(f"{name}_dl")
        a(f"""
        buffer_load_dword v3, v1, s[12:15], s40 offen
        buffer_load_dword v4, v2, s[12:15], s40 offen
        s_waitcnt vmcnt(0)
        v_sub_u32 v3, v3, v{7 if RT else 4}
        v_sub_u32 v4, v4, v7
        v_add_u32 v5, v5, v3
        v_min_i32 v6, v6, v4
        v_max_i32 v9, v9, v3
        s_add_u32 s40, s40, 16384
        s_add_u32 s41, s41, 1
        s_cmp_lt_u32 s41, 256
        s_cbranch_scc1 {name}_dl
        v_ashrrev_i32 v5, 8, v5
        """)
        if os.environ.get("DMAX"): a("v_mov_b32 v5, v9")
        if RT:
            a(f"""
            v_sub_u32 v5, v5, v6
            v_sub_u32 v7, s44, v7
            v_sub_u32 v7, v7, v6
            v_cmp_eq_u32 vcc, 15, v0
            v_cndmask_b32 v5, v5, v7, vcc
            """)
        a(f"""
        v_lshlrev_b32 v4, 2, v0
        buffer_store_dword v5, v4, s[36:39], 0 offen
        """)
        if os.environ.get("SPIN"):
            sp = int(os.environ["SPIN"])
            a(f"""
            s_nop 4
            v_readlane_b32 s40, v5, {max(sp, 0)}
            s_lshl_b32 s40, s40, 2
            {"s_mov_b32 s40, 0" if sp < 0 else ""}
            s_min_u32 s40, s40, 40000
            s_add_u32 s40, s40, 20000
            """)
            a.label(f"{name}_sp")
            a(f"""
            s_memrealtime s[42:43]
            s_waitcnt lgkmcnt(0)
            s_sub_u32 s42, s42, s44
            s_cmp_lt_u32 s42, s40
            s_cbranch_scc1 {name}_sp
            """)
    a.label(f"{name}_end")
    a("s_endpgm")
    return 48

if __name__ == "__main__":
    out = sys.argv[1]
    which = sys.argv[2] if len(sys.argv) > 2 else "all"
    if len(sys.argv) > 3 and sys.argv[3] == "stamp": STAMP1 = True
    k1 = ("k1_kernel", gen_k1, 256, 512, K1_LDS)
    k3 = ("k3_kernel", gen_k3, 256, 256, 4096)
    s = build({"all": [k1, k3], "k1": [k1]}[which])
    open(out, "w").write(s)
```

```python
import sys, struct
from gen import Asm, kernel_header, kernel_desc, srd, build, f32bits, WS_BYTES

B, F, D, V, H = 16384, 100, 128, 1000, 512
SLS = 102656
WS_W1R = 0
WS_SCHED = 0x1000000
WS_PART = 0x1400000
WS_PNN = 0x1C00000
K2_LDS = 131072

STAMP = False
PMAP = False
import os
PSF = os.environ.get('PSF', '')
import os
PFD = int(os.environ.get('PFD', '2'))
PFSEL = 's_bfe_u32 s18, s33, 0x40002' if os.environ.get('PFFIX', '1') == '1' else 's_and_b32 s18, s33, 15'
K2PRIO = os.environ.get('K2PRIO', '')
import os
ABL = set(os.environ.get('ABL', '').split(','))
NOPF = os.environ.get('PF', '0') == '0'
WS_DBG = 0x3000000
WS_TABR = 0x0E00000
K2_LDS = 163840

SHF = int(os.environ.get("SHF", "2"))
PRE = SHF >= 8
class Cnt:
    def __init__(self): self.n = 0; self.tag = {}
    def issue(self, tag=None):
        self.n += 1
        if tag is not None: self.tag[tag] = self.n
    def after(self, tag):
        return self.n - self.tag[tag] if tag in self.tag else None

def gen_final(a, cnts, R, fstamp):
    ACC, SEL, IDX, VL16, VPW, TMP, DAT, SCH, NS, LSF = (R[k] for k in "ACC SEL IDX VL16 VPW TMP DAT SCH NS LSF".split())
    PK = os.environ.get("PK", "1") == "1"
    EPT = [int(x) for x in os.environ.get("EPT", "8,0").split(",")]
    TGAP = int(os.environ.get("TGAP", "3"))
    LAG = int(os.environ.get("LAG", "3"))
    S0 = 10 if SHF else 11
    BLK = int(os.environ.get("BLK", "0")); BULK = BLK > 0
    C2, C1, ONE, W01, W23 = 128, 130, 132, 134, 136
    EB = 140
    NB = 6
    if SHF:
        a(f"""
        s_add_u32 s40, s20, 61440
        s_add_u32 s41, s20, 65536
        s_add_u32 s44, s20, {61440+65536}
        s_add_u32 s45, s20, 131072
        """)
        SB = [[None, 20], [40, 41], [44, 45]]
    else:
        a(f"""
        s_add_u32 s18, s20, 4096
        s_add_u32 s40, s20, 65536
        s_add_u32 s41, s20, {65536+4096}
        """)
        SB = [[20, 18], [40, 41]]
    a(f"""
    s_lshl_b32 s28, s38, 16
    s_and_b32 s29, s38, 0xffff0000
    s_lshl_b32 s30, s39, 16
    s_and_b32 s31, s39, 0xffff0000
    s_lshl_b32 s35, s33, 16
    s_lshl_b32 s42, s34, 15
    s_add_u32 s35, s35, s42
    s_lshl_b32 s42, s3, 12
    s_add_u32 s35, s35, s42
    s_add_u32 s35, s35, {WS_PART}
    """)
    setup = [f"v_mov_b32 v{C2}, {f32bits(-0.1029432397):#x}", f"v_mov_b32 v{C2+1}, {f32bits(-0.1029432397):#x}",
             f"v_mov_b32 v{C1}, {f32bits(-2.302208198):#x}", f"v_mov_b32 v{C1+1}, {f32bits(-2.302208198):#x}",
             f"v_mov_b32 v{ONE}, 1.0", f"v_mov_b32 v{ONE+1}, 1.0"] + [f"v_mov_b32 v{W01+r}, s{28+r}" for r in range(4)] + \
            [f"v_lshrrev_b32 v{VPW}, 2, v{VL16}", f"v_and_b32 v{TMP}, 128, v{VPW}", f"v_add_u32 v{VPW}, v{VPW}, v{TMP}"]
    FW = os.environ.get("FW", "1") == "1" and PK
    if FW:
        setup += [f"v_rcp_f32 v{W01+r}, v{W01+r}" for r in range(4)] + [f"v_mov_b32 v{ONE}, 0x7f7fffff", f"v_mov_b32 v{ONE+1}, 0xff7fffff"] + \
                 [f"v_med3_f32 v{W01+r}, v{W01+r}, v{ONE}, v{ONE+1}" for r in range(4)]
    U = [(0, p) for p in range(LAG)]
    for p in range(8):
        U.append((1, p))
        if p + LAG < 8: U.append((0, p + LAG))
    if LAG == 0:
        U = [(0, 0), (0, 1), (0, 2), (1, 0), (1, 1), (1, 2)] + [(h, p) for p in range(3, 8) for h in range(2)]
    assert len(U) == 16 and U[:3] == [(0, 0), (0, 1), (0, 2)]
    if SHF:
        U = [(0, 1), (0, 2), (0, 3)] + [(h, p) for p in range(4) for h in (1, 2)] + [(h, p) for p in range(4, 8) for h in range(3)]
    if PRE:
        assert SHF == 8
        U = [(0, 4), (0, 5), (0, 6)] + [(h, p) for p in range(7) for h in (1, 2)] + [(0, 7), (1, 7), (2, 7)]
    NU = len(U); HL = 2 if SHF else 1
    def tile(n):
        if n < 0: return (16 + n + SHF) % 16, False
        hf, p = U[n >> 1]; return 2 * p + (n & 1), hf == HL
    pos = [0]
    def emit(txt):
        for l in txt.split("\n"):
            if l.strip(): a(l); pos[0] += 1
    def need(kind, tag):
        n = cnts[kind].after(tag)
        if n is not None: emit(f"s_waitcnt {kind}cnt({n})")
    ops = []
    def pr(x): return f"v[{x}:{x+1}]"
    lastuse = {}
    def add_tile(tt, smpos, k):
        X = ACC + 4 * tt; E = EB + 6 * (k % NB); Q = E + 4
        def o(text, deps, T=False, st=False):
            d = dict(text=text, T=T, deps=list(deps), done=None, ready=smpos + 12, st=st); ops.append(d); return d
        prev = lastuse.get(k % NB, [])
        ex = []; xw = []; rc = []
        for g in range(2):
            x = X + 2 * g; e = E + 2 * g; w = W01 + 2 * g
            if PK:
                m1 = o(f"v_pk_mul_f32 {pr(e)}, {pr(x)}, {pr(x)}", [(p_, 1) for p_ in prev])
                m2 = o(f"v_pk_fma_f32 {pr(e)}, {pr(e)}, {pr(C2)}, {pr(C1)}", [(m1, 2)])
                m3 = o(f"v_pk_mul_f32 {pr(e)}, {pr(e)}, {pr(x)}", [(m2, 2)])
                e0 = o(f"v_exp_f32 v{e}, v{e}", [(m3, 2)], T=True)
                e1 = o(f"v_exp_f32 v{e+1}, v{e+1}", [(m3, 2)], T=True)
                if FW:
                    m4 = m3
                    m5 = o(f"v_pk_fma_f32 {pr(e)}, {pr(e)}, {pr(w)}, {pr(w)}", [(e0, 3), (e1, 3)])
                else:
                    m4 = o(f"v_pk_mul_f32 {pr(x)}, {pr(x)}, {pr(w)}", [(m3, 1)])
                    m5 = o(f"v_pk_add_f32 {pr(e)}, {pr(e)}, {pr(ONE)}", [(e0, 3), (e1, 3)])
                r0 = o(f"v_rcp_f32 v{e}, v{e}", [(m5, 2)], T=True)
                r1 = o(f"v_rcp_f32 v{e+1}, v{e+1}", [(m5, 2)], T=True)
                xw.append(m4); rc += [r0, r1]
            else:
                for u in range(2):
                    m1 = o(f"v_mul_f32 v{e+u}, v{x+u}, v{x+u}", [(p_, 1) for p_ in prev])
                    m2 = o(f"v_fma_f32 v{e+u}, v{e+u}, v{C2}, v{C1}", [(m1, 2)])
                    m3 = o(f"v_mul_f32 v{e+u}, v{e+u}, v{x+u}", [(m2, 2)])
                    e0 = o(f"v_exp_f32 v{e+u}, v{e+u}", [(m3, 2)], T=True)
                    m4 = o(f"v_mul_f32 v{x+u}, v{x+u}, v{w+u}", [(m3, 1)])
                    m5 = o(f"v_add_f32 v{e+u}, 1.0, v{e+u}", [(e0, 3)])
                    r0 = o(f"v_rcp_f32 v{e+u}, v{e+u}", [(m5, 2)], T=True)
                    xw.append(m4); rc.append(r0)
        if PK:
            q0 = o(f"v_pk_mul_f32 {pr(Q)}, {pr(X)}, {pr(E)}", [(xw[0], 2), (rc[0], 3), (rc[1], 3)] + [(p_, 1) for p_ in prev])
            q1 = o(f"v_pk_fma_f32 {pr(Q)}, {pr(X+2)}, {pr(E+2)}, {pr(Q)}", [(xw[1], 2), (rc[2], 3), (rc[3], 3), (q0, 2)])
            q2 = o(f"v_add_f32 v{Q}, v{Q}, v{Q+1}", [(q1, 2)])
        else:
            q2 = o(f"v_mul_f32 v{Q}, v{X}, v{E}", [(xw[0], 2), (rc[0], 3)] + [(p_, 1) for p_ in prev])
            for r in range(1, 4):
                q2 = o(f"v_fma_f32 v{Q}, v{X+r}, v{E+r}, v{Q}", [(xw[r], 2), (rc[r], 3), (q2, 2)])
        st = o(f"buffer_store_dword v{Q}, v{VPW}, s[12:15], s35 offen offset:{(tt>>1)*512+(tt&1)*128}{PSF}" if not os.environ.get("NOST") else "s_nop 0", [(q2, 2)], st=not os.environ.get("NOST"))
        lastuse[k % NB] = [st]
    lastT = [-100]
    def ok(o_):
        return o_["done"] is None and pos[0] >= o_["ready"] and all(d["done"] is not None and pos[0] - d["done"] >= dist for d, dist in o_["deps"])
    def epi(n, force=False):
        while n > 0:
            if setup:
                emit(setup.pop(0)); n -= 1; continue
            cand = [o_ for o_ in ops if ok(o_)]
            if not cand:
                if force and any(o_["done"] is None for o_ in ops): emit("s_nop 0"); continue
                return
            tc = [o_ for o_ in cand if o_["T"]]; nc = [o_ for o_ in cand if not o_["T"]]
            if tc and (pos[0] - lastT[0] >= TGAP or not nc): c = tc[0]
            else: c = nc[0]
            c["done"] = pos[0]
            if c["T"]: lastT[0] = pos[0]
            emit(c["text"])
            if c["st"]: cnts["vm"].issue(None)
            n -= 1
    kk = 0
    FPRI = [int(x) for x in os.environ.get("FPRI", "24,38,46").split(",") if x]
    FL = int(os.environ.get("FL", "2"))
    J0 = 16 * S0 + SHF
    ring = [DAT + 8 * (J0 % 3)] + [224 + 8 * i for i in range(FL - 2)] + [DAT + 8 * ((J0 + 1) % 3), DAT + 8 * ((J0 + 2) % 3)]
    assert not (BULK and FL > 2 and SHF)
    def dbuf(n): return ring[n % (FL + 1)]
    for n in range(2 * NU + FL):
        J = 16 * S0 + SHF + n
        if FPRI and n == 0: emit(f"s_setprio {len(FPRI)}")
        if n in FPRI: emit(f"s_setprio {len(FPRI) - 1 - FPRI.index(n)}")
        if n < 2 * NU:
            sreg = SCH + 4 * ((J >> 1) % NS) + 2 * (J & 1)
            if BULK and n >= 2 * NS: sreg = 176 + 4 * ((n >> 1) - NS) + 2 * (J & 1)
            d = dbuf(n)
            for hh in range(2):
                if BULK:
                    for q in range(NS + BLK * (2 * n + hh), min(NU, NS + BLK * (2 * n + hh + 1))):
                        hf, p = U[q]; sb = SB[hf][p >> 2]; slot = 176 + 4 * (q - NS)
                        emit(f"buffer_load_dwordx4 v[{slot}:{slot+3}], v{VL16}, s[12:15], s{sb} offen offset:{(p&3)*1024}{LSF}")
                        cnts["vm"].issue(("s", 8 * S0 + SHF // 2 + q))
                epi(EPT[hh])
                if hh == 0 and J % 2 == 0: need("vm", ("s", J >> 1))
                for h in (2 * hh, 2 * hh + 1):
                    emit(f"v_lshlrev_b32_sdwa v{d+2*h}, 3, v{sreg+(h>>1)} dst_sel:DWORD dst_unused:UNUSED_PAD src0_sel:DWORD src1_sel:WORD_{h&1}")
                for h in (2 * hh, 2 * hh + 1):
                    emit(f"ds_read_b64 v[{d+2*h}:{d+2*h+1}], v{d+2*h}")
                    cnts["lgkm"].issue(("r", J))
            if n % 2 == 1 and (n >> 1) + NS < NU and not BULK:
                Pn = (J >> 1) + NS; slot = SCH + 4 * (Pn % NS)
                hf, p = U[(n >> 1) + NS]
                sb = SB[hf][p >> 2]
                emit(f"buffer_load_dwordx4 v[{slot}:{slot+3}], v{VL16}, s[12:15], s{sb} offen offset:{(p&3)*1024}{LSF}")
                cnts["vm"].issue(("s", Pn))
        else: epi(EPT[0] + EPT[1])
        if n - FL < -2: continue
        t = J - FL; dt = dbuf(n - FL); tt, hf = tile(n - FL)
        need("lgkm", ("r", t))
        emit(f"v_smfmac_f32_16x16x64_bf16 v[{ACC+4*tt}:{ACC+4*tt+3}], v[{SEL}:{SEL+3}], v[{dt}:{dt+7}], v{IDX}")
        if hf:
            add_tile(tt, pos[0], kk); kk += 1
    if os.environ.get("ESTAMP"): fstamp(3)
    left = sum(o_["done"] is None for o_ in ops)
    print("final: epilogue ops left after gather:", left, file=sys.stderr)
    epi(10000, force=True)
    assert all(o_["done"] is not None for o_ in ops) and kk == 16

def gen_red(a, name, VL16, fstamp, fstamp_out):
    LD = 176; VA = 192; VS = 193; P0 = 194; P1 = 195; B2 = 196; T0 = 197; T1 = 198; AB = 199; SUM = 200; RV = 208
    def rows():
        for i in range(4): a(f"buffer_load_dwordx4 v[{LD+4*i}:{LD+4*i+3}], v{VA}, s[12:15], s{60+i} offen sc1")
    def pnn():
        a(f"buffer_load_dword v{P0}, v{VS}, s[12:15], s66 offen sc1")
        a(f"buffer_load_dword v{P1}, v{VS}, s[12:15], s67 offen sc1")
    def fold(n0):
        a(f"s_waitcnt vmcnt({n0+2})")
        for r in range(4): a(f"v_add_f32 v{LD+r}, v{LD+r}, v{LD+4+r}")
        a(f"s_waitcnt vmcnt({n0})")
        for r in range(4): a(f"v_add_f32 v{LD+8+r}, v{LD+8+r}, v{LD+12+r}")
        for r in range(4): a(f"v_add_f32 v{LD+r}, v{LD+r}, v{LD+8+r}")
        a(f"""
        s_nop 0
        v_permlane32_swap_b32 v{LD}, v{LD+1}
        v_permlane32_swap_b32 v{LD+2}, v{LD+3}
        v_add_f32 v{LD}, v{LD}, v{LD+1}
        v_add_f32 v{LD+2}, v{LD+2}, v{LD+3}
        s_nop 1
        v_permlane16_swap_b32 v{LD}, v{LD+2}
        s_nop 0
        v_add_f32 v{LD}, v{LD}, v{LD+2}
        """)
    def params(blk, w):
        a(f"""
        s_lshl_b32 s68, {blk}, 8
        s_add_u32 s66, s68, {WS_PNN}
        s_add_u32 s67, s66, 65536
        s_add_u32 s60, s68, {WS_PART}
        s_lshr_b32 s68, s68, 1
        """)
        if w: a(f"s_lshl_b32 s61, {w}, 20\ns_add_u32 s60, s60, s61")
        a(f"""
        s_add_u32 s61, s60, {4*65536}
        s_add_u32 s62, s60, {8*65536}
        s_add_u32 s63, s60, {12*65536}
        """)
    def fin():
        a(f"""
        v_cvt_pk_bf16_f32 v{T0}, v{SUM}, v{P0}
        v_lshlrev_b32 v{T1}, 16, v{T0}
        v_and_b32 v{T0}, 0xffff0000, v{T0}
        v_add_f32 v{T1}, v{T1}, v{B2}
        v_cvt_pk_bf16_f32 v{T1}, v{T1}, v{T1}
        v_lshlrev_b32 v{T1}, 16, v{T1}
        v_add_f32 v{T1}, v{T1}, v{T0}
        v_cvt_pk_bf16_f32 v{T1}, v{T1}, v{T1}
        v_lshrrev_b32 v{T0}, 1, v{VS}
        buffer_store_short v{T1}, v{T0}, s[72:75], s68 offen
        """)
    a(f"""
    v_and_b32 v{VS}, 0xf0, v{VL16}
    v_lshrrev_b32 v{T0}, 8, v{VL16}
    v_lshl_or_b32 v{VA}, v{T0}, 16, v{VS}
    v_lshrrev_b32 v{T1}, 1, v{T0}
    v_and_b32 v{T0}, 1, v{T0}
    v_lshl_or_b32 v{VS}, v{T1}, 2, v{VS}
    v_lshl_or_b32 v{VS}, v{T0}, 3, v{VS}
    v_mov_b32 v{B2}, 0
    s_mov_b32 s65, 0
    """)
    params("s2", "s3")
    srd(a, 76, 56, 2)
    srd(a, 72, 58, B * 2)
    a(f"""
    v_mov_b32 v{LD}, -1
    buffer_load_short_d16_hi v{B2}, v{B2}, s[76:79], 0 offen
    s_bitcmp1_b32 s64, 30
    s_cbranch_scc0 {name}_rd
    """)
    if os.environ.get("FAILWG"):
        a(f"s_and_b32 s69, s2, 31\ns_cmp_eq_u32 s69, {os.environ['FAILWG']}\ns_cbranch_scc1 {name}_rd")
    a.label(f"{name}_rp")
    rows(); pnn(); fold(2)
    a(f"""
    s_waitcnt vmcnt(0)
    v_add_f32 v{P0}, v{P0}, v{P1}
    s_add_u32 s65, s65, 1
    v_add_f32 v{T0}, v{P0}, v{LD}
    v_cmp_u_f32 vcc, v{T0}, v{T0}
    s_cbranch_vccz {name}_rd
    s_cmp_lt_u32 s65, {int(os.environ.get("RLIM", "300"))}
    s_cbranch_scc1 {name}_rp
    v_mov_b32 v{LD}, -1
    """)
    a.label(f"{name}_rd")
    a(f"""
    v_lshrrev_b32 v{T0}, 2, v{VL16}
    s_lshl_b32 s69, s3, 8
    v_add_u32 v{T1}, s69, v{T0}
    ds_write_b32 v{T1}, v{LD}
    s_waitcnt vmcnt(0) lgkmcnt(0)
    """)
    if os.environ.get("RSTAMP"):
        a("s_mov_b32 s96, s65")
        fstamp(8)
        a("s_mov_b32 s98, s96")
    fstamp_out(VL16)
    a(f"""
    s_barrier
    s_cmp_lg_u32 s3, 0
    s_cbranch_scc1 {name}_end
    """)
    for w in range(8): a(f"ds_read_b32 v{RV+w}, v{T0} offset:{256*w}")
    a(f"""
    v_mov_b32 v{AB}, 1
    v_mov_b32 v{T1}, 0
    """)
    for w in range(1, 8):
        a(f"s_waitcnt lgkmcnt({7-w})")
        a(f"v_add_f32 v{SUM}, v{SUM if w > 1 else RV}, v{RV+w}")
    a(f"""
    v_cmp_u_f32 vcc, v{SUM}, v{SUM}
    s_cbranch_vccnz {name}_rf
    s_mov_b64 exec, 1
    buffer_atomic_add v{AB}, v{T1}, s[52:55], 0 offen offset:96 sc0
    s_mov_b64 exec, -1
    """)
    fin()
    a(f"""
    s_waitcnt vmcnt(1)
    v_readfirstlane_b32 s69, v{AB}
    s_cmp_lt_u32 s69, 256
    s_cbranch_scc1 {name}_end
    s_branch {name}_rl
    """)
    a.label(f"{name}_rf")
    a(f"""
    s_lshr_b32 s69, s2, 5
    s_lshl_b32 s69, s69, 2
    s_lshl_b32 s70, 1, s2
    v_mov_b32 v{AB}, s70
    s_mov_b64 exec, 1
    buffer_atomic_or v{AB}, v{T1}, s[52:55], s69 offen offset:64 sc0
    s_waitcnt vmcnt(0)
    v_mov_b32 v{AB}, 0x10001
    buffer_atomic_add v{AB}, v{T1}, s[52:55], 0 offen offset:96 sc0
    s_mov_b64 exec, -1
    s_waitcnt vmcnt(0)
    v_readfirstlane_b32 s69, v{AB}
    """)
    a.label(f"{name}_rl")
    a(f"""
    s_and_b32 s69, s69, 0xffff
    s_cmp_lg_u32 s69, 255
    s_cbranch_scc1 {name}_end
    v_lshrrev_b32 v{T0}, 2, v{VL16}
    v_mov_b32 v{AB}, 0
    s_mov_b64 exec, 0xff
    buffer_atomic_or v{AB}, v{T0}, s[52:55], 0 offen offset:64 sc0
    s_mov_b64 exec, -1
    s_waitcnt vmcnt(0)
    """)
    a.label(f"{name}_rn")
    a(f"""
    v_cmp_ne_u32 vcc, 0, v{AB}
    s_cbranch_vccz {name}_end
    s_ff1_i32_b64 s69, vcc
    s_mov_b32 m0, s69
    s_nop 3
    v_readlane_b32 s70, v{AB}, s69
    s_ff1_i32_b32 s71, s70
    s_bitset0_b32 s70, s71
    s_nop 3
    v_writelane_b32 v{AB}, s70, m0
    s_lshl_b32 s69, s69, 5
    s_add_u32 s69, s69, s71
    """)
    params("s69", None)
    pnn()
    a("s_mov_b32 s65, 0")
    a.label(f"{name}_rw")
    rows(); fold(0)
    a(f"""
    s_cmp_eq_u32 s65, 0
    s_cselect_b64 vcc, -1, 0
    v_add_f32 v{SUM}, v{SUM}, v{LD}
    v_cndmask_b32 v{SUM}, v{SUM}, v{LD}, vcc
    s_add_u32 s60, s60, {1<<20}
    s_add_u32 s61, s61, {1<<20}
    s_add_u32 s62, s62, {1<<20}
    s_add_u32 s63, s63, {1<<20}
    s_add_u32 s65, s65, 1
    s_cmp_lt_u32 s65, 8
    s_cbranch_scc1 {name}_rw
    v_add_f32 v{P0}, v{P0}, v{P1}
    """)
    fin()
    a(f"s_nop 1\ns_branch {name}_rn")

def gen_k2(a, name, fstamp, fstamp_out, MT):
    ACC = 0; SEL = 64; IDX = 68; VL16 = 69; VPW = 70; TMP = 71
    W = 72; DAT = 88; PB = 112; SCH = 116
    NS = 3
    LSF = os.environ.get("LSF", " sc1")
    def rstamp(): pass
    def stamp(fixed=None): return False
    def T(i, ks): return f"v[{128+16*i+4*ks}:{128+16*i+4*ks+3}]"
    def wld(reg, ks, sf): return f"buffer_load_dwordx4 v[{reg}:{reg+3}], v{VL16}, s[12:15], s{21 if ks < 2 else 19} offen offset:{(ks&1)*1024}{sf}"
    WINC = "s_add_u32 s21, s21, 4096\ns_add_u32 s19, s19, 4096"
    a.label(f"{name}_k2")
    L = 0
    a(f"""
    s_setprio 0
    s_load_dwordx4 s[8:11], s[0:1], 32
    v_mbcnt_lo_u32_b32 v{L}, -1, 0
    v_mbcnt_hi_u32_b32 v{L}, -1, v{L}
    s_mul_i32 s35, s3, {128*144}
    v_and_b32 v{L+1}, 15, v{L}
    v_lshrrev_b32 v{L+2}, 4, v{L}
    v_mul_u32_u24 v{TMP}, 144, v{L+1}
    v_lshl_add_u32 v{TMP}, v{L+2}, 4, v{TMP}
    v_add_u32 v{TMP}, s35, v{TMP}
    """)
    for i in range(8):
        for ks in range(2):
            a(f"ds_read_b128 {T(i,ks)}, v{TMP} offset:{2304*i+64*ks}")
    a(f"""
    s_lshr_b32 s33, s2, 1
    s_and_b32 s34, s2, 1
    s_mov_b32 s32, 0x8000
    v_lshlrev_b32 v{VL16}, 4, v{L}
    s_mul_i32 s21, s33, {SLS}
    s_lshl_b32 s35, s50, 11
    s_xor_b32 s19, s35, 2048
    s_add_u32 s19, s19, s21
    s_add_u32 s21, s21, s35
    s_mul_i32 s20, s34, {25*65536}
    s_add_u32 s20, s20, {WS_SCHED}
    s_lshl_b32 s35, s3, 13
    s_add_u32 s20, s20, s35
    v_lshlrev_b32 v{VPW}, 13, v{L+2}
    v_lshl_add_u32 v{VPW}, v{L+1}, 3, v{VPW}
    s_lshl_b32 s35, s3, 10
    v_add_u32 v{VPW}, s35, v{VPW}
    v_lshrrev_b32 v{L+4}, 3, v{L}
    v_xor_b32 v{L+4}, v{L+4}, v{L+2}
    v_and_b32 v{L+4}, 1, v{L+4}
    v_bfe_u32 v{L+5}, v{L}, 2, 1
    v_lshl_or_b32 v{L+4}, v{L+4}, 1, v{L+5}
    v_mov_b32 v{L+6}, 0x3f80
    v_cmp_eq_u32 vcc, 0, v{L+4}
    s_nop 1
    v_cndmask_b32 v{SEL}, 0, v{L+6}, vcc
    v_cndmask_b32 v{SEL+1}, 0, v{L+6}, vcc
    v_cmp_eq_u32 vcc, 1, v{L+4}
    s_nop 1
    v_cndmask_b32 v{SEL+2}, 0, v{L+6}, vcc
    v_cndmask_b32 v{SEL+3}, 0, v{L+6}, vcc
    v_and_b32 v{L+5}, 3, v{L}
    v_mul_u32_u24 v{IDX}, 0x5555, v{L+5}
    """)
    def wl(base):
        for ks in range(4): a(wld(base + 4 * ks, ks, " sc1"))
        a(WINC)
    def first_loads():
        wl(0); wl(16)
        if SHF: a("s_mov_b32 s44, s21\ns_mov_b32 s45, s19\n" + WINC)
        if not PRE: wl(W)
        sched_load(0); sched_load(1)
    fillers = []
    def pphase(wb, first_waits=None, off=0, f0=1):
        for i in range(10):
            if i < 8:
                if first_waits is not None:
                    a(f"s_waitcnt vmcnt({first_waits(i)})")
                pb = DAT + 4 * (i % 3)
                for ks in range(4):
                    c = "0" if ks == 0 else f"v[{pb}:{pb+3}]"
                    a(f"v_mfma_f32_16x16x32_bf16 v[{pb}:{pb+3}], v[{wb+4*ks}:{wb+4*ks+3}], {T(i,ks)}, {c}")
                    if fillers and i >= f0: a(fillers.pop(0))
            if i >= 2:
                t = i - 2
                pb = DAT + 4 * (t % 3); cv = DAT + 12 + 2 * (t & 1)
                if i == 9: a("s_nop 1")
                a(f"v_cvt_pk_bf16_f32 v{cv}, v{pb}, v{pb+1}")
                a(f"v_cvt_pk_bf16_f32 v{cv+1}, v{pb+2}, v{pb+3}")
                a(f"ds_write_b64 v{VPW}, v[{cv}:{cv+1}] offset:{t*128+off}")
        a(f"v_add_u32 v{VPW}, 0x8000, v{VPW}")
    def sched_load(Pp):
        t = Pp % 8
        slot = SCH + 4 * (Pp % NS)
        a(f"buffer_load_dwordx4 v[{slot}:{slot+3}], v{VL16}, s[12:15], s20 offen offset:{(t&3)*1024} sc1")
        if t == 3: a("s_add_u32 s20, s20, 4096")
        if t == 7: a("s_add_u32 s20, s20, 61440")
    a(f"s_cmp_lt_u32 s3, 4\ns_cbranch_scc1 {name}_k2n")
    first_loads()
    a.label(f"{name}_k2n")
    a(f"""
    s_and_b32 s35, s3, 3
    s_lshl_b32 s35, s35, 14
    s_add_u32 s35, s35, 98304
    v_add_u32 v{TMP}, s35, v{VL16}
    s_lshl_b32 s35, s33, 3
    s_waitcnt lgkmcnt(0)
    s_add_u32 s8, s8, s35
    s_addc_u32 s9, s9, 0
    s_add_u32 s10, s10, s35
    s_addc_u32 s11, s11, 0
    s_barrier
    """)
    fstamp(4)
    a(f"""
    s_load_dwordx2 s[36:37], s[8:9], 0
    s_load_dwordx4 s[56:59], s[0:1], 48
    s_load_dwordx2 s[38:39], s[10:11], 0
    s_cmp_lt_u32 s3, 4
    s_cbranch_scc1 {name}_k2m
    """)
    TR2 = os.environ.get("TR2", "1") == "1" and SHF
    pend = []
    def pphase2(wb, off, drain):
        for p in range(4):
            for ks in range(4):
                for u in range(2):
                    a(mf(DAT + 8 * (pc[0] % 3) + 4 * u, wb, 2 * p + u, ks, ks == 0))
                    if ks >= 1 and pend: a(pend.pop(0))
                    if fillers and (p or ks >= 2): a(fillers.pop(0))
            assert not pend
            for u in range(2): pend.extend(fin(DAT + 8 * (pc[0] % 3) + 4 * u, 2 * p + u, off))
            pc[0] += 1
        if drain:
            while fillers: a(fillers.pop(0))
            a("s_nop 7")
            while pend: a(pend.pop(0))
    pc = [0]
    TST = os.environ.get("TSTAMP")
    def ini(r0, r1): return [f"v_mov_b32 v{ACC+i}, s{24+(i&3)}" for i in range(r0, r1)]
    def w2ld(r):
        for ks in range(4): a(f"buffer_load_dwordx4 v[{r+4*ks}:{r+3+4*ks}], v{VL16}, s[12:15], s{44 if ks < 2 else 45} offen offset:{(ks&1)*1024} sc1")
    BIAS = """
        s_lshl_b32 s24, s36, 16
        s_and_b32 s25, s36, 0xffff0000
        s_lshl_b32 s26, s37, 16
        s_and_b32 s27, s37, 0xffff0000
        """
    def mf(pb, wb, i, ks, zero): return f"v_mfma_f32_16x16x32_bf16 v[{pb}:{pb+3}], v[{wb+4*ks}:{wb+4*ks+3}], {T(i,ks)}, {'0' if zero else f'v[{pb}:{pb+3}]'}"
    def fin(pb, t, off): return [f"v_cvt_pk_bf16_f32 v{pb}, v{pb}, v{pb+1}", f"v_cvt_pk_bf16_f32 v{pb+1}, v{pb+2}, v{pb+3}", f"ds_write_b64 v{VPW}, v[{pb}:{pb+1}] offset:{t*128+off}"]
    assert TR2
    if TR2:
        assert MT[:8] == [32 + 4 * i for i in range(8)]
        a(f"s_waitcnt vmcnt({6 if PRE else 10})")
        def mtw(q): a(f"ds_write_b128 v{TMP}, v[{MT[q]}:{MT[q]+3}] offset:{1024*q}")
        for q in range(4): mtw(q)
        BPOS = int(os.environ.get("BPOS", "28"))
        c = 0
        for g in range(2):
            for ks in range(4):
                for i in range(4 * g, 4 * g + 4):
                    a(mf(32 + 4 * i, 0, i, ks, ks == 0)); c += 1
                    if c % 2 == 0 and 3 + c // 2 < 16: mtw(3 + c // 2)
                    if c == BPOS: a("s_waitcnt lgkmcnt(0)\ns_barrier")
        sched_load(2)
        if PRE:
            a("s_waitcnt vmcnt(3)" + BIAS)
            fl = [x for t in range(8) for x in fin(32 + 4 * t, t, 0)]
            for ks in range(4):
                fl[12 + ks] += f"\nbuffer_load_dwordx4 v[{32+4*ks}:{35+4*ks}], v{VL16}, s[12:15], s{44 if ks < 2 else 45} offen offset:{(ks&1)*1024} sc1"
            i0 = ini(0, 16)
            for k_ in range(16): fl[k_ + 4] += "\n" + i0[k_]
            fillers += fl + ["s_nop 0"] * 4 + ini(48, 64) + ini(16, 32)
            pphase2(16, 0x8000, True)
            a(f"v_add_u32 v{VPW}, 0x10000, v{VPW}")
        else:
            w2ld(0)
            a("s_waitcnt vmcnt(11)" + BIAS)
            if TST: fstamp(5)
            fillers += [x for t in range(8) for x in fin(32 + 4 * t, t, 0)]
            pphase2(16, 0x8000, False)
            assert not fillers
            a(f"v_add_u32 v{VPW}, 0x8000, v{VPW}\ns_waitcnt vmcnt(0)")
            pend[:] = [x.replace(f"offset:{t*128+0x8000}", f"offset:{t*128}") for x in pend for t in (6, 7) if "offset" not in x and t == 6 or f"offset:{t*128+0x8000}" in x]
            fillers += [x + "\n" + y for x, y in zip(ini(16, 40), ini(40, 64))] + ["s_nop 0"] * 4 + ini(0, 16)
            pphase2(0, 0x8000, True)
            a(f"v_add_u32 v{VPW}, 0x10000, v{VPW}")
        a(f"s_branch {name}_k2j")
        a.label(f"{name}_k2m")
        first_loads()
        sched_load(2)
        w2ld(32)
        assert not PRE
        a("s_mov_b64 exec, s[46:47]\nbuffer_store_dword v113, v112, s[12:15], s74 offen sc1\ns_mov_b64 exec, -1")
        PBM = [48 + 4 * i for i in range(4)] + [DAT + 4 * i for i in range(4)]
        MPB = os.environ.get("MPB", "0") == "1"
        def own():
            a(f"s_waitcnt vmcnt({11 if PRE else 16})")
            for ks in range(2):
                for i in range(8): a(mf(PBM[i], 0, i, ks, ks == 0))
        if MPB: own()
        a("s_waitcnt lgkmcnt(0)\ns_barrier")
        for q in range(16):
            a(f"ds_read_b128 {T(q>>1, 2+(q&1))}, v{TMP} offset:{1024*q}")
        if not MPB: own()
        a(BIAS)
        if TST: fstamp(5)
        nw = 0
        for i in range(0, 12, 2):
            if i < 8:
                a(f"s_waitcnt lgkmcnt({12 - 2 * i + nw})")
                for ks in (2, 3):
                    for u in range(2): a(mf(PBM[i + u], 0, i + u, ks, False))
            else: a("s_nop 3")
            if i >= 4:
                for u in range(2):
                    for l in fin(PBM[i - 4 + u], i - 4 + u, 0): a(l)
                    nw += 1
        a(f"v_add_u32 v{VPW}, 0x8000, v{VPW}\ns_waitcnt vmcnt({7 if PRE else 12})")
        fillers += ini(48, 64) + ini(0, 12)
        pc[0] = 2
        if PRE:
            fillers += ini(12, 32)
            pphase2(16, 0, True)
            a(f"v_add_u32 v{VPW}, 0x8000, v{VPW}")
        else:
            pphase2(16, 0, False)
            a("s_waitcnt vmcnt(1)")
            fillers += ini(12, 32) + ["s_nop 0"] * 8 + ini(32, 48)
            pphase2(32, 0x8000, True)
            a(f"v_add_u32 v{VPW}, 0x10000, v{VPW}")
        a.label(f"{name}_k2j")
    else:
        for q in range(16):
            a(f"ds_write_b128 v{TMP}, v[{MT[q]}:{MT[q]+3}] offset:{1024*q}")
        a(f"""
        s_waitcnt lgkmcnt(0)
        s_barrier
        s_branch {name}_k2j
        """)
        a.label(f"{name}_k2m")
        a("s_barrier")
        for q in range(16):
            a(f"ds_read_b128 {T(q>>1, 2+(q&1))}, v{TMP} offset:{1024*q}")
        a.label(f"{name}_k2j")
        sched_load(2)
    if SHF and not TR2:
        for ks in range(4): a(f"buffer_load_dwordx4 v[{32+4*ks}:{35+4*ks}], v{VL16}, s[12:15], s{44 if ks < 2 else 45} offen offset:{(ks&1)*1024} sc1")
        a(f"""
        s_waitcnt vmcnt(15) lgkmcnt(0)
        s_lshl_b32 s24, s36, 16
        s_and_b32 s25, s36, 0xffff0000
        s_lshl_b32 s26, s37, 16
        s_and_b32 s27, s37, 0xffff0000
        """)
        if TST: fstamp(5)
        fillers += ini(48, 64)
        pphase(0)
        a("s_waitcnt vmcnt(11)")
        fillers += ini(0, 16)
        pphase(16)
        a("s_waitcnt vmcnt(0)")
        fillers += ini(16, 32)
        pphase(32)
        assert not fillers
        for l in ini(32, 48): a(l)
    if SHF:
        if TST: fstamp(1)
        a(f"""
        s_mov_b32 s22, 0
        s_mov_b32 s23, {2 if PRE else 3}
        s_waitcnt {"vmcnt(0) " if PRE else ""}lgkmcnt(0)
        s_barrier
        """)
        fstamp(6)
        for J in range(0 if PRE else 2):
            d = DAT + 8 * J
            for h in range(4):
                a(f"v_lshlrev_b32_sdwa v{d+2*h}, 3, v{SCH+2*J+(h>>1)} dst_sel:DWORD dst_unused:UNUSED_PAD src0_sel:DWORD src1_sel:WORD_{h&1}")
            for h in range(4):
                a(f"ds_read_b64 v[{d+2*h}:{d+2*h+1}], v{d+2*h}")
        if not PRE: sched_load(3)
    else:
        a("s_waitcnt vmcnt(11) lgkmcnt(0)")
        pphase(0)
        a("s_waitcnt vmcnt(7)")
        pphase(16)
    PRIOTXT = ""
    if K2PRIO == "hi": PRIOTXT = f"s_cmp_lt_u32 s3, 4\ns_cbranch_scc1 {name}_np\ns_setprio 1\n{name}_np:"
    if K2PRIO == "lo": PRIOTXT = f"s_cmp_ge_u32 s3, 4\ns_cbranch_scc1 {name}_np\ns_setprio 1\n{name}_np:"
    FIN = os.environ.get("FIN", "1") == "1"
    if not SHF:
        if FIN:
            a(f"""
            s_lshl_b32 s24, s36, 16
            s_and_b32 s25, s36, 0xffff0000
            s_lshl_b32 s26, s37, 16
            s_and_b32 s27, s37, 0xffff0000
            s_nop 3
            """)
        else: a("s_nop 7")
        for i in range(64):
            a(f"v_mov_b32 v{ACC+i}, {f's{24+(i&3)}' if FIN else 0}")
        for i in range(24):
            a(f"v_mov_b32 v{DAT+i}, 0")
        a(f"""
        s_mov_b32 s22, 0
        s_mov_b32 s23, 2
        {PRIOTXT}
        s_waitcnt vmcnt(0) lgkmcnt(0)
        s_barrier
        """)
        fstamp(6)
    vm = Cnt(); lg = Cnt(); uid = [0]
    cnts = {"vm": vm, "lgkm": lg}
    log = []
    RATE = float(os.environ.get("RATE", "1.9")); START = int(os.environ.get("START", "2")); GAP = int(os.environ.get("GAP", "2"))
    SMPOS = int(os.environ.get("SMPOS", "4"))
    LPRI = [int(x) for x in os.environ.get("LPRI", "8,12,15").split(",") if x]
    def op(text, kind="x", needs=(), issues=None):
        return dict(text=text, kind=kind, needs=list(needs), issues=issues)
    def build_step(S, last):
        G = []
        pre_ = S < 0
        j0 = 16 - SHF if pre_ else 0
        WB = 32 if pre_ else W
        for j in range(j0, 16 + (2 if last else 0)):
            J = 16 * S + j + SHF
            t = J - 2; dt = DAT + 8 * (t % 3); tt = t % 16
            smop = op(f"v_smfmac_f32_16x16x64_bf16 v[{ACC+4*tt}:{ACC+4*tt+3}], v[{SEL}:{SEL+3}], v[{dt}:{dt+7}], v{IDX}" if "nosm" not in ABL else "", "sm", [("lgkm", ("r", t))])
            if t < 0: smop = op("", "sm")
            if j < 16:
                sreg = SCH + 4 * ((J >> 1) % NS) + 2 * (J & 1)
                d = DAT + 8 * (J % 3)
                for h in range(4):
                    if h == SMPOS: G.append(smop)
                    G.append(op(f"v_lshlrev_b32_sdwa v{d+2*h}, 3, v{sreg+(h>>1)} dst_sel:DWORD dst_unused:UNUSED_PAD src0_sel:DWORD src1_sel:WORD_{h&1}",
                                "va", [("vm", ("s", J >> 1))] if (h == 0 and J % 2 == 0 and "nos" not in ABL) else []))
                    G.append(op(f"ds_read_b64 v[{d+2*h}:{d+2*h+1}], v{d+2*h}" if "nor" not in ABL else "", "rd", [], ("lgkm", ("r", J)) if "nor" not in ABL else None))
                if J % 2 == 1 and not (last and (j >> 1) + NS >= 8) and "nos" not in ABL:
                    Pn = (J >> 1) + NS
                    tq = Pn % 8; slot = SCH + 4 * (Pn % NS)
                    txt = f"buffer_load_dwordx4 v[{slot}:{slot+3}], v{VL16}, s[12:15], s20 offen offset:{(tq&3)*1024}{LSF}"
                    if tq == 3: txt += "\ns_add_u32 s20, s20, 4096"
                    if tq == 7: txt += "\ns_add_u32 s20, s20, 61440"
                    G.append(op(txt, "vl", [], ("vm", ("s", Pn))))
            if SMPOS >= 4 or j >= 16: G.append(smop)
        if last: return G
        P = []
        NPT = int(os.environ.get("NPT", "8"))
        for i in range(NPT):
            for ks in range(4):
                c = "0" if ks == 0 else f"v[{PB}:{PB+3}]"
                grp = [op(f"v_mfma_f32_16x16x32_bf16 v[{PB}:{PB+3}], v[{WB+4*ks}:{WB+4*ks+3}], {T(i,ks)}, {c}" if "nop" not in ABL else "",
                          "m3" if ks == 3 else "m", [("vm", ("w", S, ks))] if (i == 0 and "now" not in ABL) else [])]
                kw = ks if (i == NPT - 1 and not pre_) else (2 * (i - 4) + (ks >> 1) if (pre_ and i in (4, 5) and ks % 2 == 0) else None)
                if kw is not None and "now" not in ABL:
                    txt = wld(W + 4 * kw, kw, LSF)
                    if kw == 3: txt += "\n" + WINC
                    grp.append(op(txt, "vl", [], ("vm", ("w", S + 1, kw))))
                P.append(grp)
            for g in range(GAP): P.append([])
            P.append([op(f"v_cvt_pk_bf16_f32 v{PB}, v{PB}, v{PB+1}", "cv")])
            P.append([op(f"v_cvt_pk_bf16_f32 v{PB+1}, v{PB+2}, v{PB+3}", "va")])
            P.append([op(f"ds_write_b64 v{VPW}, v[{PB}:{PB+1}] offset:{i*128}" if "nodw" not in ABL else "", "dw", [], ("lgkm", ("pw", S, i)) if "nodw" not in ABL else None)])
        P.append([op(f"""s_add_u32 s23, s23, 1
            s_cmp_eq_u32 s23, 5
            s_cselect_b32 s35, {(-131072) & 0xffffffff}, s32
            s_cselect_b32 s23, 0, s23
            v_add_u32 v{VPW}, s35, v{VPW}""", "va")])
        if "nopf" not in ABL and not NOPF:
            P.append([op("PF", "pf")])
        ORDER = os.environ.get("ORDER", "1sfsfssfs")
        if pre_:
            ORDER = "8ffffffff"
            P.append([op("\n".join(ini(32, 48)), "va")])
        if ORDER:
            flat = [p for p in P if p]
            tilesP = [flat[7 * i:7 * i + 7] for i in range(NPT)]; tail = flat[7 * NPT:]
            pre = {}; post = {}
            j = int(ORDER[0])
            for i, c in enumerate(ORDER[1:]):
                m = tilesP[i]
                if c == "q":
                    pre[(j, 0)] = m[0]; pre[(j + 1, 0)] = m[1]; pre[(j + 2, 0)] = m[2]; pre[(j + 3, 0)] = m[3]; post[j + 3] = m[4] + m[5] + m[6]; j += 4
                elif c == "t":
                    pre[(j, 0)] = m[0]; pre[(j + 1, 0)] = m[1]; pre[(j + 2, 0)] = m[2]; pre[(j + 2, 1)] = m[3]; post[j + 2] = m[4] + m[5] + m[6]; j += 3
                elif c == "f":
                    pre[(j, 0)] = m[0] + m[1]; pre[(j, 1)] = m[2] + m[3]; post[j] = m[4] + m[5] + m[6]; j += 1
                else:
                    pre[(j, 0)] = m[0]; pre[(j, 1)] = m[1]; pre[(j + 1, 0)] = m[2]; pre[(j + 1, 1)] = m[3]; post[j + 1] = m[4] + m[5] + m[6]; j += 2
            assert j <= 16
            post[j - 1] = post[j - 1] + [x for t_ in tail for x in t_]
            out = []
            gi = 0
            for jj in range(j0, 16):
                va = []; rd = []; vl = []; sm = None
                while True:
                    g = G[gi]; gi += 1
                    if g["kind"] == "va": va.append(g)
                    elif g["kind"] == "rd": rd.append(g)
                    elif g["kind"] == "vl": vl.append(g)
                    elif g["kind"] == "sm": sm = g; break
                if LPRI and jj == 0: out.append(op(f"s_setprio {len(LPRI)}", "x"))
                if jj in LPRI: out.append(op(f"s_setprio {len(LPRI) - 1 - LPRI.index(jj)}", "x"))
                out += pre.get((jj, 0), []) + va[0:2] + rd[0:2] + pre.get((jj, 1), []) + va[2:4] + rd[2:4] + vl + [sm] + post.get(jj, [])
            assert gi == len(G)
            if "nobar" not in ABL: out.append(op("s_barrier", "bar", [("lgkm", ("pw", S, NPT - 1))] if "nodw" not in ABL else []))
            return out
        out = []
        k = 0
        for gi, g in enumerate(G):
            out.append(g)
            while k < len(P) and gi >= START + k * RATE:
                ism = P[k] and P[k][0]["kind"] in ("m", "m3")
                nxt = G[gi + 1]["kind"] if gi + 1 < len(G) else None
                if ism and (g["kind"] == "sm" or nxt == "sm") and gi + 1 < len(G): break
                out.extend(P[k]); k += 1
        while k < len(P):
            out.extend(P[k]); k += 1
        if "nobar" not in ABL:
            out.append(op("s_barrier", "bar", [("lgkm", ("pw", S, 7))] if "nodw" not in ABL else []))
        return out
    since_m3 = [100]
    def emit_line(txt):
        for l in txt.split("\n"):
            if l.strip():
                a(l); since_m3[0] += 1
    def step(S, emit, last=False, waits=None):
        for o in build_step(S, last):
            for kind, tag in o["needs"]:
                n = cnts[kind].after(tag)
                log.append((kind, n))
                if waits is not None:
                    k2, n2 = next(waits)
                    assert k2 == kind and (n is None or n2 <= n), (kind, tag, n, n2)
                    n = n2
                if emit and n is not None:
                    emit_line(f"s_waitcnt {kind}cnt({n})")
            if emit:
                if o["kind"] == "pf":
                    uid[0] += 1
                    emit_line(f"""s_cmp_gt_u32 s3, 1
                    s_cbranch_scc1 {name}_pf{uid[0]}
                    v_lshlrev_b32 v{TMP}, 2, v{VL16}
                    s_cmp_eq_u32 s3, 0
                    s_cselect_b32 s19, s21, s18
                    buffer_load_dword v{TMP}, v{TMP}, s[12:15], s19 offen""")
                    a.label(f"{name}_pf{uid[0]}")
                    emit_line("s_add_u32 s18, s18, 65536")
                else:
                    if o["kind"] == "cv" and since_m3[0] < 8:
                        emit_line(f"s_nop {7 - since_m3[0]}")
                    emit_line(o["text"])
                    if o["kind"] == "m3": since_m3[0] = 0
            if o["issues"]: cnts[o["issues"][0]].issue(o["issues"][1])
            if o["kind"] == "bar":
                if emit: stamp()
                if STAMP: vm.issue(None)
    for S in range(3): step(S, False)
    log.clear()
    for S in range(3, 6): step(S, False)
    steady = list(log); log.clear()
    for S in range(6, 9): step(S, False)
    assert steady == log
    assert all(n is not None for _, n in steady) or ABL != {""}
    if PRE:
        keep = dict(cnts); cnts["vm"] = Cnt(); cnts["lgkm"] = Cnt()
        step(-1, True)
        it = iter(steady)
        for S in range(3): step(S, False, waits=it)
        cnts.update(keep)
    a.label(f"{name}_gloop")
    it = iter(steady)
    if FIN:
        import copy
        for S in range(9, 10 if SHF else 11): step(S, True, waits=it)
        snap = copy.deepcopy(cnts)
        a(f"""
        s_cmp_eq_u32 s22, 7
        s_cbranch_scc1 {name}_fin
        """)
        for S in range(10 if SHF else 11, 12): step(S, True, waits=it)
        a(f"""
        s_add_u32 s22, s22, 1
        s_branch {name}_gloop
        """)
        a.label(f"{name}_fin")
        if os.environ.get("ESTAMP"): fstamp(4)
        cnts.update(snap)
        gen_final(a, cnts, dict(ACC=ACC, SEL=SEL, IDX=IDX, VL16=VL16, VPW=VPW, TMP=TMP, DAT=DAT, SCH=SCH, NS=NS, LSF=LSF), fstamp)
        fstamp(7)
        gen_red(a, name, VL16, fstamp, fstamp_out)
        return
    for S in range(9, 12): step(S, True, waits=it)
    a(f"""
    s_add_u32 s22, s22, 1
    s_cmp_lt_u32 s22, 8
    s_cbranch_scc1 {name}_gloop
    """)
    if os.environ.get("ESTAMP"): fstamp(4)
    step(12, True, last=True)
    PMAPTXT = f"v_lshrrev_b32 v{VPW}, 2, v{VL16}"
    if PMAP: PMAPTXT += f"\nv_and_b32 v{DAT}, 128, v{VPW}\nv_add_u32 v{VPW}, v{VPW}, v{DAT}"
    a.label(f"{name}_epi")
    a('s_nop 7')
    if os.environ.get("ESTAMP"): fstamp(3)
    rstamp()
    stamp()
    a(f"""
    s_lshl_b32 s24, s36, 16
    s_and_b32 s25, s36, 0xffff0000
    s_lshl_b32 s26, s37, 16
    s_and_b32 s27, s37, 0xffff0000
    s_lshl_b32 s28, s38, 16
    s_and_b32 s29, s38, 0xffff0000
    s_lshl_b32 s30, s39, 16
    s_and_b32 s31, s39, 0xffff0000
    s_mov_b32 s40, {f32bits(-0.1029432397):#x}
    s_mov_b32 s41, {f32bits(-2.302208198):#x}
    s_waitcnt vmcnt(0)
    v_mov_b32 v{TMP}, s41
    {PMAPTXT}
    s_lshl_b32 s35, s33, 16
    s_lshl_b32 s42, s34, 15
    s_add_u32 s35, s35, s42
    s_lshl_b32 s42, s3, 12
    s_add_u32 s35, s35, s42
    s_add_u32 s35, s35, {WS_PART}
    """)
    for tp in range(8):
        X = DAT; E = DAT + 8; S = W + 2 * (tp & 1)
        for h in range(2):
            t = 2 * tp + h
            for r in range(4): a(f"v_add_f32 v{X+4*h+r}, s{24+r}, v{ACC+4*t+r}")
        for r in range(8): a(f"v_mul_f32 v{E+r}, v{X+r}, v{X+r}")
        for r in range(8): a(f"v_fma_f32 v{E+r}, v{E+r}, s40, v{TMP}")
        for r in range(8): a(f"v_mul_f32 v{E+r}, v{E+r}, v{X+r}")
        for r in range(8): a(f"v_exp_f32 v{E+r}, v{E+r}")
        for r in range(8): a(f"v_mul_f32 v{X+r}, s{28+(r&3)}, v{X+r}")
        for r in range(8): a(f"v_add_f32 v{E+r}, 1.0, v{E+r}")
        for r in range(8): a(f"v_rcp_f32 v{E+r}, v{E+r}")
        a("s_nop 0")
        for h in range(2):
            a(f"v_mul_f32 v{S+h}, v{X+4*h}, v{E+4*h}")
        for r in range(1, 4):
            for h in range(2):
                a(f"v_fma_f32 v{S+h}, v{X+4*h+r}, v{E+4*h+r}, v{S+h}")
        for h in range(2):
            a(f"buffer_store_dword v{S+h}, v{VPW}, s[12:15], s35 offen offset:{(tp*512+h*128) if PMAP else (2*tp+h)*256}{PSF}")
    fstamp(7)
    fstamp_out(VL16)
```

```python
import sys, os, re
from gen import Asm, kernel_header, kernel_desc, srd, build, f32bits, WS_BYTES
import gen2i as gen2
from gen2i import SLS, WS_W1R, WS_SCHED, WS_PART, WS_PNN, WS_TABR, WS_DBG, Cnt

B, F, D, V, H = 16384, 100, 128, 1000, 512
gen2.PMAP = True
gen2.PSF = os.environ.get("PSF", " sc1")
K1_LDS = 163840
ROWB = 144
SC = 144256
FLAG = 163712
R1 = 1001 * 144
assert R1 + 19 * 1024 <= FLAG and SC + 16384 <= FLAG and SC >= R1
NDA = 36
WS_TB2 = 0x0E80000
K1ABL = set(os.environ.get("K1ABL", "").split(","))
STAMP1 = False
SCHED = os.environ.get("SCHED", "mask")
STF = os.environ.get("STF", " sc1")

TILES = []
for c in range(4):
    for r in range(c + 1): TILES.append((r, c))
for r in range(4):
    for c in range(4, 7): TILES.append((r, c))
TILES += [(4, 4), (4, 5), (4, 6), (5, 5), (5, 6), (6, 6)]
NEED = {}; REL = {}
for t, (r, c) in enumerate(TILES):
    for k in (r, c):
        NEED.setdefault(k, t); REL[k] = t


def gen_k1(a, name):
    kernel_header(a, name)
    LANE = 255; L16 = 254; VF1 = 253; VFA = 252; VT = 251
    uid = [0]
    XST = os.environ.get("XST", "")
    def stamp(k):
        if XST and LANE == 8 and k in (3, 4, 5): fstamp({3: 4, 5: 6, 4: 7}[k], True)
    def fstamp(k, x=False):
        if not STAMP1: return
        if XST and not x and k in (4, 6, 7): return
        a("s_memrealtime s[94:95]" if os.environ.get("RT") else "s_memtime s[94:95]")
        a("s_waitcnt lgkmcnt(0)")
        a(f"s_mov_b32 s{86+k if k < 8 else 89+k}, s94")
    def rstamp(k):
        if not STAMP1 or not os.environ.get("RTX"): return
        a("s_memrealtime s[94:95]")
        a("s_waitcnt lgkmcnt(0)")
        a(f"s_mov_b32 s{86+k if k < 8 else 89+k}, s94")
    def fstamp_out(vl16):
        if not STAMP1: return
        a(f"""
        s_barrier
        s_lshl_b32 s94, s2, 3
        s_add_u32 s94, s94, s3
        s_lshl_b32 s94, s94, 11
        s_add_u32 s94, s94, {WS_DBG}
        v_mov_b32 v1, 0
        """)
        for k in range(12):
            a(f"v_mov_b32 v0, s{86+k if k < 8 else 89+k}")
            a(f"buffer_store_dword v0, v1, s[12:15], s94 offen offset:{4*k}")
    def signal(j):
        a(f"""
        s_mov_b64 exec, 1
        ds_add_u32 v{VFA}, v{VF1} offset:{4*j}
        s_mov_b64 exec, -1
        """)
    def waitflag(j, n):
        uid[0] += 1
        a.label(f"{name}_wf{uid[0]}")
        a(f"""
        ds_read_b32 v{VT}, v{VFA} offset:{4*j}
        s_waitcnt lgkmcnt(0)
        v_readfirstlane_b32 s45, v{VT}
        s_cmp_lt_u32 s45, {n}
        s_cbranch_scc1 {name}_wf{uid[0]}
        """)
    a(f"""
    s_cmp_ge_u32 s2, 256
    s_cbranch_scc1 {name}_end
    s_load_dwordx8 s[4:11], s[0:1], 0
    s_load_dwordx2 s[12:13], s[0:1], 72
    s_load_dwordx2 s[52:53], s[0:1], 64
    v_lshrrev_b32 v1, 6, v0
    v_and_b32 v{LANE}, 63, v0
    s_bfe_u32 s36, s2, 0x10003
    v_readfirstlane_b32 s3, v1
    s_lshr_b32 s37, s2, 4
    s_lshl_b32 s37, s37, 3
    s_and_b32 s38, s2, 7
    s_or_b32 s37, s37, s38
    v_lshlrev_b32 v{L16}, 4, v{LANE}
    v_mov_b32 v{VFA}, {FLAG}
    v_mov_b32 v{VF1}, 1
    v_mov_b32 v40, 0
    v_cmp_gt_u32 vcc, 8, v0
    v_lshl_add_u32 v41, v0, 2, v{VFA}
    s_and_saveexec_b64 s[46:47], vcc
    ds_write_b32 v41, v40
    s_mov_b64 exec, s[46:47]
    v_mul_u32_u24 v6, 57, v{LANE}
    v_lshrrev_b32 v6, 9, v6
    v_mul_u32_u24 v5, 9, v6
    v_sub_u32 v5, v{LANE}, v5
    v_cmp_gt_u32 s[40:41], 8, v5
    v_lshlrev_b32 v5, 4, v5
    v_lshl_add_u32 v83, v6, 8, v5
    s_and_b32 s56, s3, 3
    s_mul_i32 s42, s56, {7*256}
    s_mul_i32 s43, s56, 1008
    s_lshl_b32 s38, s36, 7
    s_add_u32 s42, s42, s38
    s_bitset0_b32 s41, 31
    s_waitcnt lgkmcnt(0)
    """)
    srd(a, 16, 4, B * F * 4)
    srd(a, 20, 6, V * D * 2)
    srd(a, 24, 8, F * F * 2)
    srd(a, 28, 10, F * D * H * 2)
    srd(a, 32, 12, WS_BYTES)
    srd(a, 12, 12, WS_BYTES)
    srd(a, 52, 52, 256)
    a("s_mov_b32 s50, s36")
    fstamp(0)
    a(f"""
    s_cmp_ge_u32 s3, 4
    s_cbranch_scc1 {name}_aux
    """)
    NDB = int(os.environ.get("NDB", "4"))
    NTA = int(os.environ.get("NTA", "7"))
    NSB = 6 - NDB
    W = 0
    FR = 96
    GF = FR + 8 * (NSB + 2 * NDB)
    TA = GF + 8
    IX = TA + 4 * NTA
    GI = IX + 24
    ACC = GI + 1; R0 = ACC + 4; R1_ = R0 + 1; RES = R0 + 2; KG = R0 + 3; VIO = R0 + 4; VGO = R0 + 5
    assert VGO < VT, VGO
    PX = TA; PY = TA + 1; PY2 = TA + 2; GX = TA + 4; I0 = TA + 8; TM = TA + 16; YR = FR
    T21 = [(k1, k2) for k1 in range(6) for k2 in range(k1, 6)]
    WL = [(t, j) for t in T21 for j in range(4)] + [(("G", k), 0) for k in range(6)] + [(("G", "G"), 0)]
    WREG = {x: W + i for i, x in enumerate(WL)}
    GGW = WREG[(("G", "G"), 0)]
    a(f"""
    s_setprio {os.environ.get("MP0", "3")}
    s_lshl_b32 s38, s3, 10
    s_add_u32 m0, s38, {R1}
    v_and_b32 v5, 15, v{LANE}
    """)
    for c in range(5):
        if c == 4: a(f"s_cmp_eq_u32 s3, 3\ns_cselect_b32 s45, 1024, 0\ns_sub_u32 m0, m0, s45\ns_sub_u32 s38, s38, s45")
        a(f"buffer_load_dwordx4 v{L16}, s[24:27], s38 offen lds")
        if c < 4:
            a(f"s_add_u32 m0, m0, 4096")
            a(f"s_add_u32 s38, s38, 4096")
    a(f"""
    v_lshrrev_b32 v6, 4, v{LANE}
    v_and_b32 v8, 3, v{LANE}
    v_bfe_u32 v7, v{LANE}, 2, 2
    v_mul_u32_u24 v{VIO}, 24, v5
    s_movk_i32 s45, 400
    v_lshlrev_b32 v{VGO}, 2, v7
    v_mad_u32_u24 v{VGO}, v8, s45, v{VGO}
    s_lshl_b32 s72, s37, 7
    s_lshl_b32 s73, s3, 5
    s_add_u32 s72, s72, s73
    s_mul_i32 s74, s72, 400
    s_add_u32 s58, s74, {8*1600}
    s_mov_b32 s18, s58
    v_mul_u32_u24 v{PX}, 12, v5
    s_movk_i32 s45, 200
    v_mad_u32_u24 v{PY}, v6, s45, v{PX}
    v_lshlrev_b32 v{PY2}, 1, v7
    v_mad_u32_u24 v{PY2}, v6, s45, v{PY2}
    v_mov_b32 v{GGW}, 0
    s_movk_i32 s45, {96*200}
    """)
    def ixl(slot, off):
        return [f"buffer_load_dwordx4 v[{IX+6*slot}:{IX+6*slot+3}], v{VIO}, s[16:19], s74 offen offset:{off}",
                f"buffer_load_dwordx2 v[{IX+6*slot+4}:{IX+6*slot+5}], v{VIO}, s[16:19], s74 offen offset:{off+16}"]
    def gl(off): return f"buffer_load_dword v{GI}, v{VGO}, s[16:19], s74 offen offset:{off+384}"
    a(f"buffer_load_dwordx3 v[{GX}:{GX+2}], v{PY}, s[24:27], s45 offen")
    a(f"buffer_load_short_d16_hi v{GGW}, v{PY2}, s[24:27], s45 offen offset:192")
    a(f"buffer_load_dwordx4 v[{I0}:{I0+3}], v{VIO}, s[16:19], s74 offen")
    a(f"buffer_load_dwordx2 v[{I0+4}:{I0+5}], v{VIO}, s[16:19], s74 offen offset:16")
    a(f"buffer_load_dword v{I0+6}, v{VGO}, s[16:19], s74 offen offset:384")
    for l in ixl(1, 400) + ixl(2, 800) + ixl(3, 1200) + ixl(0, 1600) + [gl(1600)]: a(l)
    a(f"""
    v_add_u32 v{PX}, {R1}, v{PX}
    s_movk_i32 s45, 4800
    v_mad_u32_u24 v{PX}, v6, s45, v{PX}
    v_mul_u32_u24 v{PY2}, 1200, v5
    v_add_u32 v{PY2}, {R1}, v{PY2}
    v_mad_u32_u24 v{PY}, v6, 48, v{PY2}
    v_lshl_add_u32 v{PY2}, v6, 1, v{PY2}
    v_and_b32 v{KG}, 48, v{LANE}
    s_movk_i32 s57, {ROWB}
    v_cmp_eq_u32 s[60:61], 0, v8
    v_cmp_eq_u32 s[62:63], 1, v8
    v_cmp_eq_u32 s[66:67], 2, v8
    v_cmp_eq_u32 s[68:69], 3, v8
    s_mov_b32 s70, 0x00010001
    s_mov_b32 s71, 0x00010001
    """)
    for i in range(90): a(f"v_mov_b32 v{W+i}, 0")
    if os.environ.get("MPW"): a(f"s_setprio {os.environ.get('MPW')}")
    fstamp(8)
    a(f"s_waitcnt vmcnt(14)")
    fstamp(9)
    a("s_barrier")
    if os.environ.get("MAINONLY"): fstamp(4)
    yq = {}
    for k2 in range(1, 6):
        for q in sorted(set((6 * j + k1) // 4 for j in range(4) for k1 in range(k2))):
            yq[(k2, q)] = YR + 2 * len(yq)
            a(f"ds_read_b64 v[{yq[(k2,q)]}:{yq[(k2,q)]+1}], v{PY} offset:{200*k2+8*q}")
    assert YR + 2 * len(yq) <= TA
    for k in range(6): a(f"ds_read_u16_d16_hi v{WREG[(('G', k), 0)]}, v{PY2} offset:{200*k+192}")
    for dg in (0, 1):
        for ((k1, k2), j) in WL[:84]:
            if (k1 == k2) == dg: a(f"ds_read_u16_d16_hi v{WREG[((k1,k2),j)]}, v{PX} offset:{((6*j+k1)*100+k2)*2}")
    def unp(d, r, hi): return f"v_and_b32 v{d}, 0xffff0000, v{r}" if hi else f"v_lshlrev_b32 v{d}, 16, v{r}"
    a("s_waitcnt vmcnt(9) lgkmcnt(15)")
    n_ = 0
    for ((k1, k2), j) in WL[:90]:
        if k1 == k2: continue
        if k1 == "G": u = unp(TM + (n_ & 1), GX + k2 // 2, k2 & 1)
        else:
            e = 6 * j + k1
            u = unp(TM + (n_ & 1), yq[(k2, e // 4)] + (e % 4) // 2, e & 1)
        a(u); a(f"v_add_f32 v{WREG[((k1,k2),j)]}, v{WREG[((k1,k2),j)]}, v{TM+(n_&1)}"); n_ += 1
    def mad(r): return f"v_mad_u32_u24 v{r}, v{r}, s57, v{KG}"
    for k in range(7): a(mad(I0 + k))
    for s_, m_ in ((3, 68), (2, 66), (1, 62), (0, 60)):
        a(f"v_cndmask_b32 v{GGW+s_}, 0, v{GGW}, s[{m_}:{m_+1}]")
    a("s_waitcnt lgkmcnt(0)")
    fstamp(5)
    if os.environ.get("MPX"): a(f"s_setprio {os.environ.get('MPX')}")
    def fbuf(k, s):
        if k == "G": return GF
        return FR + 8 * k if k < NSB else FR + 8 * (NSB + 2 * (k - NSB) + (s & 1))
    def rr(k, s):
        b = fbuf(k, s); ad = GI if k == "G" else IX + 6 * (s & 3) + k
        return [f"ds_read_b128 v[{b+4*ks}:{b+4*ks+3}], v{ad} offset:{64*ks}" for ks in range(2)]
    def order(s):
        o = []
        for k in range(NSB):
            o += [(k, k2) for k2 in range(k, 6)]
            o.insert(len(o) - 3, ("G", k))
        rest = [(k1, k2) for k1 in range(NSB, 6) for k2 in range(k1, 6)]
        gs = [("G", k) for k in range(NSB, 6)]
        if s == 3:
            GP = [int(x) for x in os.environ.get("GP3", "2,6,11,15").split(",")]
            for g, p in zip(gs, GP): o.insert(p, g)
            o += rest
        else:
            step = len(rest) // len(gs)
            for i, g in enumerate(gs): rest.insert(i * (step + 1) + 1, g)
            o += rest
        if s == 1: o.insert(int(os.environ.get("GGP", "20")), ("G", "G"))
        return o
    TL = [(s, t) for s in range(4) for t in order(s)]
    NT = len(TL); NP = 2 * NT
    assert NT == 109 and len(set(TL)) == 109
    S0 = [min(i for i, x in enumerate(TL) if x[0] == s) * 2 for s in range(4)]
    nb_ = next(b for b in range(NTA) if (NT - b * (NTA - 1)) % NTA == 0)
    na_ = (NT - nb_ * (NTA - 1)) // NTA
    TAB = []
    for i in range(na_ + nb_):
        short = (i + 1) * nb_ // (na_ + nb_) > i * nb_ // (na_ + nb_)
        TAB += list(range(NTA - 1 if short else NTA))
    assert len(TAB) == NT
    def tab(T): return TA + 4 * TAB[T % NT]
    def M_(p):
        T, ks = divmod(p, 2); s, (k1, k2) = TL[T]
        tb = tab(T); A = fbuf(k1, s) + 4 * ks; B_ = fbuf(k2, s) + 4 * ks
        c = "0" if ks == 0 else f"v[{tb}:{tb+3}]"
        return f"v_mfma_f32_16x16x32_bf16 v[{tb}:{tb+3}], v[{A}:{A+3}], v[{B_}:{B_+3}], {c}"
    DBP = [int(x) for x in os.environ.get("DBP", "3,8,19,31").split(",")]
    G_ = 4
    excl = {}; lastop = {}; ops = []
    def op(text, e, l, g, deps=(), w=1, kind="v"):
        d = dict(text=text, e=e, l=l, g=g, deps=list(deps), w=w, kind=kind, at=None, n=len(ops)); ops.append(d); return d
    prevf = None; cnd = None; firstf = {}; lastf = {}; k32 = {}
    for g in range(G_):
        o0 = g * NP
        for s in range(4):
            s1 = s + 1
            rel = {}
            for T, (ss, t) in enumerate(TL):
                if ss == s or t == ("G", "G"):
                    for k in t: rel[k] = max(rel.get(k, 0), 2 * T + 1)
            pl = {k: rel[k] for k in range(NSB)}
            if s == 3: pl["G"] = max(2 * T + 1 for T, (ss, t) in enumerate(TL) if "G" in t)
            for k in range(NSB, 6): pl[k] = S0[s] + DBP[k - NSB]
            used = []
            for k in sorted(pl, key=lambda k_: (pl[k_], str(k_))):
                p = pl[k]
                while p in used: p += 1
                used.append(p)
                excl[o0 + p] = [(x, "lgkm", None) for x in rr(k, s1)]
                op(mad(GI if k == "G" else IX + 6 * (s1 & 3) + k), o0 + S0[s], o0 + p - 1, g, kind="mad")
            p = max(used) + int(os.environ.get("LLD", "2"))
            ll = ixl(s1 & 3, (s + 5) * 400) + ([gl(3200)] if s == 3 else [])
            excl[o0 + p] = [(x, "vm", ("X", g * 4 + s + 5)) for x in ll]
            if s == 3: lastll = p
            lastop[o0 + S0[s] - 1] = [("W", g * 4 + s + 1)]
        inited = set()
        for T, (s, t) in enumerate(TL):
            nxt = min(T2 for T2 in range(T + 1, T + 3 * NTA) if tab(T2) == tab(T))
            if t == ("G", "G"): fl = [(j, j, GGW + j) for j in range(4)]
            elif t[0] == "G": fl = [(s, s, WREG[(t, 0)])]
            else: fl = [(s, j, WREG[(t, j)]) for j in range(4)]
            for (sa, j, wr) in fl:
                deps = [(prevf, 0)] if prevf else []
                if sa not in inited and (g - 1, sa >> 1) in k32: deps.append((k32[(g - 1, sa >> 1)], 0))
                f = op(f"v_{'fmac' if sa in inited else 'mul'}_f32 v{ACC+sa}, v{tab(T)+j}, v{wr}", o0 + 2 * T + 4, o0 + 2 * nxt - 1, g, deps, kind="f")
                f["T"] = o0 // 2 + T
                inited.add(sa); lastf[(g, sa)] = f; prevf = f
        RD0 = o0 + NP + int(os.environ.get("RDL", "30"))
        x = op(f"v_permlane32_swap_b32 v{ACC}, v{ACC+1}", 0, o0 + NP - 8, g, [(lastf[(g, 0)], 2), (lastf[(g, 1)], 2)] + ([(cnd, 0)] if cnd else []), w=2)
        a0 = op(f"v_add_f32 v{R0}, v{ACC}, v{ACC+1}", 0, o0 + NP - 6, g, [(x, 1)]); k32[(g, 0)] = a0
        x = op(f"v_permlane32_swap_b32 v{ACC+2}, v{ACC+3}", 0, RD0, g, [(lastf[(g, 2)], 2), (lastf[(g, 3)], 2)], w=2)
        a1 = op(f"v_add_f32 v{R1_}, v{ACC+2}, v{ACC+3}", 0, RD0 + 2, g, [(x, 1)]); k32[(g, 1)] = a1
        x = op(f"v_permlane16_swap_b32 v{R0}, v{R1_}", 0, RD0 + 4, g, [(a0, 2), (a1, 2)], w=2)
        x = op(f"v_add_f32 v{R0}, v{R0}, v{R1_}", 0, RD0 + 6, g, [(x, 1)])
        for i, r in enumerate((8, 4, 2, 1)):
            x = op(f"v_add_f32_dpp v{R0}, v{R0}, v{R0} row_ror:{r} row_mask:0xf bank_mask:0xf", 0, RD0 + 8 + 2 * i, g, [(x, 2)])
        cnd = op(f"v_cndmask_b32 v{RES}, v{RES}, v{R0}, s[70:71]", 0, RD0 + 16, g, [(x, 1)])
        op("s_lshl_b64 s[70:71], s[70:71], 1", 0, RD0 + 18, g, [(cnd, 1)], kind="s")
        x = op("s_add_u32 s74, s74, 1600", o0 + lastll + 1, o0 + NP - 8, g, kind="c")
        op("s_cmp_lt_u32 s74, s58", 0, o0 + NP - 6, g, [(x, 1)], kind="c")
    for _ in range(3):
        for o in reversed(ops):
            while o["l"] in excl: o["l"] -= 1
            for d, dist in o["deps"]: d["l"] = min(d["l"], o["l"] - dist)
    sched = {}
    for p in range(G_ * NP):
        if p in excl:
            sched[p] = []
            late = [o for o in ops if o["at"] is None and o["l"] <= p and o["g"] < G_ - 1]
            assert not late, (p, [(o["text"], o["e"], o["l"], [(d["text"], d["at"], d["l"]) for d, _ in o["deps"]]) for o in late])
            continue
        cur = []; wsum = len(lastop.get(p, [])) + (2 if p % NP == NP - 1 else 0)
        def eff_l(o):
            l = o["l"]
            while l in excl: l -= 1
            return l
        while True:
            cand = [o for o in ops if o["at"] is None and o["e"] <= p and all(d["at"] is not None and p - d["at"] >= dist for d, dist in o["deps"])]
            if not cand: break
            c = min(cand, key=lambda o: (eff_l(o), o["n"]))
            if wsum >= 2 and eff_l(c) > p: break
            c["at"] = p; cur.append(c); wsum += c["w"]
        sched[p] = cur
        late = [o for o in ops if o["at"] is None and eff_l(o) <= p and o["g"] < G_ - 1]
        assert not late, (p, [(o["text"], o["e"], o["l"], [(d["text"], d["at"], d["l"]) for d, _ in o["deps"]]) for o in late])
    txt = lambda g: [[o["text"] for o in sched[g * NP + p]] for p in range(NP)]
    assert txt(1) == txt(2), "not periodic"
    wt = lambda p: sum(o["w"] for o in sched[p]) + len(excl.get(p, [])) + len(lastop.get(p, [])) + (7 if p % NP == NP - 1 else 0)
    cost = sum(max(16, 8 + 4 * wt(2 * NP + p)) for p in range(NP))
    print("pnn plan: group", cost, "per sample", cost / 4, "empties", sum(max(0, 2 - wt(2 * NP + p)) for p in range(NP)), "VT margin", VT - VGO, file=sys.stderr)
    vmc = Cnt()
    def body(g, emit):
        ws = []
        for p in range(g * NP, (g + 1) * NP):
            PAB = os.environ.get("PAB", "")
            if emit and not ("m" in PAB and p % 2): a(M_(p % NP))
            if emit and "m" in PAB and p % 2: a("s_nop 1")
            for (x, kind, tag) in excl.get(p, []):
                if emit: a(x if not ("d" in PAB and kind == "lgkm") else "s_nop 0")
                if kind == "vm": vmc.issue(tag)
            for o in sched[p]:
                if emit: a(o["text"] if not ("f" in PAB and o["kind"] == "f") else "s_nop 0")
            if emit and "n" in PAB: a("s_nop 0")
            if emit and "N" in PAB: a("s_nop 0\ns_nop 0\ns_nop 0\ns_nop 0")
            for (_, smp) in lastop.get(p, []):
                n = vmc.after(("X", smp)); ws.append(n)
                if emit: a(f"s_waitcnt vmcnt({n}) lgkmcnt(0)")
        return ws
    body(0, False); w1 = body(1, False)
    a("s_barrier")
    fstamp(1); rstamp(10)
    a(f"s_setprio {os.environ.get('MP1', '0')}")
    if os.environ.get("AUXONLY"): a(f"s_waitcnt vmcnt(0) lgkmcnt(0)\ns_branch {name}_k2")
    for i_, k in enumerate(list(range(6)) + ["G"]):
        for l in rr(k, 0): a(re.sub(r", v\d+ offset", f", v{I0+i_} offset", l))
    a(f"s_waitcnt vmcnt({w1[-1]}) lgkmcnt(0)")
    assert w1[-1] == 7, w1
    a.label(f"{name}_loop")
    l0 = len(a.lines)
    w2 = body(2, True); assert w1 == w2
    bl = [l.strip() for l in a.lines[l0:]] + ["s_cbranch"]
    def regs(tok):
        m = re.match(r"v\[(\d+):(\d+)\]", tok)
        if m: return set(range(int(m.group(1)), int(m.group(2)) + 1))
        m = re.match(r"v(\d+)$", tok)
        return {int(m.group(1))} if m else set()
    seq = [(l.split()[0], [regs(t.strip(",")) for t in l.split()[1:]]) for l in bl + bl]
    for i, (o_, rs) in enumerate(seq):
        if not o_.startswith("v_"): continue
        wr = rs[0] | (rs[1] if "swap" in o_ else set())
        for d in range(1, 9):
            if i + d >= len(seq): break
            o2, r2 = seq[i + d]
            if not o2.startswith("v_"): continue
            use = set().union(*r2)
            if "mfma" in o_ and "mfma" not in o2: assert not (wr & use), (i, d, bl[i % len(bl)])
            if "mfma" not in o_ and d <= 2 and ("dpp" in o2 or "swap" in o2 or "mfma" in o2): assert not (wr & use), (i, d, bl[i % len(bl)])
    a(f"s_cbranch_scc1 {name}_loop")
    a("s_nop 7")
    for p in range(3 * NP, 4 * NP):
        for o in sched[p]:
            if o["g"] == 2 and o["kind"] in ("f", "v"):
                if o["kind"] == "v": a("s_nop 1")
                a(o["text"])
    a(f"""
    v_and_b32 v40, 15, v{LANE}
    v_add_u32 v40, -1, v40
    v_cmp_gt_u32 vcc, 8, v40
    s_lshl_b32 s74, s72, 2
    s_lshl_b32 s76, s36, 16
    s_add_u32 s74, s74, s76
    s_add_u32 s74, s74, {WS_PNN}
    v_lshlrev_b32 v40, 4, v40
    v_lshrrev_b32 v41, 5, v{LANE}
    v_lshl_add_u32 v40, v41, 2, v40
    v_bfe_u32 v41, v{LANE}, 4, 1
    v_lshl_add_u32 v112, v41, 3, v40
    s_mov_b64 s[46:47], vcc
    v_mov_b32 v113, v{RES}
    s_mov_b32 s64, 0x40000000
    s_waitcnt vmcnt(0)
    """)
    fstamp(2); rstamp(11)
    fstamp(3)
    if os.environ.get("MAINONLY"):
        a.label(f"{name}_x8")
        fstamp_out(L16)
        a("s_endpgm")
    a(f"s_branch {name}_k2")
    a.label(f"{name}_aux")
    a(f"""
    s_setprio {os.environ.get("AUXPRIO", "0")}
    v_mov_b32 v8, v{LANE}
    v_mov_b32 v9, v{L16}
    v_mov_b32 v10, v{VF1}
    v_mov_b32 v11, v{VFA}
    s_mov_b32 s51, s2
    s_mov_b32 s64, 0
    s_mov_b32 s65, 0
    """)
    LANE = 8; L16 = 9; VF1 = 10; VFA = 11; VT = 12; ZERO = 13; VST = 14; VRD = 15; ONE = VF1; VPF = 7
    E = 40; VSO = 30; LB = 31; SELQ = 0; OHQ = 16; OWQ = 23; LU0 = 54; LU1 = 55
    PK = 64; PM = 71; T0 = 72; T1 = 73; BK = 74; FM = 76; OP = 78; OUT = 80; HD = 84; CB = 85; OWN = 86; RK = 87
    CT = 116; T2 = 117; T3 = 118; AL = 119; FA = 120; TA_ = 121; TB_ = 122; G32 = 123; CH = T3
    K0 = 32; K1 = 33; VW = 34; VWR = 36
    DR = 128; PO = 88; RD = 192; RW = 224; TP = 104
    MT = [32 + 4 * q for q in range(8)] + [88 + 4 * q for q in range(7)] + [124]
    VDA = 35
    a(f"""
    v_mov_b32 v{VDA}, v83
    s_lshr_b32 s72, s2, 3
    s_mul_i32 s72, s72, {NDA}
    s_lshr_b32 s72, s72, 5
    s_lshl_b32 s75, s36, 7
    s_add_u32 s75, s75, {142*7*256}
    s_mov_b32 s76, {142*1008}
    s_lshl_b32 s6, s2, 15
    s_lshl_b32 s7, s56, 13
    s_add_u32 s6, s6, s7
    s_add_u32 s6, s6, {WS_PART}
    s_add_u32 s7, s6, 4096
    s_lshl_b32 s8, s36, 7
    s_add_u32 s8, s8, s37
    s_lshl_b32 s8, s8, 9
    s_add_u32 s8, s8, {WS_PNN}
    """)
    NB1 = int(os.environ.get("NB1", "8"))
    nd = [0]
    DWIN = int(os.environ.get("DWIN", "99"))
    def nvm(): return sum(1 for l in a.lines if l.strip().startswith("buffer_"))
    lastd = [None]
    def adma(n, restore="-1"):
        n = min(n, NDA - nd[0])
        if n <= 0: return False
        uid[0] += 1
        a(f"s_cmp_lg_u32 s64, 0\ns_cbranch_scc1 {name}_nd{uid[0]}")
        a("s_mov_b64 exec, s[40:41]")
        for c in range(n):
            a(f"""
            s_mul_i32 s73, s72, {4*1008}
            s_mul_i32 s74, s72, {4*7*256}
            s_add_u32 s73, s73, s43
            s_add_u32 s74, s74, s42
            s_min_u32 m0, s73, s76
            s_min_u32 s74, s74, s75
            s_add_u32 s72, s72, 1
            {"s_barrier" if nd[0] + c == NB1 else ""}
            {f"s_waitcnt vmcnt({DWIN-1})" if nd[0] + c >= DWIN else ""}
            buffer_load_dwordx4 v{VDA}, s[20:23], s74 offen lds
            s_cmp_eq_u32 s72, {NDA}
            s_cselect_b32 s72, 0, s72
            """)
        a(f"s_mov_b64 exec, {restore}")
        a.label(f"{name}_nd{uid[0]}")
        nd[0] += n
        lastd[0] = nvm()
        return True
    RLMAP = """
    s_lshl_b32 s57, s51, 2
    s_add_u32 s57, s57, s56
    """
    if os.environ.get("RLM", "1") == "1":
        RLMAP = """
        s_lshr_b32 s38, s51, 4
        s_and_b32 s39, s51, 7
        s_sub_u32 s57, 2, s36
        s_lshl_b32 s57, s39, s57
        s_lshl_b32 s37, s36, 5
        s_add_u32 s57, s57, s37
        s_add_u32 s57, s57, s56
        s_mul_i32 s37, s38, 48
        s_add_u32 s37, s37, s57
        s_lshl_b32 s38, s38, 1
        s_lshr_b32 s39, s39, 2
        s_add_u32 s38, s38, s39
        s_add_u32 s38, s38, 768
        s_and_b32 s57, s57, 7
        s_cmp_eq_u32 s57, 2
        s_cselect_b32 s38, s38, 1000
        s_lshl_b32 s39, s36, 1
        s_and_b32 s39, s39, s56
        s_cselect_b32 s57, s38, s37
        """
    a.label(f"{name}_unit")
    a(f"""
    s_bfe_u32 s36, s51, 0x10003
    {RLMAP}
    s_lshr_b32 s37, s51, 4
    s_lshl_b32 s37, s37, 3
    s_and_b32 s38, s51, 7
    s_or_b32 s37, s37, s38
    s_and_b32 s58, s56, 1
    s_lshl_b32 s59, s37, 1
    s_add_u32 s58, s58, s59
    s_lshr_b32 s59, s56, 1
    s_lshl_b32 s60, s36, 1
    s_add_u32 s59, s59, s60
    s_mul_i32 s60, s58, 25600
    s_mul_i32 s61, s59, 96
    s_add_u32 s60, s60, s61
    s_movk_i32 s61, 400
    v_lshrrev_b32 v1, 3, v{LANE}
    v_and_b32 v2, 7, v{LANE}
    v_mul_u32_u24 v0, s61, v1
    v_cmp_gt_u32 s[48:49], 7, v2
    v_lshl_add_u32 v0, v2, 4, v0
    v_and_b32 v5, 15, v{LANE}
    v_and_b32 v6, 48, v{LANE}
    v_lshl_add_u32 v{VPF}, v5, 8, v6
    s_lshr_b32 s44, s37, 1
    s_lshl_b32 s44, s44, 12
    s_lshl_b32 s38, s36, 1
    s_and_b32 s39, s37, 1
    s_add_u32 s38, s38, s39
    s_lshl_b32 s38, s38, 6
    s_add_u32 s44, s44, s38
    s_lshl_b32 s47, s36, 7
    s_add_u32 s47, s47, s37
    s_lshl_b32 s47, s47, 10
    s_add_u32 s47, s47, {WS_TB2}
    s_lshl_b32 s38, s56, 4
    s_lshl_b64 s[4:5], 0xffff, s38
    """)
    IDXP = int(os.environ.get("IDXP", "12"))
    adma(IDXP)
    a(f"""
    s_lshr_b32 s78, s57, 5
    s_bfe_u32 s79, s57, 0x20003
    s_bfe_u32 s80, s57, 0x20001
    s_and_b32 s81, s57, 1
    s_lshl_b32 s77, s78, 2
    s_lshl_b32 s83, s81, 1
    s_add_u32 s77, s77, s83
    s_lshl_b32 s77, s77, 7
    s_lshl_b32 s83, s79, 5
    s_add_u32 s77, s77, s83
    s_lshl_b32 s83, s80, 3
    s_add_u32 s77, s77, s83
    s_lshl_b32 s77, s77, 10
    s_lshl_b32 s82, s78, 12
    s_lshl_b32 s83, s79, 10
    s_add_u32 s82, s82, s83
    s_lshl_b32 s83, s80, 8
    s_add_u32 s82, s82, s83
    s_lshl_b32 s83, s81, 7
    s_add_u32 s82, s82, s83
    s_mov_b32 s84, {2*SLS}
    v_lshrrev_b32 v3, 2, v{LANE}
    v_and_b32 v4, 3, v{LANE}
    v_mul_lo_u32 v{VST}, v3, s84
    v_lshl_add_u32 v{VST}, v4, 4, v{VST}
    s_cmp_ge_u32 s57, 800
    s_cselect_b32 s83, 0x40000000, 0
    v_or_b32 v{VST}, s83, v{VST}
    s_lshl_b32 s61, s56, 12
    s_add_u32 s61, s61, {SC}
    v_and_b32 v3, 3, v3
    v_lshlrev_b32 v{VWR}, 6, v{LANE}
    v_lshl_add_u32 v{VWR}, v3, 4, v{VWR}
    v_add_u32 v{VWR}, s61, v{VWR}
    v_xor_b32 v{VWR+1}, 16, v{VWR}
    v_xor_b32 v{VWR+2}, 32, v{VWR}
    v_xor_b32 v{VWR+3}, 48, v{VWR}
    v_and_b32 v3, 48, v{LANE}
    v_xor_b32 v{VRD}, v3, v{L16}
    v_add_u32 v{VRD}, s61, v{VRD}
    s_mov_b32 s84, 0x05040100
    s_mov_b32 s85, 0x07060302
    """)
    adma(NDA - IDXP)
    fstamp(8)
    a(f"""
    s_cmp_lg_u32 s64, 0
    s_cbranch_scc1 {name}_nsig
    s_waitcnt vmcnt(0)
    s_barrier
    """)
    a.label(f"{name}_nsig")
    fstamp(5)
    a("s_mov_b64 exec, s[48:49]")
    for i in range(8):
        a(f"buffer_load_dwordx4 v[{RW+4*i}:{RW+4*i+3}], v0, s[16:19], s60 offen")
        a(f"s_add_u32 s60, s60, 3200")
    a("s_mov_b64 exec, -1")
    idx0 = nvm() - 8
    if os.environ.get("MAINONLY"): a(f"s_waitcnt vmcnt(0)\ns_branch {name}_x8")
    a(f"s_setprio {os.environ.get('AP0', '1')}")
    if os.environ.get("SKIPWG", ""):
        a(f"""
        s_cmp_eq_u32 s64, 0
        s_cselect_b32 s45, s2, 1000
        s_and_b32 s45, s45, 31
        s_cmp_eq_u32 s45, 5
        s_cselect_b32 s34, 0, s14
        """)
    rl_loads = []
    for h in range(2):
        for j in range(8):
            u = [f"buffer_load_dwordx4 v[{DR+32*h+4*j}:{DR+32*h+4*j+3}], v{L16}, s[28:31], s77 offen offset:{(j&3)*1024}"]
            if j == 3: u.append("s_add_u32 s77, s77, 4096")
            if j == 7 and h == 0: u.append(f"s_add_u32 s77, s77, {128*1024-4096}")
            rl_loads.append(u)
    rl_st = []
    for u in range(4):
        sh, h = divmod(u, 2)
        for r in range(4):
            rl_st.append([f"s_add_u32 s83, s82, {16*r*2*SLS + sh*SLS + h*64}",
                          f"buffer_store_dwordx4 v[{RD+16*u+4*r}:{RD+16*u+4*r+3}], v{VST}, s[32:35], s83 offen{STF}"])
    rl_st = [rl_st[8 * sh + 4 * h + r] for sh in range(2) for r in range(4) for h in range(2)]
    a(f"""
    s_lshl_b32 s61, s56, 12
    s_add_u32 s61, s61, {SC}
    v_lshlrev_b32 v{OWN}, 2, v{LANE}
    v_add_u32 v{OWN}, s61, v{OWN}
    v_and_b32 v{CB}, 0xffffff80, v{OWN}
    v_and_b32 v{G32}, 32, v{LANE}
    s_add_u32 s61, s61, 256
    v_mul_u32_u24 v{LB}, 56, v{LANE}
    v_add_u32 v{LB}, s61, v{LB}
    v_mul_u32_u24 v{VW}, 56, v1
    v_lshl_add_u32 v{VW}, v2, 3, v{VW}
    v_add_u32 v{VW}, s61, v{VW}
    v_add_u32 v2, s59, v2
    v_subrev_u32 v3, 5, v2
    v_min_u32 v2, v2, v3
    v_mov_b32 v{ZERO}, 0
    v_mul_u32_u24 v2, 0x10001, v2
    v_lshlrev_b32 v2, 12, v2
    v_add_u32 v{K0}, {1024 << 16}, v2
    v_add_u32 v{K1}, {2048 | (3072 << 16)}, v2
    v_mov_b32 v{PM}, 0xf00
    s_lshr_b32 s62, s58, 7
    s_mul_i32 s62, s62, 25
    s_mul_i32 s63, s59, 6
    s_add_u32 s62, s62, s63
    s_lshl_b32 s62, s62, 3
    s_bfe_u32 s63, s58, 0x30004
    s_add_u32 s62, s62, s63
    s_lshl_b32 s62, s62, 13
    s_bfe_u32 s63, s58, 0x30001
    s_lshl_b32 s63, s63, 10
    s_add_u32 s62, s62, s63
    s_and_b32 s63, s58, 1
    s_lshl_b32 s63, s63, 9
    s_add_u32 s62, s62, s63
    s_add_u32 s62, s62, {WS_SCHED}
    v_and_b32 v{VSO}, 31, v{LANE}
    v_lshrrev_b32 v3, 5, v{LANE}
    v_lshlrev_b32 v{VSO}, 4, v{VSO}
    v_lshl_add_u32 v{VSO}, v3, 3, v{VSO}
    s_cmp_eq_u32 s59, 3
    s_cselect_b32 s63, 0xf00, 0
    s_movk_i32 s66, 0x7c
    s_mov_b32 s67, 0x001f001f
    s_mov_b32 s75, 0x06040200
    v_mov_b32 v{LU0}, 0x08040201
    v_mov_b32 v{LU1}, 0x80402010
    v_mov_b32 v108, -1
    v_mov_b32 v109, -1
    v_mov_b32 v110, -1
    v_mov_b32 v111, -1
    s_mov_b64 exec, s[48:49]
    """)
    assert SC % 128 == 0 and 3840 % 128 == 0
    for i in range(8):
        b = RW + 4 * i
        a(f"""
        s_waitcnt vmcnt({nvm() - idx0 - i - 1})
        v_lshl_or_b32 v{b}, v{b+1}, 16, v{b}
        v_lshl_or_b32 v{b+1}, v{b+3}, 16, v{b+2}
        v_add_u32 v{b}, v{K0}, v{b}
        v_add_u32 v{b+1}, v{K1}, v{b+1}
        ds_write_b64 v{VW}, v[{b}:{b+1}] offset:{i*8*56}
        """)
    a("s_mov_b64 exec, -1")
    for k in range(7):
        a(f"ds_read_b64 v[{E+2*k}:{E+2*k+1}], v{LB} offset:{8*k}")
    for k in range(7):
        a(f"""
        s_waitcnt lgkmcnt({6-k})
        v_and_b32 v{T0}, s67, v{E+2*k}
        v_and_b32 v{T1}, s67, v{E+2*k+1}
        v_lshl_or_b32 v{T0}, v{T1}, 10, v{T0}
        v_lshlrev_b32_sdwa v{T1}, 5, v{T0} dst_sel:DWORD dst_unused:UNUSED_PAD src0_sel:DWORD src1_sel:WORD_1
        v_or_b32_sdwa v{PK+k}, v{T1}, v{T0} dst_sel:DWORD dst_unused:UNUSED_PAD src0_sel:DWORD src1_sel:WORD_0
        v_perm_b32 v{T0}, v{E+2*k+1}, v{E+2*k}, s75
        v_lshrrev_b32 v{T1}, 3, v{T0}
        v_and_b32 v{T0}, 0x07070707, v{T0}
        v_and_b32 v{SELQ+k}, 0x03030303, v{T1}
        v_perm_b32 v{OHQ+k}, v{LU1}, v{LU0}, v{T0}
        v_add_u32 v{OWQ+k}, v{LU0}, v{OHQ+k}
        """)
    fstamp(11)
    def relayout():
        a(f"""
        s_cmp_ge_u32 s57, 800
        s_cbranch_scc1 {name}_norl
        s_waitcnt vmcnt(0)
        """)
        stamp(5)
        for u in range(4):
            sh, h = divmod(u, 2)
            for c in range(4):
                col = 4 * sh + c; d = col >> 1
                o = PO + 4 * c
                for jj in range(4):
                    a(f"v_perm_b32 v{o+jj}, v{DR+32*h+8*jj+4+d}, v{DR+32*h+8*jj+d}, s{84+(col&1)}")
            for c in range(4):
                o = PO + 4 * c
                a(f"ds_write_b128 v{VWR+c}, v[{o}:{o+3}]")
            for r in range(4):
                a(f"ds_read_b128 v[{RD+16*u+4*r}:{RD+16*u+4*r+3}], v{VRD} offset:{1024*r}")
            if u < 3: a("s_waitcnt lgkmcnt(4)")
        for k in range(7):
            a(f"ds_write_b64 v{LB}, v[{E+2*k}:{E+2*k+1}] offset:{8*k}")
        a("s_waitcnt lgkmcnt(7)")
        a.label(f"{name}_norl")
        a.label(f"{name}_rld")
        a(f"ds_write_b32 v{OWN}, v{ZERO}")
        stamp(4)
    a(f"ds_write_b32 v{OWN}, v{ZERO}")
    if os.environ.get('AP1'): a(f"s_setprio {os.environ.get('AP1', '0')}")
    APZ = int(os.environ.get("APZ", "4"))
    S3Z = int(os.environ.get("S3Z", "10"))
    DSZ = int(os.environ.get("DSZ", "0"))
    def flush_out():
        a(f"v_lshl_or_b32 v{OP}, v{OUT+1}, 16, v{OUT}")
        a(f"v_lshl_or_b32 v{OP+1}, v{OUT+3}, 16, v{OUT+2}")
        a(f"buffer_store_dwordx2 v[{OP}:{OP+1}], v{VSO}, s[32:35], s62 offen{STF}")
        a(f"s_add_u32 s62, s62, 65536")
    RLL = int(os.environ.get("RLL", "1")); RLN = int(os.environ.get("RLN", "2"))
    RL0 = int(os.environ.get("RL0", "12")); RLU = int(os.environ.get("RLU", "2"))
    assert (24 - RL0) * RLU >= 16 and RLL + 16 // RLN <= RL0
    PRI = os.environ.get("PRI", "1000000000000000000001111111")
    assert len(PRI) == 28
    TPZ = int(os.environ.get("TPZ", "5")); tp0 = [None]
    assert TPZ < RL0
    CLZ = [int(x) for x in os.environ.get("CLZ", "9,9,10,10,11,11,12,12,13").split(",")]
    assert len(CLZ) == 9 and max(CLZ) < 24 and min(CLZ) > TPZ
    curp = [os.environ.get('AP0', '1')]
    def setp(p):
        if p != curp[0]: a(f"s_setprio {p}"); curp[0] = p
    mark0 = len(a.lines)
    for k in range(7):
        a(f"v_lshrrev_b32 v{PM}, 4, v{PM}")
        if k < 5: a(f"v_or_b32 v{PM}, 0xf00, v{PM}")
        elif k == 5: a(f"v_or_b32 v{PM}, s63, v{PM}")
        a(f"v_lshlrev_b32 v{BK}, 22, v{PK+k}")
        if k > 0: a(f"v_lshl_or_b32 v{BK}, v{PK+k-1}, 2, v{BK}")
        a(f"v_lshrrev_b32 v{BK+1}, 10, v{PK+k}")
        if k < 6: a(f"v_lshl_or_b32 v{BK+1}, v{PK+k+1}, 10, v{BK+1}")
        for r in range(4):
            z = 4 * k + r
            if z == RL0:
                setp(os.environ.get("RLP", "1"))
                if not os.environ.get("IST"): fstamp(9)
                relayout()
                if not os.environ.get("IST"): fstamp(10)
            setp(PRI[z])
            if True:
                pos = [p for p in range(12) if 0 <= k - 1 + (p >> 2) <= 6]
                a(f"""
                v_ffbl_b32 v{HD}, v{PM}
                v_mul_u32_u24 v{T0}, 5, v{HD}
                v_lshrrev_b64 v[{T0}:{T1}], v{T0}, v[{BK}:{BK+1}]
                v_and_or_b32 v{T0}, v{T0}, s66, v{CB}
                ds_add_rtn_u32 v{RK}, v{T0}, v{ONE}
                ds_wrxchg_rtn_b32 v{CT}, v{OWN}, v{ZERO}
                v_and_b32 v{T2}, 15, v{PM}
                v_bcnt_u32_b32 v{T3}, v{T2}, 0
                v_cmp_eq_u32 vcc, {4-r}, v{T3}
                """)
                fill = []
                if z == 1: fill += [["s_lshl_b32 s45, s2, 8", f"s_add_u32 s45, s45, {WS_TABR}", f"buffer_store_dword v{ZERO}, v{ZERO}, s[12:15], s45 offen sc1"]]
                if z >= RLL: fill += rl_loads[(z - RLL) * RLN:(z - RLL + 1) * RLN]
                if z >= RL0: fill += rl_st[(z - RL0) * RLU:(z - RL0 + 1) * RLU]
                for ci, cz in enumerate(CLZ):
                    if cz != z: continue
                    if ci < 8: fill += [[f"buffer_store_dwordx4 v[108:111], v{L16}, s[12:15], s{6+(ci>>2)} offen offset:{(ci&3)*1024} sc1"]]
                    else: fill += [[f"buffer_store_dwordx2 v[108:109], v{VSO}, s[12:15], s8 offen sc1"]]
                if z == 0:
                    fill += [["s_mov_b64 exec, s[4:5]", f"buffer_load_dwordx4 v[{TP}:{TP+3}], v{VPF}, s[20:23], s44 offen", "s_mov_b64 exec, -1"]]
                    tp0[0] = nvm() + 1
                if z == TPZ:
                    fill = [[f"s_waitcnt vmcnt({nvm() - tp0[0]})", "s_mov_b64 exec, s[4:5]", f"buffer_store_dwordx4 v[{TP}:{TP+3}], v{L16}, s[32:35], s47 offen{STF}", "s_mov_b64 exec, -1"]] + fill
                for u in fill:
                    for l in u: a(l)
                if not fill: a("s_nop 1")
                a(f"""
                v_cndmask_b32 v{AL}, v{PM}, v{T2}, vcc
                s_waitcnt lgkmcnt(0)
                v_cmp_gt_u32 s[68:69], 2, v{CT}
                v_cmp_gt_u32 s[70:71], 2, v{RK}
                """)
                if r == 0 and k > 0: flush_out()
                else: a("s_nop 0")
                a(f"v_lshrrev_b64 v[{FM}:{FM+1}], v{G32}, s[68:69]")
                qs = [q for q in (k + 1, k, k - 1) if 0 <= q <= 6]
                tm = [TA_, TB_, FM + 1]
                for i, q in enumerate(qs): a(f"v_perm_b32 v{tm[i]}, v{FM}, v{FM}, v{SELQ+q}")
                for i, q in enumerate(qs): a(f"v_and_b32 v{tm[i]}, v{tm[i]}, v{OHQ+q}")
                for i, q in enumerate(qs):
                    a(f"v_msad_u8 v{FA}, v{OWQ+q}, v{tm[i]}, {'0' if i == 0 else f'v{FA}'}")
                    if q != k - 1: a(f"v_lshlrev_b32 v{FA}, 4, v{FA}")
                a(f"""
                v_and_b32 v{FA}, v{FA}, v{AL}
                v_cmp_eq_u32 vcc, 0, v{FA}
                v_ffbl_b32 v{CH}, v{FA}
                s_or_b64 vcc, vcc, s[70:71]
                v_cndmask_b32 v{CH}, v{CH}, v{HD}, vcc
                v_lshlrev_b32 v{T0}, v{CH}, v{ONE}
                v_lshl_add_u32 v{T1}, v{CH}, 1, v{LB}
                v_xor_b32 v{PM}, v{PM}, v{T0}
                """)
            off = (k - 1) * 8
            if off < 0:
                a(f"v_subrev_u32 v{T1}, 8, v{T1}"); off = 0
            a(f"ds_read_u16 v{OUT+r}, v{T1} offset:{off}")
        if k == 5:
            a("s_cmp_lg_u32 s59, 3")
            a(f"s_cbranch_scc1 {name}_sdone")
    a.label(f"{name}_sdone")
    a("s_waitcnt lgkmcnt(0)")
    flush_out()
    if os.environ.get("NOSCH"):
        keep = []
        for l in a.lines[mark0:]:
            t = l.strip()
            if t.startswith("v_") or t.startswith("ds_") or t.startswith("buffer_store_dwordx"): continue
            keep.append(l)
        a.lines[mark0:] = keep
    a.label(f"{name}_udone")
    a("s_setprio 0")
    fstamp(1)
    SKIP = os.environ.get("SKIPWG", "")
    a(f"""
    s_waitcnt vmcnt(0)
    """)
    fstamp(2)
    a(f"""
    s_mov_b64 exec, 1
    ds_add_rtn_u32 v{VT}, v{VFA}, v{VF1} offset:20
    v_mov_b32 v0, s51
    s_waitcnt lgkmcnt(0)
    v_readfirstlane_b32 s45, v{VT}
    s_and_b32 s45, s45, 3
    s_cmp_eq_u32 s45, 3
    s_cbranch_scc0 {name}_wdec
    s_mov_b64 exec, 0xffff
    s_lshr_b32 s38, s51, 5
    s_lshl_b32 s39, 1, s51
    {"s_cmp_eq_u32 s34, 0" if SKIP else ""}
    {"s_cselect_b32 s39, 0, s39" if SKIP else ""}
    s_cmp_eq_u32 s64, 0
    s_cselect_b32 s45, 7, 15
    v_and_b32 v1, s45, v{LANE}
    v_cmp_eq_u32 vcc, s38, v1
    v_mov_b32 v2, s39
    v_lshlrev_b32 v0, 2, v{LANE}
    v_cndmask_b32 v2, 0, v2, vcc
    v_mov_b32 v1, v2
    buffer_atomic_or v1, v0, s[52:55], 0 offen sc0
    s_lshl_b32 s45, s2, 8
    s_add_u32 s45, s45, {WS_TABR}
    s_waitcnt vmcnt(0)
    v_or_b32 v1, v1, v2
    v_cmp_ne_u32 vcc, -1, v1
    s_and_b32 s39, vcc_lo, 0xff
    s_cbranch_scc1 {name}_poll
    s_cmp_eq_u32 vcc_lo, 0
    s_cselect_b32 s39, 3, 2
    s_mov_b64 exec, -1
    v_lshlrev_b32 v0, 8, v{LANE}
    v_mov_b32 v1, s39
    s_mov_b32 s38, {WS_TABR}
    """)
    for j in range(4):
        a(f"buffer_store_dword v1, v0, s[12:15], s38 offen sc1")
        if j < 3: a("s_add_u32 s38, s38, 16384")
    a(f"s_branch {name}_go")
    a.label(f"{name}_poll")
    a(f"""
    buffer_load_dword v1, v{ZERO}, s[12:15], s45 offen sc1
    s_add_u32 s65, s65, 1
    s_waitcnt vmcnt(0)
    v_readfirstlane_b32 s39, v1
    s_cmp_lg_u32 s39, 0
    s_cbranch_scc1 {name}_go
    s_cmp_lt_u32 s65, {int(os.environ.get("PLIM", "200"))}
    s_cbranch_scc1 {name}_poll
    buffer_load_dword v1, v0, s[52:55], 0 offen sc1
    s_waitcnt vmcnt(0)
    v_cmp_ne_u32 vcc, -1, v1
    s_mov_b32 s39, 2
    s_and_b32 vcc_lo, vcc_lo, 0xff
    s_cbranch_scc0 {name}_go
    s_ff1_i32_b64 s38, vcc
    s_nop 3
    v_readlane_b32 s39, v1, s38
    s_ff0_i32_b32 s39, s39
    s_lshl_b32 s38, s38, 5
    s_add_u32 s38, s38, s39
    s_andn2_b32 s39, s64, 255
    s_add_u32 s39, s39, 256
    s_or_b32 s38, s38, s39
    s_branch {name}_dec
    """)
    a.label(f"{name}_go")
    a(f"""
    {"buffer_inv sc1" if os.environ.get("LSF", " sc1") == "" else ""}
    s_lshl_b32 s38, s39, 30
    """)
    a.label(f"{name}_dec")
    a(f"""
    v_mov_b32 v1, s38
    s_mov_b64 exec, 1
    ds_write_b32 v{VFA}, v1 offset:24
    """)
    a.label(f"{name}_wdec")
    a(f"""
    s_mov_b64 exec, -1
    ds_read_b32 v{VT}, v{VFA} offset:24
    s_waitcnt lgkmcnt(0)
    v_readfirstlane_b32 s45, v{VT}
    s_cmp_lg_u32 s45, s64
    s_cbranch_scc1 {name}_gotd
    s_sleep 2
    s_branch {name}_wdec
    """)
    a.label(f"{name}_gotd")
    a(f"""
    s_mov_b32 s64, s45
    s_and_b32 s51, s45, 255
    s_mov_b32 s65, 0x10000
    s_bitcmp0_b32 s45, 31
    s_cbranch_scc1 {name}_unit
    s_xor_b32 s44, s50, 1
    s_lshl_b32 s44, s44, 3
    s_add_u32 s44, s44, s56
    s_lshl_b32 s44, s44, 14
    s_add_u32 s44, s44, {WS_TB2}
    s_add_u32 s47, s44, 65536
    """)
    fstamp(3)
    TWIN = int(os.environ.get("TWIN", "4"))
    for q in range(32):
        o, qq = divmod(q, 16)
        d = MT[qq] if o == 0 else 128 + 16 * (qq >> 1) + 8 + 4 * (qq & 1)
        if q >= TWIN: a(f"s_waitcnt vmcnt({TWIN-1})")
        a(f"buffer_load_dwordx4 v[{d}:{d+3}], v{L16}, s[12:15], s{47 if o else 44} offen offset:{(q&3)*1024} sc1")
        if q & 3 == 3: a(f"s_add_u32 s{47 if o else 44}, s{47 if o else 44}, 4096")
    def fstamp2(k):
        fstamp(k)
        if os.environ.get("RTX") == "2" and k in (6, 4): rstamp(10 if k == 6 else 11)
    gen2.gen_k2(a, name, fstamp2, fstamp_out, MT)
    a.label(f"{name}_end")
    a("s_endpgm")
    return (256, 256)

def gen_k3(a, name):
    kernel_header(a, name)
    a(f"""
    s_cmp_ge_u32 s2, 256
    s_cbranch_scc1 {name}_end
    {"s_memrealtime s[44:45]" if os.environ.get("DK3") else ""}
    s_load_dwordx4 s[4:7], s[0:1], 48
    s_load_dwordx2 s[8:9], s[0:1], 72
    v_and_b32 v1, 15, v0
    v_lshrrev_b32 v2, 4, v0
    v_lshlrev_b32 v3, 4, v1
    v_lshl_add_u32 v3, v2, 19, v3
    s_lshl_b32 s3, s2, 8
    s_add_u32 s20, s3, {WS_PART}
    s_waitcnt lgkmcnt(0)
    """)
    srd(a, 12, 8, WS_BYTES)
    srd(a, 16, 6, B * 2)
    srd(a, 24, 4, 2)
    for i in range(8):
        a(f"buffer_load_dwordx4 v[{8+4*i}:{11+4*i}], v3, s[12:15], s20 offen")
        a(f"s_add_u32 s20, s20, 65536")
    a(f"""
    v_lshlrev_b32 v4, 2, v0
    s_add_u32 s21, s3, {WS_PNN}
    s_add_u32 s22, s21, 65536
    v_mov_b32 v5, 0
    buffer_load_dword v40, v4, s[12:15], s21 offen
    buffer_load_dword v41, v4, s[12:15], s22 offen
    buffer_load_ushort v42, v5, s[24:27], 0 offen
    v_lshlrev_b32 v6, 4, v0
    """)
    for i in range(1, 8):
        a(f"s_waitcnt vmcnt({10-i})")
        for r in range(4): a(f"v_add_f32 v{8+r}, v{8+r}, v{8+4*i+r}")
    a(f"""
    ds_write_b128 v6, v[8:11]
    s_waitcnt lgkmcnt(0)
    s_barrier
    v_cmp_gt_u32 vcc, 64, v0
    s_and_saveexec_b64 s[30:31], vcc
    s_cbranch_execz {name}_end
    """)
    for i in range(16):
        a(f"ds_read_b32 v{12+i}, v4 offset:{i*256}")
    a("s_waitcnt lgkmcnt(0)")
    for st in (8, 4, 2, 1):
        for i in range(st): a(f"v_add_f32 v{12+i}, v{12+i}, v{12+i+st}")
    a(f"""
    s_waitcnt vmcnt(0)
    v_add_f32 v40, v40, v41
    v_cvt_pk_bf16_f32 v12, v12, v40
    v_lshlrev_b32 v42, 16, v42
    v_lshlrev_b32 v13, 16, v12
    v_and_b32 v14, 0xffff0000, v12
    v_add_f32 v13, v13, v42
    v_cvt_pk_bf16_f32 v13, v13, v13
    v_lshlrev_b32 v13, 16, v13
    v_add_f32 v13, v13, v14
    v_cvt_pk_bf16_f32 v13, v13, v13
    v_lshlrev_b32 v4, 1, v0
    s_lshl_b32 s3, s2, 7
    buffer_store_short v13, v4, s[16:19], s3 offen
    """)
    if os.environ.get("DK3"):
        sel = [tuple(int(y) for y in x.split(".")) for x in os.environ["DK3"].split(",")]
        assert len(sel) <= 15
        RT = bool(os.environ.get("RT"))
        a(f"""
        s_cmp_lg_u32 s2, 0
        s_cbranch_scc1 {name}_end
        s_load_dwordx2 s[36:37], s[0:1], 64
        s_waitcnt lgkmcnt(0)
        """)
        srd(a, 36, 36, 256)
        a("s_mov_b64 exec, 0xffff\nv_mov_b32 v1, 0\nv_mov_b32 v2, 0")
        for i, (w, k) in enumerate(sel):
            a(f"s_movk_i32 s40, {w*2048+4*k}\ns_movk_i32 s41, {w*2048}\ns_nop 0\nv_writelane_b32 v1, s40, {i}\nv_writelane_b32 v2, s41, {i}")
        a(f"""
        s_mov_b32 s40, {WS_DBG}
        v_mov_b32 v8, 0
        buffer_load_dword v7, v8, s[12:15], s40 offen
        v_mov_b32 v5, 0
        v_mov_b32 v6, 0
        v_mov_b32 v9, 0
        s_mov_b32 s41, 0
        """)
        a.label(f"{name}_dl")
        a(f"""
        buffer_load_dword v3, v1, s[12:15], s40 offen
        buffer_load_dword v4, v2, s[12:15], s40 offen
        s_waitcnt vmcnt(0)
        v_sub_u32 v3, v3, v{7 if RT else 4}
        v_sub_u32 v4, v4, v7
        v_add_u32 v5, v5, v3
        v_min_i32 v6, v6, v4
        v_max_i32 v9, v9, v3
        s_add_u32 s40, s40, 16384
        s_add_u32 s41, s41, 1
        s_cmp_lt_u32 s41, 256
        s_cbranch_scc1 {name}_dl
        v_ashrrev_i32 v5, 8, v5
        """)
        if os.environ.get("DMAX"): a("v_mov_b32 v5, v9")
        if RT:
            a(f"""
            v_sub_u32 v5, v5, v6
            v_sub_u32 v7, s44, v7
            v_sub_u32 v7, v7, v6
            v_cmp_eq_u32 vcc, 15, v0
            v_cndmask_b32 v5, v5, v7, vcc
            """)
        a(f"""
        v_lshlrev_b32 v4, 2, v0
        buffer_store_dword v5, v4, s[36:39], 0 offen
        """)
        if os.environ.get("SPIN"):
            sp = int(os.environ["SPIN"])
            a(f"""
            s_nop 4
            v_readlane_b32 s40, v5, {max(sp, 0)}
            s_lshl_b32 s40, s40, 2
            {"s_mov_b32 s40, 0" if sp < 0 else ""}
            s_min_u32 s40, s40, 40000
            s_add_u32 s40, s40, 20000
            """)
            a.label(f"{name}_sp")
            a(f"""
            s_memrealtime s[42:43]
            s_waitcnt lgkmcnt(0)
            s_sub_u32 s42, s42, s44
            s_cmp_lt_u32 s42, s40
            s_cbranch_scc1 {name}_sp
            """)
    a.label(f"{name}_end")
    a("s_endpgm")
    return 48

if __name__ == "__main__":
    out = sys.argv[1]
    which = sys.argv[2] if len(sys.argv) > 2 else "all"
    if len(sys.argv) > 3 and sys.argv[3] == "stamp": STAMP1 = True
    k1 = ("k1_kernel", gen_k1, 256, 512, K1_LDS)
    k3 = ("k3_kernel", gen_k3, 256, 256, 4096)
    s = build({"all": [k1], "k1": [k1], "dk": [k1, k3]}[which])
    open(out, "w").write(s)
```

```python
import sys, struct, re
from gen import Asm, kernel_header, kernel_desc, srd, build, f32bits, WS_BYTES

B, F, D, V, H = 16384, 100, 128, 1000, 512
SLS = 102656
WS_W1R = 0
WS_SCHED = 0x1000000
WS_PART = 0x1400000
WS_PNN = 0x1C00000
K2_LDS = 131072
SENT = 0xff800001

STAMP = False
PMAP = False
import os
PSF = os.environ.get('PSF', '')
import os
PFD = int(os.environ.get('PFD', '2'))
PFSEL = 's_bfe_u32 s18, s33, 0x40002' if os.environ.get('PFFIX', '1') == '1' else 's_and_b32 s18, s33, 15'
K2PRIO = os.environ.get('K2PRIO', '')
import os
ABL = set(os.environ.get('ABL', '').split(','))
NOPF = os.environ.get('PF', '0') == '0'
WS_DBG = 0x3000000
WS_TABR = 0x0E00000
K2_LDS = 163840

SHF = int(os.environ.get("SHF", "2"))
FSY = os.environ.get("FSY", "1") == "1"
POLL = "ds_read_addtid_b32 v71 offset:8080"
SIGN = "s_mov_b64 exec, 2\nds_add_u32 v69, v68 offset:8064\ns_mov_b64 exec, -1"
APP = os.environ.get("APP", "0") == "1"
if APP: SIGN = "ds_append v71 offset:8080"
RFL = "v_readfirstlane_b32 s36, v71"
FS2 = os.environ.get("FS2", "0") == "1"
if FS2: APP = True; SIGN = "ds_append v71 offset:8080"
SIGB = "ds_append v71 offset:8084"
RFB = "v_readlane_b32 s36, v71, 1"
stubs = []
def chk(name, w="A", inc=True):
    k = len(stubs); stubs.append(w)
    return f"s_cmp_lt_u32 s36, s37\ns_cbranch_scc1 {name}_sp{k}\n{name}_sr{k}:" + (f"\ns_add_u32 s37, s37, {0 if os.environ.get('NOSP') else 512 if APP else 8*0x5555}" if inc else "")
def stub(name, k, w):
    bd = f"s_add_u32 s38, s38, 1\ns_cmp_gt_u32 s38, 5000\ns_cbranch_scc1 {name}_sr{k}" if os.environ.get("SPB") else ""
    return f"""{name}_sp{k}:
    {os.environ.get("SPS", "s_sleep 1")}
    {POLL}
    s_waitcnt lgkmcnt(0)
    {RFB if w == "B" else RFL}
    {bd}
    s_cmp_lt_u32 s36, s37
    s_cbranch_scc1 {name}_sp{k}
    s_branch {name}_sr{k}"""
PRE = False
assert SHF in (2, 4, 6, 8) and (FS2 or SHF == 2)
MW = os.environ.get("MW", "0") == "1"
VLA = os.environ.get("VLA", "0") == "1"
MV = os.environ.get("MV", "1") == "1" and MW
class Cnt:
    def __init__(self): self.n = 0; self.tag = {}; self.done = 0
    def waited(self, n): self.done = max(self.done, self.n - n)
    def issue(self, tag=None):
        self.n += 1
        if tag is not None: self.tag[tag] = self.n
    def after(self, tag):
        if MW and self.tag.get(tag, 0) <= self.done: return None
        return self.n - self.tag[tag] if tag in self.tag else None

def gen_final(a, cnts, R, fstamp, name):
    ACC, SEL, IDX, VL16, VPW, TMP, DAT, SCH, NS, LSF = (R[k] for k in "ACC SEL IDX VL16 VPW TMP DAT SCH NS LSF".split())
    PK = os.environ.get("PK", "1") == "1"
    EPT = [int(x) for x in os.environ.get("EPT", "8,0").split(",")]
    TGAP = int(os.environ.get("TGAP", "3"))
    LAG = int(os.environ.get("LAG", "3"))
    S0 = 10 if SHF else 11
    BLK = int(os.environ.get("BLK", "0")); BULK = BLK > 0
    C2, C1, ONE, W01, W23 = 128, 130, 132, 134, 136
    EB = 140
    NB = 6
    if SHF:
        a(f"""
        s_add_u32 s40, s20, 61440
        s_add_u32 s41, s20, 65536
        s_add_u32 s44, s20, {61440+65536}
        s_add_u32 s45, s20, 131072
        """)
        SB = [[None, 20], [40, 41], [44, 45]]
    else:
        a(f"""
        s_add_u32 s18, s20, 4096
        s_add_u32 s40, s20, 65536
        s_add_u32 s41, s20, {65536+4096}
        """)
        SB = [[20, 18], [40, 41]]
    a(f"""
    s_lshl_b32 s35, s33, 16
    s_lshl_b32 s42, s34, 15
    s_add_u32 s35, s35, s42
    s_lshl_b32 s42, s3, 12
    s_add_u32 s35, s35, s42
    s_add_u32 s35, s35, {WS_PART}
    """)
    setup = [f"v_mov_b32 v{C2}, {f32bits(-0.1029432397):#x}", f"v_mov_b32 v{C2+1}, {f32bits(-0.1029432397):#x}",
             f"v_mov_b32 v{C1}, {f32bits(-2.302208198):#x}", f"v_mov_b32 v{C1+1}, {f32bits(-2.302208198):#x}",
             f"v_mov_b32 v{ONE}, 1.0", f"v_mov_b32 v{ONE+1}, 1.0"] + [f"v_mov_b32 v{W01+r}, s{28+r}" for r in range(4)] + \
            [f"v_lshrrev_b32 v{VPW}, 2, v{VL16}", f"v_and_b32 v{TMP}, 128, v{VPW}", f"v_add_u32 v{VPW}, v{VPW}, v{TMP}"]
    FW = os.environ.get("FW", "1") == "1" and PK
    if FW:
        setup += [f"v_rcp_f32 v{W01+r}, v{W01+r}" for r in range(4)] + [f"v_mov_b32 v{ONE}, 0x7f7fffff", f"v_mov_b32 v{ONE+1}, 0xff7fffff"] + \
                 [f"v_med3_f32 v{W01+r}, v{W01+r}, v{ONE}, v{ONE+1}" for r in range(4)]
    U = [(0, p) for p in range(LAG)]
    for p in range(8):
        U.append((1, p))
        if p + LAG < 8: U.append((0, p + LAG))
    if LAG == 0:
        U = [(0, 0), (0, 1), (0, 2), (1, 0), (1, 1), (1, 2)] + [(h, p) for p in range(3, 8) for h in range(2)]
    assert len(U) == 16 and U[:3] == [(0, 0), (0, 1), (0, 2)]
    if SHF:
        h0 = SHF // 2
        U = [(0, h0), (0, h0 + 1), (0, h0 + 2)] + [(h, p) for p in range(h0 + 3) for h in (1, 2)] + [(h, p) for p in range(h0 + 3, 8) for h in range(3)]
    if PRE:
        assert SHF == 8
        U = [(0, 4), (0, 5), (0, 6)] + [(h, p) for p in range(7) for h in (1, 2)] + [(0, 7), (1, 7), (2, 7)]
    NU = len(U); HL = 2 if SHF else 1
    def tile(n):
        if n < 0: return (16 + n + SHF) % 16, False
        hf, p = U[n >> 1]; return 2 * p + (n & 1), hf == HL
    pos = [0]
    def emit(txt):
        for l in txt.split("\n"):
            if l.strip(): a(l); pos[0] += 1
    def need(kind, tag):
        n = cnts[kind].after(tag)
        if n is not None: emit(f"s_waitcnt {kind}cnt({n})"); cnts[kind].waited(n)
    def need2(tl, tv):
        n = cnts["lgkm"].after(tl); m = cnts["vm"].after(tv)
        emit(f"s_waitcnt lgkmcnt({n})" + (f" vmcnt({m})" if m is not None else "")); cnts["lgkm"].waited(n)
        if m is not None: cnts["vm"].waited(m)
    ops = []
    def pr(x): return f"v[{x}:{x+1}]"
    lastuse = {}
    def add_tile(tt, smpos, k):
        X = ACC + 4 * tt; E = EB + 6 * (k % NB); Q = E + 4
        def o(text, deps, T=False, st=False):
            d = dict(text=text, T=T, deps=list(deps), done=None, ready=smpos + 12, st=st); ops.append(d); return d
        prev = lastuse.get(k % NB, [])
        ex = []; xw = []; rc = []
        for g in range(2):
            x = X + 2 * g; e = E + 2 * g; w = W01 + 2 * g
            if PK:
                m1 = o(f"v_pk_mul_f32 {pr(e)}, {pr(x)}, {pr(x)}", [(p_, 1) for p_ in prev])
                m2 = o(f"v_pk_fma_f32 {pr(e)}, {pr(e)}, {pr(C2)}, {pr(C1)}", [(m1, 2)])
                m3 = o(f"v_pk_mul_f32 {pr(e)}, {pr(e)}, {pr(x)}", [(m2, 2)])
                e0 = o(f"v_exp_f32 v{e}, v{e}", [(m3, 2)], T=True)
                e1 = o(f"v_exp_f32 v{e+1}, v{e+1}", [(m3, 2)], T=True)
                if FW:
                    m4 = m3
                    m5 = o(f"v_pk_fma_f32 {pr(e)}, {pr(e)}, {pr(w)}, {pr(w)}", [(e0, 3), (e1, 3)])
                else:
                    m4 = o(f"v_pk_mul_f32 {pr(x)}, {pr(x)}, {pr(w)}", [(m3, 1)])
                    m5 = o(f"v_pk_add_f32 {pr(e)}, {pr(e)}, {pr(ONE)}", [(e0, 3), (e1, 3)])
                r0 = o(f"v_rcp_f32 v{e}, v{e}", [(m5, 2)], T=True)
                r1 = o(f"v_rcp_f32 v{e+1}, v{e+1}", [(m5, 2)], T=True)
                xw.append(m4); rc += [r0, r1]
            else:
                for u in range(2):
                    m1 = o(f"v_mul_f32 v{e+u}, v{x+u}, v{x+u}", [(p_, 1) for p_ in prev])
                    m2 = o(f"v_fma_f32 v{e+u}, v{e+u}, v{C2}, v{C1}", [(m1, 2)])
                    m3 = o(f"v_mul_f32 v{e+u}, v{e+u}, v{x+u}", [(m2, 2)])
                    e0 = o(f"v_exp_f32 v{e+u}, v{e+u}", [(m3, 2)], T=True)
                    m4 = o(f"v_mul_f32 v{x+u}, v{x+u}, v{w+u}", [(m3, 1)])
                    m5 = o(f"v_add_f32 v{e+u}, 1.0, v{e+u}", [(e0, 3)])
                    r0 = o(f"v_rcp_f32 v{e+u}, v{e+u}", [(m5, 2)], T=True)
                    xw.append(m4); rc.append(r0)
        if PK:
            q0 = o(f"v_pk_mul_f32 {pr(Q)}, {pr(X)}, {pr(E)}", [(xw[0], 2), (rc[0], 3), (rc[1], 3)] + [(p_, 1) for p_ in prev])
            q1 = o(f"v_pk_fma_f32 {pr(Q)}, {pr(X+2)}, {pr(E+2)}, {pr(Q)}", [(xw[1], 2), (rc[2], 3), (rc[3], 3), (q0, 2)])
            q2 = o(f"v_add_f32 v{Q}, v{Q}, v{Q+1}", [(q1, 2)])
        else:
            q2 = o(f"v_mul_f32 v{Q}, v{X}, v{E}", [(xw[0], 2), (rc[0], 3)] + [(p_, 1) for p_ in prev])
            for r in range(1, 4):
                q2 = o(f"v_fma_f32 v{Q}, v{X+r}, v{E+r}, v{Q}", [(xw[r], 2), (rc[r], 3), (q2, 2)])
        st = o(f"buffer_store_dword v{Q}, v{VPW}, s[12:15], s35 offen offset:{(tt>>1)*512+(tt&1)*128}{PSF}" if not os.environ.get("NOST") else "s_nop 0", [(q2, 2)], st=not os.environ.get("NOST"))
        lastuse[k % NB] = [st]
    lastT = [-100]
    def ok(o_):
        return o_["done"] is None and pos[0] >= o_["ready"] and all(d["done"] is not None and pos[0] - d["done"] >= dist for d, dist in o_["deps"])
    def epi(n, force=False):
        while n > 0:
            if setup:
                emit(setup.pop(0)); n -= 1; continue
            cand = [o_ for o_ in ops if ok(o_)]
            if not cand:
                if force and any(o_["done"] is None for o_ in ops): emit("s_nop 0"); continue
                return
            tc = [o_ for o_ in cand if o_["T"]]; nc = [o_ for o_ in cand if not o_["T"]]
            if tc and (pos[0] - lastT[0] >= TGAP or not nc): c = tc[0]
            else: c = nc[0]
            c["done"] = pos[0]
            if c["T"]: lastT[0] = pos[0]
            emit(c["text"])
            if c["st"]: cnts["vm"].issue(None)
            n -= 1
    kk = 0
    FPRI = [int(x) for x in os.environ.get("FPRI", f"{26-SHF},{40-SHF},{48-SHF}").split(",") if x]
    FPZ = {0: len(FPRI)} if FPRI else {}
    for x in FPRI: FPZ[x] = len(FPRI) - 1 - FPRI.index(x)
    if os.environ.get("FPZ"): FPZ = dict(tuple(int(y) for y in x.split(":")) for x in os.environ["FPZ"].split(","))
    FVP = os.environ.get("FVP", "4")
    FL = int(os.environ.get("FL", "2"))
    J0 = 16 * S0 + SHF
    ring = [DAT + 8 * (J0 % 3)] + [224 + 8 * i for i in range(FL - 2)] + [DAT + 8 * ((J0 + 1) % 3), DAT + 8 * ((J0 + 2) % 3)]
    assert not BULK
    def dbuf(n): return ring[n % (FL + 1)]
    for n in range(2 * NU + FL):
        J = 16 * S0 + SHF + n
        if n in FPZ: emit(f"s_setprio {FPZ[n]}")
        fvl = None
        if n < 2 * NU:
            sreg = SCH + 4 * ((J >> 1) % NS) + 2 * (J & 1)
            if BULK and n >= 2 * NS: sreg = 176 + 4 * ((n >> 1) - NS) + 2 * (J & 1)
            d = dbuf(n)
            if n % 2 == 1 and (n >> 1) + NS < NU:
                Pn = (J >> 1) + NS; slot = SCH + 4 * (Pn % NS)
                hf, p = U[(n >> 1) + NS]
                fvl = (f"buffer_load_dwordx4 v[{slot}:{slot+3}], v{VL16}, s[12:15], s{SB[hf][p >> 2]} offen offset:{(p&3)*1024}{LSF}", Pn)
            for hh in range(2):
                epi(EPT[hh])
                if hh == 0 and J % 2 == 0: need("vm", ("s", J >> 1))
                if FSY and (n, hh) == (3, 1): emit(POLL); cnts["lgkm"].issue(None)
                if FSY and (n, hh) == (6, 0): assert U[2][0] == 0 and FL == 2; emit(chk(name, "B" if FS2 else "A", False))
                for h in (2 * hh, 2 * hh + 1):
                    emit(f"v_lshlrev_b32_sdwa v{d+2*h}, 3, v{sreg+(h>>1)} dst_sel:DWORD dst_unused:UNUSED_PAD src0_sel:DWORD src1_sel:WORD_{h&1}")
                if hh and fvl and FVP == "3": emit(fvl[0]); cnts["vm"].issue(("s", fvl[1]))
                if len(EPT) > 2: epi(EPT[2 + hh])
                for h in (2 * hh, 2 * hh + 1):
                    emit(f"ds_read_b64 v[{d+2*h}:{d+2*h+1}], v{d+2*h}")
                    cnts["lgkm"].issue(("r", J))
            if fvl and FVP == "4": emit(fvl[0]); cnts["vm"].issue(("s", fvl[1]))
            if len(EPT) > 4: epi(EPT[4])
        else: epi(sum(EPT))
        if n - FL < -2: continue
        t = J - FL; dt = dbuf(n - FL); tt, hf = tile(n - FL)
        if MV and J % 2 and os.environ.get("FMV", "1") == "1": need2(("r", t), ("s", (J + 1) >> 1))
        else: need("lgkm", ("r", t))
        emit(f"v_smfmac_f32_16x16x64_bf16 v[{ACC+4*tt}:{ACC+4*tt+3}], v[{SEL}:{SEL+3}], v[{dt}:{dt+7}], v{IDX}")
        p0 = pos[0]
        if fvl and FVP == "5": emit(fvl[0]); cnts["vm"].issue(("s", fvl[1]))
        if FSY and n == 5: emit(RFB if FS2 else RFL)
        if hf:
            add_tile(tt, pos[0], kk); kk += 1
    if os.environ.get("ESTAMP") and not os.environ.get("NO3"): fstamp(3)
    left = sum(o_["done"] is None for o_ in ops)
    print("final: epilogue ops left after gather:", left, file=sys.stderr)
    epi(10000, force=True)
    assert all(o_["done"] is not None for o_ in ops) and kk == 16

def gen_red(a, name, VL16, fstamp, fstamp_out):
    LD = 176; VA = 192; VS = 193; P0 = 194; P1 = 195; B2 = 196; T0 = 197; T1 = 198; AB = 199; SUM = 200; PS = 201; RV = 208; FO = 216
    MSK = os.environ.get("MSK", "1") == "1"
    def rows(m=False):
        for i in range(4):
            if m: a(f"s_mov_b64 exec, s[{20+2*i}:{21+2*i}]")
            a(f"buffer_load_dwordx4 v[{LD+4*i}:{LD+4*i+3}], v{VA}, s[12:15], s{60+i} offen {os.environ.get('RF', 'sc1')}")
    def pnn(m=False):
        if m: a("s_mov_b64 exec, s[28:29]")
        a(f"buffer_load_dword v{P0}, v{VS}, s[12:15], s66 offen sc1")
        a(f"buffer_load_dword v{P1}, v{VS}, s[12:15], s67 offen sc1")
        if m: a("s_mov_b64 exec, -1")
    def fold(n0):
        a(f"s_waitcnt vmcnt({n0+2})")
        for r in range(4): a(f"v_add_f32 v{FO+r}, v{LD+r}, v{LD+4+r}")
        a(f"s_waitcnt vmcnt({n0})")
        for r in range(4): a(f"v_add_f32 v{FO+4+r}, v{LD+8+r}, v{LD+12+r}")
        for r in range(4): a(f"v_add_f32 v{FO+r}, v{FO+r}, v{FO+4+r}")
        a(f"""
        s_nop 0
        v_permlane32_swap_b32 v{FO}, v{FO+1}
        v_permlane32_swap_b32 v{FO+2}, v{FO+3}
        v_add_f32 v{FO}, v{FO}, v{FO+1}
        v_add_f32 v{FO+2}, v{FO+2}, v{FO+3}
        s_nop 1
        v_permlane16_swap_b32 v{FO}, v{FO+2}
        s_nop 0
        v_add_f32 v{FO}, v{FO}, v{FO+2}
        """)
    def params(blk, w):
        a(f"""
        s_lshl_b32 s68, {blk}, 8
        s_add_u32 s66, s68, {WS_PNN}
        s_add_u32 s67, s66, 65536
        s_add_u32 s60, s68, {WS_PART}
        s_lshr_b32 s68, s68, 1
        """)
        if w: a(f"s_lshl_b32 s61, {w}, 20\ns_add_u32 s60, s60, s61")
        a(f"""
        s_add_u32 s61, s60, {4*65536}
        s_add_u32 s62, s60, {8*65536}
        s_add_u32 s63, s60, {12*65536}
        """)
    def fin():
        a(f"""
        v_cvt_pk_bf16_f32 v{T0}, v{SUM}, v{PS}
        v_lshlrev_b32 v{T1}, 16, v{T0}
        v_and_b32 v{T0}, 0xffff0000, v{T0}
        v_add_f32 v{T1}, v{T1}, v{B2}
        v_cvt_pk_bf16_f32 v{T1}, v{T1}, v{T1}
        v_lshlrev_b32 v{T1}, 16, v{T1}
        v_add_f32 v{T1}, v{T1}, v{T0}
        v_cvt_pk_bf16_f32 v{T1}, v{T1}, v{T1}
        v_lshrrev_b32 v{T0}, 1, v{VS}
        buffer_store_short v{T1}, v{T0}, s[72:75], s68 offen{os.environ.get("OSF", "")}
        """)
    a(f"""
    v_and_b32 v{VS}, 0xf0, v{VL16}
    v_lshrrev_b32 v{T0}, 8, v{VL16}
    v_lshl_or_b32 v{VA}, v{T0}, 16, v{VS}
    v_lshrrev_b32 v{T1}, 1, v{T0}
    v_and_b32 v{T0}, 1, v{T0}
    v_lshl_or_b32 v{VS}, v{T1}, 2, v{VS}
    v_lshl_or_b32 v{VS}, v{T0}, 3, v{VS}
    v_mov_b32 v{B2}, 0
    s_mov_b32 s65, 0
    """)
    params("s2", "s3")
    srd(a, 76, 56, 2)
    srd(a, 72, 58, B * 2)
    if MSK and int(os.environ.get("RPD", "1")) == 1:
        for i in range(5): a(f"s_mov_b64 s[{20+2*i}:{21+2*i}], -1")
    if os.environ.get("SKIPWG"):
        a(f"""
        s_and_b32 s69, s2, 63
        s_lshl_b32 s69, s69, 5
        s_lshr_b32 s70, s2, 6
        s_add_u32 s69, s69, s70
        s_lshl_b32 s69, s69, 2
        s_add_u32 s69, s69, {WS_TABR}
        v_mov_b32 v{AB}, 1
        s_mov_b64 exec, 1
        buffer_store_dword v{AB}, v{B2}, s[12:15], s69 offen sc1
        s_lshr_b32 s69, s2, 5
        s_lshl_b32 s69, s69, 4
        s_lshl_b32 s70, 1, s2
        v_mov_b32 v{AB}, s70
        buffer_atomic_or v{AB}, v{B2}, s[52:55], s69 offen offset:128 sc0
        s_mov_b64 exec, -1
        s_waitcnt vmcnt(0)
        """)
    RPD = int(os.environ.get("RPD", "1"))
    a(f"""
    v_mov_b32 v{FO}, -1
    buffer_load_short_d16_hi v{B2}, v{B2}, s[76:79], 0 offen
    s_bitcmp1_b32 s64, 30
    s_cbranch_scc0 {name}_rd{"0" if RPD > 1 else ""}
    """)
    if os.environ.get("FAILWG"):
        a(f"s_and_b32 s69, s2, 31\ns_cmp_eq_u32 s69, {os.environ['FAILWG']}\ns_cbranch_scc1 {name}_rd{'0' if RPD > 1 else ''}")
    for _ in range(int(os.environ.get("RSL", "0"))): a("s_sleep 127")
    def chk(n):
        a(f"""
        s_waitcnt vmcnt({n})
        v_add_f32 v{PS}, v{P0}, v{P1}
        s_add_u32 s65, s65, 1
        v_add_f32 v{T0}, v{PS}, v{FO}
        v_cmp_u_f32 vcc, v{T0}, v{T0}
        s_cbranch_vccz {name}_rd
        """)
    def msk():
        for i in range(4):
            a(f"""
            v_cmp_u_f32 s[{20+2*i}:{21+2*i}], v{LD+4*i}, v{LD+4*i+1}
            v_cmp_u_f32 vcc, v{LD+4*i+2}, v{LD+4*i+3}
            s_or_b64 s[{20+2*i}:{21+2*i}], s[{20+2*i}:{21+2*i}], vcc
            """)
        a(f"v_cmp_u_f32 s[28:29], v{P0}, v{P1}")
    if RPD > 1:
        rows(); pnn(); fold(2); chk(0)
        a.label(f"{name}_rp")
        msk(); rows(True); pnn(True); fold(2 + 6 * (RPD - 1)); chk(6 * (RPD - 1))
    else:
        a.label(f"{name}_rp")
        rows(MSK); pnn(MSK); fold(2); chk(0)
        if MSK: msk()
    if os.environ.get("RSP"): a(f"s_sleep {os.environ['RSP']}")
    a(f"""
    s_cmp_lt_u32 s65, {int(os.environ.get("RLIM", "300")) * RPD}
    s_cbranch_scc1 {name}_rp
    v_mov_b32 v{FO}, -1
    """)
    if RPD > 1:
        a.label(f"{name}_rd0")
        a("s_waitcnt vmcnt(0)")
    a.label(f"{name}_rd")
    a(f"""
    v_lshrrev_b32 v{T0}, 2, v{VL16}
    s_lshl_b32 s69, s3, 8
    v_add_u32 v{T1}, s69, v{T0}
    ds_write_b32 v{T1}, v{FO}
    v_mov_b32 v{AB}, 0
    s_waitcnt {"" if RPD > 1 else "vmcnt(0) "}lgkmcnt(0)
    """)
    if os.environ.get("RSTAMP"):
        a("s_mov_b32 s96, s65")
        fstamp(8)
        a("s_mov_b32 s98, s96")
        if os.environ.get("SPB"): a("s_mov_b32 s99, s38")
    fstamp_out(VL16)
    a(f"""
    s_barrier
    s_cmp_eq_u32 s3, {9 if os.environ.get("NOAT") else 1}
    s_cbranch_scc1 {name}_rc
    s_cmp_lg_u32 s3, 0
    s_cbranch_scc1 {name}_end
    """)
    for w in range(8): a(f"ds_read_b32 v{RV+w}, v{T0} offset:{256*w}")
    for w in range(1, 8):
        a(f"s_waitcnt lgkmcnt({7-w})")
        a(f"v_add_f32 v{SUM}, v{SUM if w > 1 else RV}, v{RV+w}")
    a(f"""
    v_cmp_u_f32 vcc, v{SUM}, v{SUM}
    s_cbranch_vccnz {name}_rf
    """)
    fin()
    a("s_endpgm")
    a.label(f"{name}_rf")
    a(f"""
    s_lshr_b32 s69, s2, 5
    s_lshl_b32 s69, s69, 4
    s_lshl_b32 s70, 1, s2
    v_mov_b32 v{T1}, s70
    s_mov_b64 exec, 1
    buffer_atomic_or v{T1}, v{AB}, s[52:55], s69 offen offset:136 sc0
    s_waitcnt vmcnt(0)
    """)
    a.label(f"{name}_rc")
    a(f"""
    s_mov_b64 exec, 0xff
    buffer_load_dwordx4 v[{LD}:{LD+3}], v{VL16}, s[52:55], 0 offen offset:128 sc1
    s_waitcnt vmcnt(0)
    v_cmp_ne_u32 vcc, 0, v{LD+2}
    s_cbranch_vccz {name}_end
    v_cmp_ne_u32 vcc, -1, v{LD}
    s_cbranch_vccnz {name}_end
    v_mov_b32 v{AB}, v{LD+2}
    s_mov_b64 exec, -1
    v_lshlrev_b32 v{T1}, 3, v{VL16}
    s_mov_b32 s69, {WS_TABR}
    buffer_load_dwordx4 v[{LD}:{LD+3}], v{T1}, s[12:15], s69 offen sc1
    s_waitcnt vmcnt(0)
    v_min3_u32 v{T1}, v{LD}, v{LD+1}, v{LD+2}
    v_min_u32 v{T1}, v{T1}, v{LD+3}
    v_cmp_eq_u32 vcc, 0, v{T1}
    s_cbranch_vccnz {name}_end
    """)
    a.label(f"{name}_rn")
    a(f"""
    v_cmp_ne_u32 vcc, 0, v{AB}
    s_cbranch_vccz {name}_end
    s_ff1_i32_b64 s69, vcc
    s_mov_b32 m0, s69
    s_nop 3
    v_readlane_b32 s70, v{AB}, s69
    s_ff1_i32_b32 s71, s70
    s_bitset0_b32 s70, s71
    s_nop 3
    v_writelane_b32 v{AB}, s70, m0
    s_lshl_b32 s69, s69, 5
    s_add_u32 s69, s69, s71
    """)
    params("s69", None)
    pnn()
    a("s_mov_b32 s65, 0")
    a.label(f"{name}_rw")
    rows(); fold(0)
    a(f"s_mov_b32 s70, {SENT:#x}\ns_mov_b64 s[20:21], 0")
    for r in [P0, P1] + list(range(LD, LD + 16)):
        a(f"v_cmp_eq_u32 vcc, s70, v{r}\ns_or_b64 s[20:21], s[20:21], vcc")
    a(f"""
    s_cbranch_scc1 {name}_end
    s_cmp_eq_u32 s65, 0
    s_cselect_b64 vcc, -1, 0
    v_add_f32 v{SUM}, v{SUM}, v{FO}
    v_cndmask_b32 v{SUM}, v{SUM}, v{FO}, vcc
    s_add_u32 s60, s60, {1<<20}
    s_add_u32 s61, s61, {1<<20}
    s_add_u32 s62, s62, {1<<20}
    s_add_u32 s63, s63, {1<<20}
    s_add_u32 s65, s65, 1
    s_cmp_lt_u32 s65, 8
    s_cbranch_scc1 {name}_rw
    v_add_f32 v{PS}, v{P0}, v{P1}
    """)
    fin()
    a(f"s_nop 1\ns_branch {name}_rn")

WL = 144256; VWL = 114
def unp4(d, s): return ["s_bitcmp1_b32 s2, 1", "s_cselect_b32 s23, 0, 16"] + [f"s_lshl_b32 s{d+i}, s{s+i}, s23" for i in range(4)] + [f"s_and_b32 s{d+i}, s{d+i}, 0xffff0000" for i in range(4)]
BIAS = [l.replace("s23", "s83") for l in unp4(80, 24)]
KLD = "s_load_dwordx4 s[56:59], s[0:1], 48\n" + "\n".join(f"s_load_dword s{28+i}, s[10:11], {16*i}" for i in range(4))
def ini(r0, r1): return [f"v_mov_b64 v[{i}:{i+1}], s[{80+(i&2)}:{81+(i&2)}]" for i in range(r0, r1, 2)]
def T(i, ks): return f"v[{128+16*i+4*ks}:{128+16*i+4*ks+3}]"
SSETUP = f"""s_lshr_b32 s79, s2, 1
    s_mul_i32 s77, s79, {SLS}
    s_lshl_b32 s85, s50, 11
    s_xor_b32 s78, s85, 2048
    s_add_u32 s78, s78, s77
    s_add_u32 s77, s77, s85
    s_and_b32 s79, s2, 1
    s_mul_i32 s79, s79, {25*65536}
    s_add_u32 s79, s79, {WS_SCHED}
    s_lshl_b32 s85, s3, 13
    s_add_u32 s79, s79, s85
    s_xor_b32 s85, s3, 4
    s_lshl_b32 s85, s85, 10
    s_min_u32 s85, s85, 7040""".split("\n")
PFJ = int(os.environ.get("PFJ", "-1")); PFO = int(os.environ.get("PFO", "2"))
WPJ = int(os.environ.get("WPJ", "-1")); WPD = int(os.environ.get("WPD", "4"))
SFIN = (["s_min_u32 s18, s77, s78", "s_lshl_b32 s19, s3, 10", "s_and_b32 s19, s19, 3072", "s_add_u32 s18, s18, s19", f"s_add_u32 s18, s18, {4096*WPD}"] if WPJ >= 0 else []) + ["s_add_u32 s21, s77, 12288", "s_add_u32 s19, s78, 12288", "s_mov_b32 s20, s79", "s_lshr_b32 s33, s2, 1", "s_and_b32 s34, s2, 1"]
def vsetup(L, t):
    SEL = 64; IDX = 68; VL16 = 69; VPW = 70; TMP = 71
    return f"""v_and_b32 v{t+1}, 15, v{L}
    v_lshrrev_b32 v{t+2}, 4, v{L}
    v_lshlrev_b32 v{VL16}, 4, v{L}
    v_lshlrev_b32 v{VPW}, 13, v{t+2}
    v_lshl_add_u32 v{VPW}, v{t+1}, 3, v{VPW}
    v_add_u32 v{VPW}, s85, v{VPW}
    v_lshrrev_b32 v{t+4}, 3, v{L}
    v_xor_b32 v{t+4}, v{t+4}, v{t+2}
    v_and_b32 v{t+4}, 1, v{t+4}
    v_bfe_u32 v{t+5}, v{L}, 2, 1
    v_lshl_or_b32 v{t+4}, v{t+4}, 1, v{t+5}
    v_mov_b32 v{t+6}, 0x3f80
    v_cmp_eq_u32 vcc, 0, v{t+4}
    v_cmp_eq_u32 s[68:69], 1, v{t+4}
    v_and_b32 v{t+5}, 3, v{L}
    v_mul_u32_u24 v{IDX}, {os.environ.get("SIK", "0x5555")}, v{t+5}
    v_cndmask_b32 v{SEL}, 0, v{t+6}, vcc
    v_cndmask_b32 v{SEL+1}, 0, v{t+6}, vcc
    v_cndmask_b32 v{SEL+2}, 0, v{t+6}, s[68:69]
    v_cndmask_b32 v{SEL+3}, 0, v{t+6}, s[68:69]
    v_add_u32 v{VWL}, {WL}, v{VL16}
    v_add_u32 v{TMP}, 0x10000, v{VPW}""".split("\n")
def aux_pre(a, L):
    a(f"""
    s_mov_b64 exec, -1
    s_mul_i32 s85, s56, {128*144}
    v_and_b32 v25, 15, v{L}
    v_lshrrev_b32 v26, 4, v{L}
    v_mul_u32_u24 v24, 144, v25
    v_lshl_add_u32 v24, v26, 4, v24
    v_add_u32 v24, s85, v24
    """)
    for l in SSETUP + BIAS: a(l)
    vs = vsetup(L, 24)[2:] + ini(32, 64)
    for i in range(8):
        for ks in range(2): a(f"ds_read_b128 {T(i,ks)}, v24 offset:{2304*i+64*ks}")
        for _ in range(4): a(vs.pop(0))
    while vs: a(vs.pop(0))
    a(f"""
    s_bitcmp1_b32 s56, 1
    s_cselect_b32 s84, s78, s77
    s_lshl_b32 s85, s56, 10
    s_add_u32 m0, s85, {WL}
    s_and_b32 s85, s85, 1024
    s_add_u32 s84, s84, s85
    """)
    for q in range(int(os.environ.get("WPF", "4"))):
        a(f"s_add_u32 s85, s84, {4096*q}\nbuffer_load_dwordx4 v[88:91], v69, s[12:15], s85 offen sc1")

def gen_k2(a, name, fstamp, fstamp_out, tail):
    ACC = 0; SEL = 64; IDX = 68; VL16 = 69; VPW = 70; TMP = 71
    W = 72; DAT = 88; PB = 112; SCH = 116
    NS = 3
    LSF = os.environ.get("LSF", " sc1")
    def rstamp(): pass
    def stamp(fixed=None): return False
    def T(i, ks): return f"v[{128+16*i+4*ks}:{128+16*i+4*ks+3}]"
    def wld(reg, ks, sf): return f"buffer_load_dwordx4 v[{reg}:{reg+3}], v{VL16}, s[12:15], s{21 if ks < 2 else 19} offen offset:{(ks&1)*1024}{sf}"
    WINC = "s_add_u32 s21, s21, 4096\ns_add_u32 s19, s19, 4096"
    TST = os.environ.get("TSTAMP")
    def sched_txt(Pp):
        t = Pp % 8
        slot = SCH + 4 * (Pp % NS)
        x = f"buffer_load_dwordx4 v[{slot}:{slot+3}], v{VL16}, s[12:15], s20 offen offset:{(t&3)*1024}{LSF}"
        if t == 3: x += "\ns_add_u32 s20, s20, 4096"
        if t == 7: x += "\ns_add_u32 s20, s20, 61440"
        return x
    def sched_load(Pp): a(sched_txt(Pp))
    class Tr:
        def __init__(s): s.vm = Cnt(); s.lg = Cnt()
        def __call__(s, txt, tag=None):
            for l in txt.split("\n"):
                l = l.strip()
                if not l: continue
                a(l)
                if l.startswith("buffer_"): s.vm.issue(tag)
                if l.startswith("ds_"): s.lg.issue(tag)
        def wait(s, vm=None, lg=None):
            w = ""
            if vm is not None: w += f" vmcnt({s.vm.after(vm)})"
            if lg is not None: w += f" lgkmcnt({min(15, s.lg.after(lg))})"
            a("s_waitcnt" + w)
    def mf(pb, wb, i, ks, zero): return f"v_mfma_f32_16x16x32_bf16 v[{pb}:{pb+3}], v[{wb+4*ks}:{wb+4*ks+3}], {T(i,ks)}, {'0' if zero else f'v[{pb}:{pb+3}]'}"
    def fin(pb, t, q): return [f"v_cvt_pk_bf16_f32 v{pb}, v{pb}, v{pb+1}", f"v_cvt_pk_bf16_f32 v{pb+1}, v{pb+2}, v{pb+3}",
                               f"ds_write_b64 v{TMP if q == 2 else VPW}, v[{pb}:{pb+1}] offset:{t*128+(q&1)*0x8000}"]
    HR = list(range(SCH, SCH + 12, 2)) + list(range(W, W + 16, 2))
    def produce(e, order, wreg, pre, fillers, hold=0, st=""):
        pend = []; c = 0
        st = dict(tuple(int(y) for y in x.split(":")) for x in os.environ.get(st, "").split(",") if x)
        for n, (p, q) in enumerate(order):
            pb = DAT + 8 * (n % 3)
            for ks in range(4):
                for u in range(2):
                    if c in st: fstamp(st[c])
                    if c in pre: pre.pop(c)()
                    e(mf(pb + 4 * u, wreg[q], 2 * p + u, ks, ks == 0))
                    k = 2
                    if ks >= 1 and pend: e(pend.pop(0)); k = 1
                    while k and fillers and fillers[0][0] <= c: e(*fillers.pop(0)[1:]); k -= 1
                    c += 1
            assert not pend
            for u in range(2):
                t = 2 * p + u; b = pb + 4 * u
                h = HR[2 * n + u] if n < hold else 0
                if n < hold: pend.extend([f"v_cvt_pk_bf16_f32 v{h}, v{b}, v{b+1}", f"v_cvt_pk_bf16_f32 v{h+1}, v{b+2}, v{b+3}", ""])
                else: pend.extend(fin(b, t, q))
        assert not pre
        a("s_nop 1")
        nf = len(fillers)
        while fillers: e(*fillers.pop(0)[1:])
        if nf < 10: a(f"s_nop {9 - nf}")
        while pend: e(pend.pop(0))
        a(f"v_add_u32 v{VPW}, 0x18000, v{VPW}")
    def wrd(e, q, r):
        for ks in range(4): e(f"ds_read_b128 v[{r+4*ks}:{r+4*ks+3}], v{VWL} offset:{4096*q+1024*ks}", ("w", q))
    def bar2():
        if TST: fstamp(9)
        a("s_barrier")
        if TST: fstamp(10)
    a.label(f"{name}_k2")
    e = Tr()
    a(f"s_setprio {os.environ.get('TPA', '1')}")
    W1D = int(os.environ.get("W1D", "1"))
    HOLD = int(os.environ.get("HOLD", "44")); NH = int(os.environ.get("NH", "4")); HST = int(os.environ.get("HST", "2"))
    INV = os.environ.get("INV", "")
    INVT = f"s_cmp_lg_u32 s3, {os.environ.get('INVW', '7')}\ns_cbranch_scc1 {name}_ninv\nbuffer_inv sc1\n{name}_ninv:"
    if INV == "-1": a(INVT)
    for ks in range(4): e(f"buffer_load_dwordx4 v[{4*ks}:{4*ks+3}], v{VL16}, s[12:15], s{77+(ks>>1)} offen offset:{(ks&1)*1024} sc1", ("w", 0))
    for q in range(3):
        e(f"buffer_load_dwordx4 v{VL16}, s[12:15], s84 offen sc1 lds", "dma")
        if q < 2: a("s_add_u32 m0, m0, 4096\ns_add_u32 s84, s84, 4096")
    w1l = [f"buffer_load_dwordx4 v[{16+4*ks}:{19+4*ks}], v{VL16}, s[12:15], s{44+(ks>>1)} offen offset:{(ks&1)*1024} sc1" for ks in range(4)]
    if W1D: a("s_add_u32 s44, s77, 4096\ns_add_u32 s45, s78, 4096")
    if W1D == 1:
        for l in w1l: e(l, ("w", 1))
    ORD = os.environ.get("ORDER", "1sfsfssfs")
    WEND = int(ORD[0]) + sum({"f": 1, "s": 2, "t": 3, "q": 4}[c] for c in ORD[1:]) - 1
    WPRE = SHF > 2 and WEND >= 16 - SHF
    PL = [int(x) for x in os.environ.get("PL", "").split(",") if x]
    if PL:
        assert len(PL) == 40 and PL == sorted(PL) and PL[-1] <= 80 and FSY
        WPRE = SHF > 2 and PL[-2] >= 5 * (16 - SHF); WEND = 14 if PL[-1] > 70 else 13
    late = [sched_txt(i) for i in range(3)] + [wld(W + 4 * ks, ks, " sc1") + ("\n" + WINC if ks == 3 else "") for ks in range(0 if WPRE else 4)]
    LATE = int(os.environ.get("LATE", "64")); LST = int(os.environ.get("LST", "4"))
    a("s_barrier")
    fstamp(4)
    BPOS = int(os.environ.get("BPOS", "36"))
    def p0():
        e.wait(vm=("w", 0))
        if TST == "2": fstamp(5)
    def pb2():
        e.wait(vm="dma"); bar2()
        if not W1D: wrd(e, 1, 16)
    fl = [(LATE + LST * i, l) for i, l in enumerate(late)] + [(1 + i, l) for i, l in enumerate(SFIN + [KLD])]
    if W1D == 2: fl += [(int(os.environ.get("W1S", "3")) * i, l, ("w", 1)) for i, l in enumerate(w1l)]
    fl += [(max(HOLD + HST * t, 8 * (t >> 1) + 17), f"ds_write_b64 v{VPW}, v[{HR[t]}:{HR[t]+1}] offset:{(t&7)*128+(t>>3)*0x8000}") for t in range(2 * NH)]
    assert all(max(HOLD + HST * t, 8 * (t >> 1) + 17) + 4 <= LATE + LST * (t >> 1) for t in range(2 * NH))
    fl = sorted(fl + [(68, l) for l in ini(16, 32)] + [(93 + 2 * (i >> 1), l) for i, l in enumerate(ini(0, 16))], key=lambda x: x[0])
    pre = {0: p0, BPOS: pb2, 64: lambda: e.wait(lg=("w", 2))}
    if W1D:
        assert BPOS < 56 and BPOS != 32
        pre[32] = lambda: e.wait(vm=("w", 1))
        pre[56] = lambda: wrd(e, 2, 0)
    else:
        assert BPOS < 32
        pre[32] = lambda: e.wait(lg=("w", 1))
        pre[48] = lambda: wrd(e, 2, 0)
    if INV and int(INV) >= 0:
        assert int(INV) not in pre and int(INV) > BPOS
        pre[int(INV)] = lambda: a(INVT)
    produce(e, [(p, q) for q in range(3) for p in range(4)], [0, 16, 0], pre, fl, NH, "AST")
    a(f"s_branch {name}_k2j")
    a.label(f"{name}_k2m")
    e = Tr()
    VST, VTA, LN, L16 = 94, 95, 255, 254
    for x, y in ((239, 84), (240, 85), (241, 86), (242, 87), (243, 113)): tail = [l.replace(f"v{x}", f"v{y}") for l in tail]
    fm = [l for l in tail if l.startswith("v_fmac")]; ch = tail[len(fm):]
    assert len(fm) <= 20 and len(ch) == 9 and all(l.startswith("v_fmac_f32 v85,") for l in fm), tail
    fm.sort(key=lambda l: (lambda r: 0 if 208 <= r < 212 else 1 if 192 <= r < 200 else 2)(int(l.split(",")[1].strip(" v"))))
    fsrc = [[int(x.strip(" v")) for x in l.split(",")[1:]] for l in fm]
    assert not any(r in (84, 85, 86, 87) or 94 <= r < 184 or 212 <= r < 248 or r > 251 for x in fsrc for r in x)
    assert not any(208 <= r < 212 for x in fsrc[10:] for r in x) and not any(192 <= r < 200 for x in fsrc[15:] for r in x)
    fm[0] = f"v_fma_f32 v85, v{fsrc[0][0]}, v{fsrc[0][1]}, v240\nv_mov_b32 v84, v239\nv_mov_b32 v86, v241\nv_mov_b32 v113, v243\nv_mov_b32 v112, v{VST}\nv_add_u32 v{VWL}, {WL}, v{L16}"
    fm += [""] * (20 - len(fm))
    def Gt(q, ad):
        return (f"buffer_load_dwordx4 {T(q>>1, 2+(q&1))}, v{ad}, s[12:15], s44 offen offset:{(q&3)*1024}{os.environ.get('TSF2', ' sc1')}" + ("\ns_add_u32 s44, s44, 4096" if q & 3 == 3 else ""), ("t", q >> 2))
    def R(i):
        for ks in range(2): e(f"ds_read_b128 {T(i,ks)}, v{VTA} offset:{2304*i+64*ks}")
    a("s_barrier")
    fstamp(4)
    a(f"""
    s_setprio {os.environ.get("TPM", "0")}
    s_waitcnt vmcnt(0)
    """)
    NB2 = int(os.environ.get("NB2", "6")); ng = 0
    for i, rs in enumerate(((0, 1), (2, 3), (5, 6), (7, 4))):
        e(*Gt(ng, L16)); ng += 1
        R(rs[0]); R(rs[1])
        for k in range(5): a(fm[5 * i + k])
    vs = [l for l in vsetup(LN, 48) if f"v{VWL}," not in l]
    vs = vs[:6] + vs[-1:] + vs[6:-1]
    NV2 = int(os.environ.get("NV2", "7"))
    while ng < NB2 or NV2 > 0:
        if ng < NB2: e(*Gt(ng, L16)); ng += 1
        for _ in range(4):
            if NV2 > 0: a(vs.pop(0)); NV2 -= 1
    a("s_waitcnt lgkmcnt(0)")
    bar2()
    if os.environ.get("TPM2", "2"): a(f"s_setprio {os.environ.get('TPM2', '2')}")
    WR1 = int(os.environ.get("WR1", "1")); WR2 = int(os.environ.get("WR2", "7"))
    wrd(e, 0, 0)
    for l in SFIN: a(l)
    for _ in range(int(os.environ.get("NV3", "6"))):
        if vs: a(vs.pop(0))
    def m0_():
        e.wait(lg=("w", 0))
        if TST == "2": fstamp(5)
    pre = {0: m0_, 8: lambda: e.wait(lg=("w", 1)), 16: lambda: e.wait(lg=("w", 2))}
    for p in range(4): pre[24 * p + 4] = (lambda p_: lambda: e.wait(vm=("t", p_)))(p)
    pre[WR1] = lambda: wrd(e, 1, 16)
    pre[WR2] = lambda: wrd(e, 2, 32)
    GST = int(os.environ.get("GST", "3"))
    vl = [Gt(q, VL16) for q in range(ng, 16)] + [(l,) for l in late]
    fl = [(GST * i,) + x for i, x in enumerate(vl)]
    fl += [(2 * i, l) for i, l in enumerate(vs)]
    assert 2 * len(vs) + 4 < GST * (15 - ng) and 2 * len(vs) < 20
    CH0 = 1
    fl += [(CH0 + 2 * i - 0.5, l) for i, l in enumerate(ch)]
    fl += [(CH0 + 20, f"s_mov_b64 exec, s[46:47]\nbuffer_store_dword v113, v112, s[12:15], s76 offen sc1\ns_mov_b64 exec, -1")]
    assert GST * (len(vl) - 4) > CH0 + 24 or WPRE
    fl += [(CH0 + 22 + i, l) for i, l in enumerate(ini(48, 64))]
    fl += [(77 + 8 * (i >> 3) + 2 * ((i & 7) >> 1), l) for i, l in enumerate(ini(0, 48))]
    fl += [(41, KLD.split("\n")[0])]
    fl.sort(key=lambda x: x[0])
    l0 = len(a.lines)
    produce(e, [(p, q) for p in range(4) for q in range(3)], [0, 16, 32], pre, fl, 0, "MST")
    pos = [[l.strip() for l in a.lines[l0:] if l.strip()].index(c_) for c_ in ch]
    assert all(y - x >= 3 for x, y in zip(pos, pos[1:])), pos
    a.label(f"{name}_k2j")
    if SHF:
        if TST == "2": fstamp(1)
        a(f"""
        s_mov_b32 s22, 0
        s_mov_b32 s32, 0x8000
        s_mov_b32 s23, {sum(1 << (31 - i) for i in range(1, 32, 5)) if MW else 3}
        s_mov_b64 exec, 2
        ds_write_b64 v{VL16}, v[{SEL+2}:{SEL+3}] offset:8064
        s_mov_b64 exec, -1
        s_mov_b32 s37, 0
        {"s_mov_b32 s38, 0" if os.environ.get("SPB") else ""}
        s_mov_b32 m0, 0
        s_waitcnt vmcnt(0) lgkmcnt(0)
        s_barrier
        """)
        fstamp(6)
        if os.environ.get("SIX"): a(f"v_lshrrev_b32 v{DAT}, 7, v{SEL}\nv_lshl_or_b32 v{DAT}, v{SEL+2}, 1, v{DAT}\nv_and_b32 v{IDX}, v{IDX}, v{DAT}")
        W2U = [l.replace("s23", "s35") for l in unp4(28, 28)]
        if PFJ >= 0: W2U += ["s_and_b32 s40, s2, 0xf8", "s_add_u32 s40, s40, s3", "s_mul_i32 s40, s40, 768", f"s_mul_i32 s41, s34, {25*65536}", "s_add_u32 s40, s40, s41", f"s_add_u32 s40, s40, {WS_SCHED + PFO*65536}"]
        for J in range(0 if SHF > 2 else 2):
            d = DAT + 8 * J
            for h in range(4):
                a(f"v_lshlrev_b32_sdwa v{d+2*h}, 3, v{SCH+2*J+(h>>1)} dst_sel:DWORD dst_unused:UNUSED_PAD src0_sel:DWORD src1_sel:WORD_{h&1}")
            for h in range(4):
                a(f"ds_read_b64 v[{d+2*h}:{d+2*h+1}], v{d+2*h}")
        if SHF == 2:
            sched_load(3)
            for l in W2U: a(l)
        if "fix1" in ABL: a(f"v_lshrrev_b32 v{IDX}, 1, v{VL16}")
        if "w128" in ABL: a(f"v_and_b32 v{TMP}, 0x78, v{VPW}\nv_add_u32 v{VPW}, v{VPW}, v{TMP}")
    else:
        a("s_waitcnt vmcnt(11) lgkmcnt(0)")
        pphase(0)
        a("s_waitcnt vmcnt(7)")
        pphase(16)
    PRIOTXT = ""
    if K2PRIO == "hi": PRIOTXT = f"s_cmp_lt_u32 s3, 4\ns_cbranch_scc1 {name}_np\ns_setprio 1\n{name}_np:"
    if K2PRIO == "lo": PRIOTXT = f"s_cmp_ge_u32 s3, 4\ns_cbranch_scc1 {name}_np\ns_setprio 1\n{name}_np:"
    FIN = os.environ.get("FIN", "1") == "1"
    if not SHF:
        if FIN:
            a(f"""
            s_lshl_b32 s24, s36, 16
            s_and_b32 s25, s36, 0xffff0000
            s_lshl_b32 s26, s37, 16
            s_and_b32 s27, s37, 0xffff0000
            s_nop 3
            """)
        else: a("s_nop 7")
        for i in range(64):
            a(f"v_mov_b32 v{ACC+i}, {f's{24+(i&3)}' if FIN else 0}")
        for i in range(24):
            a(f"v_mov_b32 v{DAT+i}, 0")
        a(f"""
        s_mov_b32 s22, 0
        s_mov_b32 s23, 2
        {PRIOTXT}
        s_waitcnt vmcnt(0) lgkmcnt(0)
        s_barrier
        """)
        fstamp(6)
    def k2loop(name, PL, WEND):
        stubs.clear()
        vm = Cnt(); lg = Cnt(); uid = [0]
        cnts = {"vm": vm, "lgkm": lg}
        log = []
        RATE = float(os.environ.get("RATE", "1.9")); START = int(os.environ.get("START", "2")); GAP = int(os.environ.get("GAP", "2"))
        SMPOS = int(os.environ.get("SMPOS", "4"))
        LPRI = [int(x) for x in os.environ.get("LPRI", "8,12,15").split(",") if x]
        LPZ = {int(os.environ.get("LP0", "0")): len(LPRI)} if LPRI else {}
        for x in LPRI: LPZ[x] = len(LPRI) - 1 - LPRI.index(x)
        if os.environ.get("LPZ"): LPZ = dict(tuple(int(y) for y in x.split(":")) for x in os.environ["LPZ"].split(","))
        def op(text, kind="x", needs=(), issues=None):
            return dict(text=text, kind=kind, needs=list(needs), issues=issues)
        def build_step(S, last):
            G = []
            pre_ = S < 0
            j0 = 16 - SHF if pre_ else 0
            WB = W
            for j in range(j0, 16 + (2 if last else 0)):
                J = 16 * S + j + SHF
                t = J - 2; dt = DAT + 8 * (t % 3); tt = t % 16
                smop = op(f"v_smfmac_f32_16x16x64_bf16 v[{ACC+4*tt}:{ACC+4*tt+3}], v[{SEL}:{SEL+3}], v[{dt}:{dt+7}], v{IDX}" if "nosm" not in ABL else "", "sm", [("lgkm", ("r", t))] + ([("vm", ("s", (J + 1) >> 1))] if MV and J % 2 and os.environ.get("MVM", "11111111")[(j >> 1) & 7] == "1" else []))
                if t < 0: smop = op("", "sm")
                if j < 16:
                    sreg = SCH + 4 * ((J >> 1) % NS) + 2 * (J & 1)
                    d = DAT + 8 * (J % 3)
                    for h in range(4):
                        if h == SMPOS: G.append(smop)
                        nv = "nova" in ABL or "hva" in ABL and h & 1
                        G.append(op(f"v_lshlrev_b32_sdwa v{d+2*h}, 3, v{sreg+(h>>1)} dst_sel:DWORD dst_unused:UNUSED_PAD src0_sel:DWORD src1_sel:WORD_{h&1}" if not nv else "",
                                    "va", [("vm", ("s", J >> 1))] if (h == 0 and J % 2 == 0 and "nos" not in ABL and "nosw" not in ABL) else []))
                        G.append(op(f"ds_read_b64 v[{d+2*h}:{d+2*h+1}], v{IDX if 'fix1' in ABL else VL16 if nv or 'fixa' in ABL else d+2*h}" if "nor" not in ABL else "", "rd", [], ("lgkm", ("r", J)) if "nor" not in ABL else None))
                    if J % 2 == 1 and not (last and (j >> 1) + NS >= 8) and "nos" not in ABL:
                        Pn = (J >> 1) + NS
                        tq = Pn % 8; slot = SCH + 4 * (Pn % NS)
                        txt = f"buffer_load_dwordx4 v[{slot}:{slot+3}], v{VL16}, s[12:15], s20 offen offset:{(tq&3)*1024}{LSF}"
                        if tq == 3: txt += "\ns_add_u32 s20, s20, 4096"
                        if tq == 7: txt += "\ns_add_u32 s20, s20, 61440"
                        G.append(op(txt, "vl", [], ("vm", ("s", Pn))))
                        if j == PFJ and S % 3 == 0: G.append(op(f"buffer_load_dword v{TMP}, v{VL16}, s[12:15], s40 offen{LSF}\ns_add_u32 s40, s40, {3*65536}", "vl", [], ("vm", None)))
                        if j == WPJ: G.append(op(f"buffer_load_dword v{TMP}, v{VL16}, s[12:15], s18 offen\ns_add_u32 s18, s18, 4096", "vl", [], ("vm", None)))
                if SMPOS >= 4 or j >= 16: G.append(smop)
            if last: return G
            P = []
            NPT = int(os.environ.get("NPT", "8"))
            for i in range(NPT):
                for ks in range(4):
                    c = "0" if ks == 0 else f"v[{PB}:{PB+3}]"
                    grp = [op(f"v_mfma_f32_16x16x32_bf16 v[{PB}:{PB+3}], v[{WB+4*ks}:{WB+4*ks+3}], {T(i,ks)}, {c}" if "nop" not in ABL else "",
                              "m3" if ks == 3 else "m", [("vm", ("w", S, ks))] if (i == 0 and "now" not in ABL and "noww" not in ABL) else [])]
                    kw = ks if i == NPT - 1 else None
                    if kw is not None and "now" not in ABL:
                        txt = wld(W + 4 * kw, kw, os.environ.get("WSF", LSF))
                        if kw == 3: txt += "\n" + WINC
                        grp.append(op(txt, "vl", [], ("vm", ("w", S + 1, kw))))
                    P.append(grp)
                for g in range(GAP): P.append([])
                P.append([op(f"v_cvt_pk_bf16_f32 v{PB}, v{PB}, v{PB+1}", "cv")])
                P.append([op(f"v_cvt_pk_bf16_f32 v{PB+1}, v{PB+2}, v{PB+3}", "va")])
                if "w128" in ABL:
                    P.append([op(f"ds_write_b128 v{VPW}, v[{PB}:{PB+3}] offset:{(i>>1)*256}" if i & 1 else "", "dw", [], ("lgkm", ("pw", S, i)) if i & 1 else None)])
                else:
                    P.append([op(f"ds_write_b64 v{VPW}, v[{PB}:{PB+1}] offset:{i*128}" if "nodw" not in ABL else "", "dw", [], ("lgkm", ("pw", S, i)) if "nodw" not in ABL else None)])
            P.append([op(f"""s_add_u32 s23, s23, s23
                s_cselect_b32 s35, {(-131072) & 0xffffffff}, s32
                v_add_u32 v{VPW}, s35, v{VPW}""" if MW else f"""s_add_u32 s23, s23, 1
                s_cmp_eq_u32 s23, 5
                s_cselect_b32 s35, {(-131072) & 0xffffffff}, s32
                s_cselect_b32 s23, 0, s23
                v_add_u32 v{VPW}, s35, v{VPW}""", "va")])
            if "nopf" not in ABL and not NOPF:
                P.append([op("PF", "pf")])
            ORDER = os.environ.get("ORDER", "1sfsfssfs")
            if PL:
                flat = [p for p in P if p]
                tail = [x for t_ in flat[7 * NPT:] for x in t_]
                X = {}; jB = 16 - SHF; sg = lambda t_: op(t_, "x", [], ("lgkm", None))
                jt = PL[4] // 5 - 1; late = PL[-1] >= 5 * (15 - SHF) + 4
                VP = os.environ.get("VP", "55555555")
                for i in range(NPT):
                    for k_ in range(5):
                        g_ = flat[7 * i + k_] if k_ < 4 else flat[7 * i + 4] + flat[7 * i + 5] + ([op("A", "chk")] if i == 0 else []) + flat[7 * i + 6]
                        if (i, k_) == (NPT - 1, 4): g_ = g_ + ([sg(SIGB)] if FS2 else [sg(SIGN)] if late else []) + tail
                        sl = PL[5 * i + k_]
                        if pre_: g_ = [x for x in g_ if x["kind"] == "vl" and WPRE]; sl = max(sl, 5 * j0)
                        X[sl] = X.get(sl, []) + g_
                if pre_: X[5 * j0 + 10] = [op("\n".join(W2U))] + X.get(5 * j0 + 10, [])
                assert jt >= 2 and (not FS2 or jt < jB - 3 and PL[4] < 5 * jB and PL[-1] >= 5 * jB + 1)
                out = []; gi = 0
                for jj in range(j0, 16):
                    L = dict(va=[], rd=[], vl=[], sm=[])
                    while not L["sm"]: L[G[gi]["kind"]].append(G[gi]); gi += 1
                    va, rd = L["va"], L["rd"]; x = lambda k_: X.get(5 * jj + k_, []) + (L["vl"] if VP[jj >> 1] == str(k_) else [])
                    if jj in LPZ: out.append(op(f"s_setprio {LPZ[jj]}", "x"))
                    elif pre_ and jj == j0 and LPZ: out.append(op(f"s_setprio {LPZ[max([k_ for k_ in LPZ if k_ < j0] or [max(LPZ)])]}", "x"))
                    out += x(0) + va[:2]
                    if FS2 and jj == jB and not pre_: out.append(op("B", "chk"))
                    out += x(1) + rd[:2] + x(2) + va[2:] + x(3) + rd[2:3]
                    if not pre_ and (jj == jt - 2 or FS2 and jj == jB - 3): out.append(sg(POLL))
                    out += rd[3:]
                    if not FS2 and not late and jj == 15 - SHF: out.append(sg(SIGN))
                    out += x(4) + L["sm"] + (L["vl"] if VP[jj >> 1] == "5" else [])
                    if not pre_ and jj == jt: out.append(op(RFL))
                    if FS2 and not pre_ and jj == jB - 1: out += [op(RFB), sg(SIGN)]
                assert set(VP) <= set("345")
                return out + X.get(80, [])
            if os.environ.get("AUTO"):
                PST, PRT, MG, SG = [float(x) for x in os.environ["AUTO"].split(",")]
                assert SHF == 2 and MW and FSY and not FS2
                flat = [p for p in P if p]
                tilesP = [flat[7 * i:7 * i + 7] for i in range(NPT)]; tail = [x for t_ in flat[7 * NPT:] for x in t_]
                Q = []; gi = 0
                GO = os.environ.get("GO", "aarraarr")
                for jj in range(16):
                    L = dict(va=[], rd=[], vl=[], sm=[])
                    while not L["sm"]: L[G[gi]["kind"]].append(G[gi]); gi += 1
                    if jj in LPZ: Q.append(op(f"s_setprio {LPZ[jj]}", "x"))
                    for c in GO: Q.append(L["va" if c == "a" else "rd"].pop(0))
                    Q[-1]["last"] = jj
                    L["sm"][0]["tile"] = jj
                    Q += L["sm"] + L["vl"] if VLA else L["vl"] + L["sm"]
                cost = lambda o: sum(1 for l in o["text"].split("\n") if l.strip()) + (o["kind"] == "sm")
                out = []; pos = 0; lastM = -1; k = 0; st = 0; p3 = 0; gp = 0
                for qi, g in enumerate(Q):
                    ns = 0
                    for x in Q[qi:]:
                        ns += cost(x)
                        if x["kind"] == "sm": break
                    while k < NPT:
                        if st < 4:
                            if not (gp >= PST + k * PRT and pos - lastM > MG and ns - 1 >= SG): break
                            lastM = p3 = pos
                            for x in tilesP[k][st]: out.append(x); pos += cost(x)
                            st += 1
                        else:
                            if pos - p3 <= 8: break
                            for grp in tilesP[k][4:]: out += grp; pos += 1
                            k += 1; st = 0
                            if k == NPT: out += tail; pos += sum(cost(x) for x in tail)
                    out.append(g); pos += cost(g); gp += cost(g)
                    if g["kind"] == "sm": lastM = pos - 1
                assert k == NPT
                ix = lambda f: [i for i, x in enumerate(out) if f(x)]
                i1 = max(ix(lambda x: x["kind"] == "dw")[-1], ix(lambda x: x.get("last") == 13)[0])
                out.insert(i1 + 1, op(SIGN, "x", [], ("lgkm", None)))
                i0 = ix(lambda x: x["kind"] == "dw")[0]
                out.insert(i0, op("A", "chk"))
                ism = [i for i in ix(lambda x: x["kind"] == "sm") if i < i0][-1]; jt = out[ism]["tile"]
                out.insert(ism + 1, op(RFL))
                assert jt >= 2
                out.insert(ix(lambda x: x.get("last") == jt - 2)[0], op(POLL, "x", [], ("lgkm", None)))
                return out
            if ORDER:
                flat = [p for p in P if p]
                tilesP = [flat[7 * i:7 * i + 7] for i in range(NPT)]; tail = flat[7 * NPT:]
                pre = {}; post = {}
                j = int(ORDER[0])
                for i, c in enumerate(ORDER[1:]):
                    m = tilesP[i]
                    if c == "q":
                        pre[(j, 0)] = m[0]; pre[(j + 1, 0)] = m[1]; pre[(j + 2, 0)] = m[2]; pre[(j + 3, 0)] = m[3]; post[j + 3] = m[4] + m[5] + m[6]; j += 4
                    elif c == "t":
                        pre[(j, 0)] = m[0]; pre[(j + 1, 0)] = m[1]; pre[(j + 2, 0)] = m[2]; pre[(j + 2, 1)] = m[3]; post[j + 2] = m[4] + m[5] + m[6]; j += 3
                    elif c == "f":
                        pre[(j, 0)] = m[0] + m[1]; pre[(j, 1)] = m[2] + m[3]; post[j] = m[4] + m[5] + m[6]; j += 1
                    else:
                        pre[(j, 0)] = m[0]; pre[(j, 1)] = m[1]; pre[(j + 1, 0)] = m[2]; pre[(j + 1, 1)] = m[3]; post[j + 1] = m[4] + m[5] + m[6]; j += 2
                assert j <= 16
                post[j - 1] = post[j - 1] + [x for t_ in tail for x in t_]
                assert j - 1 == WEND
                w0 = min(post); jB = 16 - SHF
                if pre_:
                    p2 = {}
                    for k_ in sorted(pre):
                        k2 = max(k_, (j0, 0))
                        p2[k2] = p2.get(k2, []) + [x for x in pre[k_] if x["kind"] == "vl" and WPRE]
                    pre = p2; post = {j0 + 1: [op("\n".join(W2U))]}
                out = []
                gi = 0
                for jj in range(j0, 16):
                    va = []; rd = []; vl = []; sm = None
                    while True:
                        g = G[gi]; gi += 1
                        if g["kind"] == "va": va.append(g)
                        elif g["kind"] == "rd": rd.append(g)
                        elif g["kind"] == "vl": vl.append(g)
                        elif g["kind"] == "sm": sm = g; break
                    if jj in LPZ: out.append(op(f"s_setprio {LPZ[jj]}", "x"))
                    elif pre_ and jj == j0 and LPZ: out.append(op(f"s_setprio {LPZ[max([k_ for k_ in LPZ if k_ < j0] or [max(LPZ)])]}", "x"))
                    pl = []; po = post.get(jj, [])
                    if FSY and not pre_:
                        if jj == w0 - 2 or FS2 and jj == jB - 3: pl = [op(POLL, "x", [], ("lgkm", None))]
                        if jj == w0: po = [op(RFL)] + po[:2] + [op("A", "chk")] + po[2:]
                        if not FS2:
                            if jj == max(max(post), 15 - SHF): po = po[:3] + [op(SIGN, "x", [], ("lgkm", None))] + po[3:]
                        else:
                            assert w0 < jB - 3 and jB - 1 < WEND
                            if jj == WEND: po = po[:3] + [op(SIGB, "x", [], ("lgkm", None))] + po[3:]
                            if jj == jB - 1: po = [op(RFB), op(SIGN, "x", [], ("lgkm", None))] + po + [op("B", "chk")]
                    if os.environ.get("XN"): out.append(op(os.environ["XN"]))
                    out += pre.get((jj, 0), []) + va[0:2] + rd[0:2] + pre.get((jj, 1), []) + va[2:4] + rd[2:3] + pl + rd[3:4] + ([sm] + vl if VLA else vl + [sm]) + po
                assert gi == len(G) and w0 >= 2
                if "nobar" not in ABL and not FSY: out.append(op("s_barrier", "bar", [("lgkm", ("pw", S, NPT - 1))] if "nodw" not in ABL else []))
                return out
            out = []
            k = 0
            for gi, g in enumerate(G):
                out.append(g)
                while k < len(P) and gi >= START + k * RATE:
                    ism = P[k] and P[k][0]["kind"] in ("m", "m3")
                    nxt = G[gi + 1]["kind"] if gi + 1 < len(G) else None
                    if ism and (g["kind"] == "sm" or nxt == "sm") and gi + 1 < len(G): break
                    out.extend(P[k]); k += 1
            while k < len(P):
                out.extend(P[k]); k += 1
            if "nobar" not in ABL:
                out.append(op("s_barrier", "bar", [("lgkm", ("pw", S, 7))] if "nodw" not in ABL else []))
            return out
        since_m3 = [100]
        def emit_line(txt):
            for l in txt.split("\n"):
                if l.strip():
                    a(l); since_m3[0] += not l.strip().endswith(":")
        def step(S, emit, last=False, waits=None):
            for o in build_step(S, last):
                wt = ""
                for kind, tag in o["needs"]:
                    n = cnts[kind].after(tag)
                    log.append((kind, n))
                    if waits is not None:
                        k2, n2 = next(waits)
                        assert k2 == kind and (n is None or n2 is not None and n2 <= n), (kind, tag, n, n2)
                        n = n2
                    if n is not None: wt += f" {kind}cnt({n})"; cnts[kind].waited(n)
                if emit and wt: emit_line("s_waitcnt" + wt)
                if emit:
                    if o["kind"] == "pf":
                        uid[0] += 1
                        emit_line(f"""s_cmp_gt_u32 s3, 1
                        s_cbranch_scc1 {name}_pf{uid[0]}
                        v_lshlrev_b32 v{TMP}, 2, v{VL16}
                        s_cmp_eq_u32 s3, 0
                        s_cselect_b32 s19, s21, s18
                        buffer_load_dword v{TMP}, v{TMP}, s[12:15], s19 offen""")
                        a.label(f"{name}_pf{uid[0]}")
                        emit_line("s_add_u32 s18, s18, 65536")
                    else:
                        if o["kind"] == "cv" and since_m3[0] < 8:
                            emit_line(f"s_nop {7 - since_m3[0]}")
                        emit_line(chk(name, o["text"], o["text"] == "B" or not FS2) if o["kind"] == "chk" else o["text"])
                        if o["kind"] == "m3": since_m3[0] = 0
                if o["issues"]: cnts[o["issues"][0]].issue(o["issues"][1])
                if o["kind"] == "bar":
                    if emit: stamp()
                    if STAMP: vm.issue(None)
        for S in range(3): step(S, False)
        log.clear()
        for S in range(3, 6): step(S, False)
        steady = list(log); log.clear()
        for S in range(6, 9): step(S, False)
        assert steady == log
        assert all(n is not None for _, n in steady) or ABL != {""} or MW
        keep = dict(cnts); cnts["vm"] = Cnt(); cnts["lgkm"] = Cnt()
        if SHF > 2: step(-1, True)
        else:
            for J in range(8): cnts["lgkm"].issue(("r", J >> 2))
            cnts["vm"].issue(("s", 3))
        if WEND >= 14 or os.environ.get("AUTO"): a("s_waitcnt lgkmcnt(0)"); cnts["lgkm"] = Cnt()
        it = iter(steady)
        for S in range(3): step(S, False, waits=it)
        cnts.update(keep)
        a.label(f"{name}_gloop")
        it = iter(steady)
        LC = MW and APP and FSY and not os.environ.get("NOSP")
        if FIN:
            import copy
            for S in range(9, 10 if SHF else 11): step(S, True, waits=it)
            snap = copy.deepcopy(cnts)
            a(f"""
            {"s_cmpk_eq_u32 s37, 11264" if LC else "s_cmp_eq_u32 s22, 7"}
            s_cbranch_scc1 {name}_fin
            """)
            for S in range(10 if SHF else 11, 12): step(S, True, waits=it)
            a(f"""
            {"" if LC else "s_add_u32 s22, s22, 1"}
            s_branch {name}_gloop
            """)
            if FSY:
                for k, w in enumerate(stubs + ["B" if FS2 else "A"]): a(stub(name, k, w))
            a.label(f"{name}_fin")
            if os.environ.get("ESTAMP"): fstamp(4)
            cnts.update(snap)
            gen_final(a, cnts, dict(ACC=ACC, SEL=SEL, IDX=IDX, VL16=VL16, VPW=VPW, TMP=138, DAT=DAT, SCH=SCH, NS=NS, LSF=LSF), fstamp, name)
            fstamp(7)

    DUP = [k for k in os.environ if k.endswith("_2")]
    if DUP:
        assert SHF == 2 and PL
        a(f"s_cmp_ge_u32 s3, 4\ns_cbranch_scc1 {name}_k2x")
    k2loop(name, PL, WEND)
    a.label(f"{name}_red")
    gen_red(a, name, VL16, fstamp, fstamp_out)
    if DUP:
        a.label(f"{name}_k2x")
        for k in DUP: os.environ[k[:-2]] = os.environ[k]
        PL = [int(x) for x in os.environ["PL"].split(",")]
        assert len(PL) == 40 and PL == sorted(PL) and PL[-1] <= 80
        k2loop(name + "x", PL, 14 if PL[-1] > 70 else 13)
        a(f"s_branch {name}_red")
```

```python
import sys, os, re
from gen import Asm, kernel_header, kernel_desc, srd, build, f32bits, WS_BYTES
import gen2o as gen2
from gen2o import SLS, WS_W1R, WS_SCHED, WS_PART, WS_PNN, WS_TABR, WS_DBG, Cnt

B, F, D, V, H = 16384, 100, 128, 1000, 512
gen2.PMAP = True
gen2.PSF = os.environ.get("PSF", " sc1")
K1_LDS = 163840
ROWB = 144
SC = 144256
SCW = 4608; CN = SC + 4 * SCW
FLAG = 163712
R1 = 1001 * 144
assert R1 + 19 * 1024 <= FLAG and CN + 1024 <= FLAG and CN % 128 == 0 and SC % 64 == 0 and SC >= R1
NDA = 36
WS_TB2 = 0x0E80000
K1ABL = set(os.environ.get("K1ABL", "").split(","))
STAMP1 = False
SCHED = os.environ.get("SCHED", "mask")
STF = os.environ.get("STF", " sc1")

TILES = []
for c in range(4):
    for r in range(c + 1): TILES.append((r, c))
for r in range(4):
    for c in range(4, 7): TILES.append((r, c))
TILES += [(4, 4), (4, 5), (4, 6), (5, 5), (5, 6), (6, 6)]
NEED = {}; REL = {}
for t, (r, c) in enumerate(TILES):
    for k in (r, c):
        NEED.setdefault(k, t); REL[k] = t


def gen_k1(a, name):
    kernel_header(a, name)
    LANE = 255; L16 = 254; VF1 = 253; VFA = 252; VT = 251
    uid = [0]
    XST = os.environ.get("XST", "")
    def stamp(k):
        if XST and LANE == 8 and k in (3, 4, 5): fstamp({3: 4, 5: 6, 4: 7}[k], True)
    def fq(j):
        if not os.environ.get("FQ"): return
        a("s_memtime s[94:95]\ns_waitcnt lgkmcnt(0)")
        k = 2 * j
        a(f"s_mov_b32 s{86+k if k < 8 else 89+k}, s94")
        a("s_memrealtime s[94:95]\ns_waitcnt lgkmcnt(0)")
        k += 1
        a(f"s_mov_b32 s{86+k if k < 8 else 89+k}, s94")
    def fstamp(k, x=False):
        if not STAMP1: return
        if os.environ.get("FQ"):
            FQM = {int(p.split(":")[0]): int(p.split(":")[1]) for p in os.environ["FQ"].split(",")}
            if k in FQM: fq(FQM[k])
            return
        if k >= 100: return
        if XST and not x and k in (4, 6, 7): return
        a("s_memrealtime s[94:95]" if os.environ.get("RT") else "s_memtime s[94:95]")
        a("s_waitcnt lgkmcnt(0)")
        a(f"s_mov_b32 s{86+k if k < 8 else 89+k}, s94")
    def rstamp(k):
        if not STAMP1 or not os.environ.get("RTX"): return
        a("s_memrealtime s[94:95]")
        a("s_waitcnt lgkmcnt(0)")
        a(f"s_mov_b32 s{86+k if k < 8 else 89+k}, s94")
    def fstamp_out(vl16):
        if not STAMP1: return
        if os.environ.get("DBGS"):
            uid[0] += 1
            op = os.environ["DBGS"]
            ks = [int(x) for x in os.environ.get("DBK", "1,2,3,4,6,7,9,10").split(",")]
            a(f"""
            s_barrier
            s_and_b32 s94, s3, 3
            s_cmp_lg_u32 s94, {os.environ.get("DW", "2")}
            s_cbranch_scc1 {name}_dq{uid[0]}
            s_lshr_b32 s94, s3, 2
            s_lshl_b32 s94, s94, 5
            s_mov_b64 exec, 1
            v_mov_b32 v1, 0
            """)
            for i, k in enumerate(ks):
                a(f"s_sub_u32 s95, s{86+k if k < 8 else 89+k}, s86")
                a(f"v_mov_b32 v0, s95")
                a(f"buffer_atomic_{op} v0, v1, s[52:55], s94 offen offset:{4*i}")
                a("s_nop 1")
            a("s_waitcnt vmcnt(0)\ns_mov_b64 exec, -1")
            a.label(f"{name}_dq{uid[0]}")
            return
        a(f"""
        s_barrier
        s_lshl_b32 s94, s2, 3
        s_add_u32 s94, s94, s3
        s_lshl_b32 s94, s94, 11
        s_add_u32 s94, s94, {WS_DBG}
        v_mov_b32 v1, 0
        """)
        for k in range(12):
            a(f"v_mov_b32 v0, s{86+k if k < 8 else 89+k}")
            a(f"buffer_store_dword v0, v1, s[12:15], s94 offen offset:{4*k}")
    def signal(j):
        a(f"""
        s_mov_b64 exec, 1
        ds_add_u32 v{VFA}, v{VF1} offset:{4*j}
        s_mov_b64 exec, -1
        """)
    def waitflag(j, n):
        uid[0] += 1
        a.label(f"{name}_wf{uid[0]}")
        a(f"""
        ds_read_b32 v{VT}, v{VFA} offset:{4*j}
        s_waitcnt lgkmcnt(0)
        v_readfirstlane_b32 s45, v{VT}
        s_cmp_lt_u32 s45, {n}
        s_cbranch_scc1 {name}_wf{uid[0]}
        """)
    CPF = os.environ.get("CPF", "")
    CPS = f"""
        s_getpc_b64 s[84:85]
        {name}_pc0:
        s_lshr_b32 s44, s2, 3
        s_lshl_b32 s44, s44, 3
        s_add_u32 s44, s44, s3
        s_lshl_b32 s44, s44, 8
        s_min_u32 s44, s44, {name}_end - {name}_pc0 - 256
        s_add_u32 s84, s84, s44
        s_addc_u32 s85, s85, 0
        s_load_dword s101, s[84:85], 0
        s_load_dword s101, s[84:85], 64
        s_load_dword s101, s[84:85], 128
        s_load_dword s101, s[84:85], 192
        """
    CPV = f"""
        s_getpc_b64 s[84:85]
        {name}_pc0:
        v_lshlrev_b32 v2, 7, v0
        v_min_u32 v2, {name}_end - {name}_pc0, v2
        global_load_dword v100, v2, s[84:85]
        """
    PRB = ""
    if os.environ.get("PRB") == "1": PRB = "\n".join(["s_mov_b32 s101, 0x12345678"] * 1024)
    if os.environ.get("PRB") == "2": PRB = f"s_movk_i32 s100, 32\n{name}_prb:\n" + "\n".join(["s_mov_b32 s101, 0x12345678"] * 30) + f"\ns_sub_u32 s100, s100, 1\ns_cbranch_scc0 {name}_prb"
    CPW = f"""
        s_getpc_b64 s[84:85]
        {name}_pc0:
        s_lshr_b32 s44, s2, 3
        s_lshl_b32 s44, s44, 11
        v_lshl_add_u32 v2, v0, 2, s44
        v_min_u32 v2, {name}_end - {name}_pc0, v2
        global_load_dword v100, v2, s[84:85]
        """
    CP2 = CPV if CPF == "2" else CPW if CPF == "6" else ""
    CP3 = CPS if CPF == "3" else ""
    a(f"""
    s_cmp_ge_u32 s2, 256
    s_cbranch_scc1 {name}_end
    s_load_dwordx8 s[4:11], s[0:1], 0
    s_load_dwordx2 s[12:13], s[0:1], 72
    s_load_dwordx2 s[52:53], s[0:1], 64
    s_load_dwordx4 s[60:63], s[0:1], 32
    {PRB}
    {CP2}
    v_lshrrev_b32 v1, 6, v0
    v_and_b32 v{LANE}, 63, v0
    s_bfe_u32 s36, s2, 0x10003
    v_readfirstlane_b32 s3, v1
    {CP3}
    s_lshr_b32 s37, s2, 4
    s_lshl_b32 s37, s37, 3
    s_and_b32 s38, s2, 7
    s_or_b32 s37, s37, s38
    v_lshlrev_b32 v{L16}, 4, v{LANE}
    v_mov_b32 v{VFA}, {FLAG}
    v_mov_b32 v{VF1}, 1
    v_mov_b32 v40, 0
    v_cmp_gt_u32 vcc, 8, v0
    v_lshl_add_u32 v41, v0, 2, v{VFA}
    s_and_saveexec_b64 s[46:47], vcc
    ds_write_b32 v41, v40
    s_mov_b64 exec, s[46:47]
    v_mul_u32_u24 v6, 57, v{LANE}
    v_lshrrev_b32 v6, 9, v6
    v_mul_u32_u24 v5, 9, v6
    v_sub_u32 v5, v{LANE}, v5
    v_cmp_gt_u32 s[40:41], 8, v5
    v_lshlrev_b32 v5, 4, v5
    v_lshl_add_u32 v83, v6, 8, v5
    s_and_b32 s56, s3, 3
    s_mul_i32 s42, s56, {7*256}
    s_mul_i32 s43, s56, 1008
    s_lshl_b32 s38, s36, 7
    s_add_u32 s42, s42, s38
    s_bitset0_b32 s41, 31
    s_waitcnt lgkmcnt(0)
    """)
    srd(a, 16, 4, B * F * 4)
    srd(a, 20, 6, V * D * 2)
    srd(a, 24, 8, F * F * 2)
    srd(a, 28, 10, F * D * H * 2)
    srd(a, 32, 12, WS_BYTES)
    srd(a, 12, 12, WS_BYTES)
    srd(a, 52, 52, 256)
    a("""
    s_mov_b32 s50, s36
    s_lshr_b32 s44, s2, 4
    s_lshl_b32 s44, s44, 6
    s_and_b32 s45, s2, 12
    s_add_u32 s44, s44, s45
    s_add_u32 s60, s60, s44
    s_addc_u32 s61, s61, 0
    s_add_u32 s10, s62, s44
    s_addc_u32 s11, s63, 0
    """)
    BWL = "\n".join(f"s_load_dword s{24+i}, s[60:61], {16*i}" for i in range(4))
    fstamp(0)
    if CPF == "1": a(CPS)
    if CPF == "4": a(CPV)
    a(f"""
    s_cmp_ge_u32 s3, 4
    s_cbranch_scc1 {name}_aux
    """)
    NDB = int(os.environ.get("NDB", "4"))
    NTA = int(os.environ.get("NTA", "7"))
    NSB = 6 - NDB
    W = 0
    FR = 96
    GF = FR + 8 * (NSB + 2 * NDB)
    TA = GF + 8
    IX = TA + 4 * NTA
    GI = IX + 24
    ACC = GI + 1; R0 = ACC + 4; R1_ = R0 + 1; RES = R0 + 2; KG = R0 + 3; VIO = R0 + 4; VGO = R0 + 5
    assert VGO < VT, VGO
    PX = TA; PY = TA + 1; PY2 = TA + 2; GX = TA + 4; I0 = TA + 8; TM = TA + 16; YR = FR
    TPL = os.environ.get("TPL", "00+01 02 Y0 22+23 T 03 Y2 04 T 55+05 12 Y1 11+13 T 14 Y3 15 T 33+34 24 Y4 44+45 T 25 Y5 35 T").split()
    tl_ = lambda x: (int(x[0]), int(x[1]))
    PAIRS = [(tl_(x[:2]), tl_(x[3:])) for x in TPL if "+" in x]
    FT = [tl_(x) for x in TPL if x.isdigit()]
    YO = [int(x[1]) for x in TPL if x[0] == "Y"]
    assert sorted(FT + [t for p in PAIRS for t in p]) == [(k1, k2) for k1 in range(6) for k2 in range(k1, 6)] and sorted(YO) == list(range(6))
    assert TPL.count("T") == len(PAIRS) >= 4
    WL = [(t, j) for t in FT + [t for p in PAIRS for t in p] for j in range(4)] + [(("G", k), 0) for k in range(6)]
    WREG = {x: 4 + i for i, x in enumerate(WL)}
    GGW = 0
    WT = [WREG[(p[0], 0)] for p in PAIRS]
    FQ = [w + 4 for w in reversed(WT)]
    SF = FQ[0:2]; DG = FQ[2]; CM = FQ[3]; DT = [FQ[4], FQ[5] if len(FQ) > 5 else FQ[4]] if len(FQ) > 4 else [248, 248]
    assert SF[0] == 84
    KS = 247; IDT = 252; IDY = 253
    NPB = int(os.environ.get("NPB", "2"))
    NFQ = 3 if (4 * len(FT)) % 3 == 0 else 2
    GGQ = 248 if NFQ == 3 else TA + 24
    FSQ = list(range(NFQ))
    if (4 * len(FT) + 1) % 3 == 0 or NPB == 1:
        NFQ = 7 - 2 * NPB; GGQ = None; DT[0] = 248 if DT[0] == DT[1] else DT[0]
        nt_ = 4 * len(FT) + 1
        nb_ = next(b for b in range(NFQ) if (nt_ - b * (NFQ - 1)) % NFQ == 0)
        na_ = (nt_ - nb_ * (NFQ - 1)) // NFQ
        FSQ = []
        for i in range(na_ + nb_): FSQ += list(range(NFQ - 1 if (i + 1) * nb_ // (na_ + nb_) > i * nb_ // (na_ + nb_) else NFQ))
    assert not (GGQ == 248 and 248 in DT)
    ASY = [int(x) for x in os.environ.get("ASY", "").split(",") if x]
    assert not ASY or (sum(ASY) == 64 and ASY[0] % 2 == 0)
    MID = ASY and ASY[0] % 4 == 2
    AO = 800 if MID else 0
    GT = I0 + 6; VGT = I0 + 7
    a(f"""
    s_setprio {os.environ.get("MP0", "3")}
    s_lshl_b32 s38, s3, 10
    s_add_u32 m0, s38, {R1}
    v_and_b32 v5, 15, v{LANE}
    """)
    IPF = int(os.environ.get("IPF", "-1"))
    for c in range(6):
        if c == IPF: a(f"""
        s_lshl_b32 s45, s37, 1
        s_add_u32 s45, s45, s36
        s_lshl_b32 s45, s45, 2
        s_add_u32 s45, s45, s3
        s_mul_i32 s45, s45, 6400
        v_min_u32 v6, 49, v{LANE}
        v_lshlrev_b32 v6, 7, v6
        buffer_load_dword v249, v6, s[16:19], s45 offen
        """)
        if c == 5: break
        if c == 4: a(f"s_cmp_eq_u32 s3, 3\ns_cselect_b32 s45, 1024, 0\ns_sub_u32 m0, m0, s45\ns_sub_u32 s38, s38, s45")
        a(f"buffer_load_dwordx4 v{L16}, s[24:27], s38 offen lds")
        if c < 4:
            a(f"s_add_u32 m0, m0, 4096")
            a(f"s_add_u32 s38, s38, 4096")
    a(f"""
    v_lshrrev_b32 v6, 4, v{LANE}
    v_and_b32 v8, 3, v{LANE}
    v_bfe_u32 v7, v{LANE}, 2, 2
    v_mul_u32_u24 v{VIO}, 24, v5
    s_movk_i32 s45, 400
    v_lshlrev_b32 v{VGO}, 2, v7
    v_mad_u32_u24 v{VGO}, v8, s45, v{VGO}
    """ + (f"""
    s_lshr_b32 s72, s37, 1
    s_lshl_b32 s72, s72, 8
    s_bitcmp1_b32 s37, 0
    s_cselect_b32 s75, {ASY[1]}, {ASY[0]}
    s_cselect_b32 s73, {4*ASY[0]}, 0
    s_add_u32 s72, s72, s73
    s_mul_i32 s73, s3, s75
    s_add_u32 s72, s72, s73
    s_mul_i32 s74, s72, 400
    s_mul_i32 s18, s75, 400
    s_add_u32 s18, s18, s74
    s_add_u32 s58, s18, {AO}
    v_and_b32 v{GT}, 1, v8
    v_lshlrev_b32 v{VGT}, 2, v7
    v_mad_u32_u24 v{VGT}, v{GT}, s45, v{VGT}
    """ if ASY else f"""
    s_lshl_b32 s72, s37, 7
    s_lshl_b32 s73, s3, 5
    s_add_u32 s72, s72, s73
    s_mul_i32 s74, s72, 400
    s_add_u32 s58, s74, {8*1600}
    s_mov_b32 s18, s58
    """).strip() + f"""
    v_mul_u32_u24 v{PX}, 12, v5
    s_movk_i32 s45, 200
    v_mad_u32_u24 v{PY}, v6, s45, v{PX}
    v_lshlrev_b32 v{PY2}, 1, v7
    v_mad_u32_u24 v{PY2}, v6, s45, v{PY2}
    v_mov_b32 v{GGW}, 0
    s_movk_i32 s45, {96*200}
    """)
    def ixl(slot, off):
        return [f"buffer_load_dwordx4 v[{IX+6*slot}:{IX+6*slot+3}], v{VIO}, s[16:19], s74 offen offset:{off}",
                f"buffer_load_dwordx2 v[{IX+6*slot+4}:{IX+6*slot+5}], v{VIO}, s[16:19], s74 offen offset:{off+16}"]
    def gl(off): return f"buffer_load_dword v{GI}, v{VGO}, s[16:19], s74 offen offset:{off+384}"
    a(f"buffer_load_dwordx3 v[{GX}:{GX+2}], v{PY}, s[24:27], s45 offen")
    a(f"buffer_load_short_d16_hi v{GGW}, v{PY2}, s[24:27], s45 offen offset:192")
    a(f"buffer_load_dwordx4 v[{I0}:{I0+3}], v{VIO}, s[16:19], s74 offen")
    a(f"buffer_load_dwordx2 v[{I0+4}:{I0+5}], v{VIO}, s[16:19], s74 offen offset:16")
    if MID:
        a(f"buffer_load_dword v{GT}, v{VGT}, s[16:19], s74 offen offset:384")
        for l in ixl(3, 400) + ixl(0, 800) + [gl(800)] + ixl(1, 1200) + ixl(2, 1600): a(l)
    else:
        a(gl(0))
        for l in ixl(1, 400) + ixl(2, 800) + ixl(3, 1200) + ixl(0, 1600): a(l)
    a(BWL + "\n" + "\n".join(f"s_load_dword s{28+i}, s[10:11], {16*i}" for i in range(4)))
    a(f"""
    {"s_lshl_b32 s75, s75, 2" if ASY else "v_add_u32 v40, -1, v5"}
    {"" if ASY else "v_cmp_gt_u32 s[46:47], 8, v40"}
    s_lshl_b32 s76, s36, 14
    s_add_u32 s76, s76, s72
    s_lshl_b32 s76, s76, 2
    s_add_u32 s76, s76, {WS_PNN}
    {f"v_lshl_add_u32 v40, v5, 4, {-8 if MID else -16}" if ASY else "v_lshlrev_b32 v40, 4, v40"}
    v_lshrrev_b32 v41, 5, v{LANE}
    v_lshl_add_u32 v40, v41, 2, v40
    v_bfe_u32 v41, v{LANE}, 4, 1
    v_lshl_add_u32 v94, v41, 3, v40
    {"v_cmp_gt_u32 s[46:47], s75, v94" if ASY else ""}
    s_lshl_b32 s45, s3, 7
    s_add_u32 s45, s45, 512
    s_min_u32 s45, s45, 880
    s_mul_i32 s44, s45, 144
    v_mul_u32_u24 v95, 144, v5
    v_lshl_add_u32 v95, v6, 4, v95
    v_add_u32 v95, s44, v95
    s_xor_b32 s44, s36, 1
    s_lshl_b32 s44, s44, 10
    s_add_u32 s44, s44, s45
    s_lshl_b32 s44, s44, 7
    s_add_u32 s44, s44, {WS_TB2}
    s_mov_b32 s64, 0x40000000
    v_add_u32 v{PX}, {R1}, v{PX}
    s_movk_i32 s45, 4800
    v_mad_u32_u24 v{PX}, v6, s45, v{PX}
    v_mul_u32_u24 v{PY2}, 1200, v5
    v_add_u32 v{PY2}, {R1}, v{PY2}
    v_mad_u32_u24 v{PY}, v6, 48, v{PY2}
    v_lshl_add_u32 v{PY2}, v6, 1, v{PY2}
    v_and_b32 v{KG}, 48, v{LANE}
    s_movk_i32 s57, {ROWB}
    v_cmp_eq_u32 s[60:61], 0, v8
    v_cmp_eq_u32 s[62:63], 1, v8
    v_cmp_eq_u32 s[66:67], 2, v8
    v_cmp_eq_u32 s[68:69], 3, v8
    s_mov_b32 s70, 0x00010001
    s_mov_b32 s71, 0x00010001
    """)
    for l in gen2.SSETUP: a(l)
    a(f"""
    v_and_b32 v{KS}, 1, v{LANE}
    v_mov_b32 v{IDT}, 0xdddd
    v_mul_u32_u24 v{IDY}, 0xaaaa, v{KS}
    v_lshl_add_u32 v{KS}, v{KS}, 2, v{KG}
    v_add_u32 v{IDY}, 0x4444, v{IDY}
    v_mov_b32 v{TM+3}, {f32bits(1 + float(os.environ.get("CMP", str(2 / 3))) / 256):#x}
    """)
    for i in range(4, 94, 2): a(f"v_mov_b64 v[{i}:{i+1}], 0")
    if os.environ.get("MPW"): a(f"s_setprio {os.environ.get('MPW')}")
    fstamp(8)
    a(f"s_waitcnt vmcnt({(14 if MID else 13) + (IPF == 5)})")
    fstamp(9)
    a("s_barrier")
    if os.environ.get("MAINONLY"): fstamp(4)
    yq = {}
    for k2 in range(1, 6):
        for q in sorted(set((6 * j + k1) // 4 for j in range(4) for k1 in range(k2))):
            yq[(k2, q)] = YR + 2 * len(yq)
            a(f"ds_read_b64 v[{yq[(k2,q)]}:{yq[(k2,q)]+1}], v{PY} offset:{200*k2+8*q}")
    assert YR + 2 * len(yq) <= TA
    for k in range(6): a(f"ds_read_u16_d16_hi v{WREG[(('G', k), 0)]}, v{PY2} offset:{200*k+192}")
    for dg in (0, 1):
        for ((k1, k2), j) in WL[:84]:
            if (k1 == k2) == dg: a(f"ds_read_u16_d16_hi v{WREG[((k1,k2),j)]}, v{PX} offset:{((6*j+k1)*100+k2)*2}")
    def unp(d, r, hi): return f"v_and_b32 v{d}, 0xffff0000, v{r}" if hi else f"v_lshlrev_b32 v{d}, 16, v{r}"
    a(f"s_waitcnt vmcnt({9 if MID else 8}) lgkmcnt(15)")
    n_ = 0
    for ((k1, k2), j) in WL[:90]:
        if k1 == k2: continue
        if k1 == "G": u = unp(TM + (n_ & 1), GX + k2 // 2, k2 & 1)
        else:
            e = 6 * j + k1
            u = unp(TM + (n_ & 1), yq[(k2, e // 4)] + (e % 4) // 2, e & 1)
        a(u); a(f"v_add_f32 v{WREG[((k1,k2),j)]}, v{WREG[((k1,k2),j)]}, v{TM+(n_&1)}"); n_ += 1
    def mad(r): return f"v_mad_u32_u24 v{r}, v{r}, s57, v{KG}"
    for k in range(6): a(mad(I0 + k))
    a(mad(GT if MID else GI))
    for i in range(5): a(f"v_sub_f32 v{WREG[(('G', YO[i]), 0)]}, v{WREG[(('G', YO[i]), 0)]}, v{WREG[(('G', YO[i+1]), 0)]}")
    for s_, m_ in ((3, 68), (2, 66), (1, 62), (0, 60)):
        a(f"v_cndmask_b32 v{GGW+s_}, 0, v{GGW}, s[{m_}:{m_+1}]")
    a("s_waitcnt lgkmcnt(0)")
    for w_ in WT:
        for g_ in range(4): a(f"v_cvt_pk_bf16_f32 v{w_+g_}, v{w_+2*g_}, v{w_+2*g_+1}")
    for o_ in ("32", "16"):
        for w_ in WT:
            for g_ in range(2): a(f"v_permlane{o_}_swap_b32 v{w_+g_}, v{w_+g_+2}")
    for j in range(4): a(f"s_mov_b32 s60, {0x00100001 << j:#x}\ns_mov_b32 s61, {0x10000100 << j:#x}\nv_cndmask_b32 v{CM+j}, 0, v{TM+3}, s[60:61]")
    for r_ in sorted(set(DT + [DG])): a(f"v_mov_b64 v[{r_}:{r_+1}], 0\nv_mov_b64 v[{r_+2}:{r_+3}], 0")
    def sadd(h): return f"v_add_u32_dpp v{SF[h]+2}, v{GI}, v{KS} quad_perm:[{2*h},{2*h},{2*h+1},{2*h+1}] row_mask:0xf bank_mask:0xf"
    a(sadd(1).replace(f"v{GI},", f"v{GT},") if MID else sadd(0))
    for l in gen2.BIAS: a(l)
    fstamp(5)
    if os.environ.get("MPX"): a(f"s_setprio {os.environ.get('MPX')}")
    def fbuf(k, s):
        if k == "G": return GF
        return FR + 8 * k if k < NSB else FR + 8 * (NSB + 2 * (k - NSB) + (s & 1))
    def rr(k, s):
        if k in ("S0", "S1"):
            b = SF[int(k[1])]
            return [f"ds_read2_b32 v[{b}:{b+1}], v{b+2} offset0:0 offset1:2", f"ds_read2_b32 v[{b+2}:{b+3}], v{b+2} offset0:4 offset1:6"]
        b = fbuf(k, s); ad = GI if k == "G" else IX + 6 * (s & 3) + k
        return [f"ds_read_b128 v[{b+4*ks}:{b+4*ks+3}], v{ad} offset:{64*ks}" for ks in range(2)]
    SL = []; npair = 0; nf = 0
    GGS, GGP = (int(x) for x in os.environ.get("GGP", "1,14").split(","))
    for s in range(4):
        fifo = []
        for i, x in enumerate(TPL):
            if s == GGS and i == GGP:
                SL += [("M", s, ("G", "G"), ks, GGQ or TA + 8 * NPB + 4 * FSQ[nf % len(FSQ)]) for ks in range(2)]; nf += not GGQ
            if "+" in x:
                pb = TA + 8 * (npair % NPB); npair += 1; fifo.append(pb)
                ILV = os.environ.get("ILV", "")
                SL += [("M", s, tl_(x[3 * u:3 * u + 2]), ks, pb + 4 * u) for u, ks in (((0, 0), (1, 0), (0, 1), (1, 1)) if ILV else ((0, 0), (0, 1), (1, 0), (1, 1)))]
            elif x == "T":
                pi = sum(1 for y in SL if y[0] == "T" and y[1] == s)
                SL.append(("T", s, pi, fifo.pop(0), DT[s & 1]))
            elif x[0] == "Y": SL.append(("Y", s, int(x[1]), 0, DG))
            else:
                SL += [("M", s, tl_(x), ks, TA + 8 * NPB + 4 * FSQ[nf % len(FSQ)]) for ks in range(2)]; nf += 1
        assert not fifo
    NP = len(SL)
    S0 = [min(i for i, x in enumerate(SL) if x[1] == s) for s in range(4)]
    def M_(p):
        kd, s, it, ks, tb = SL[p]
        if kd == "T": return f"v_smfmac_f32_16x16x64_bf16 v[{tb}:{tb+3}], v[{WT[it]}:{WT[it]+3}], v[{ks}:{ks+7}], v{IDT}"
        if kd == "Y": return f"v_smfmac_f32_16x16x64_bf16 v[{tb}:{tb+3}], v[{SF[s>>1]}:{SF[s>>1]+3}], v[{fbuf(it,s)}:{fbuf(it,s)+7}], v{IDY}"
        A = fbuf(it[0], s) + 4 * ks; B_ = fbuf(it[1], s) + 4 * ks
        c = "0" if ks == 0 else f"v[{tb}:{tb+3}]"
        return f"v_mfma_f32_16x16x32_bf16 v[{tb}:{tb+3}], v[{A}:{A+3}], v[{B_}:{B_+3}], {c}"
    for p, x in enumerate(SL):
        if x[0] == "T":
            w_ = [q for q in range(p - 40, p) if SL[q % NP][0] == "M" and SL[q % NP][4] in (x[3], x[3] + 4)][-4:]
            assert sorted(SL[q % NP][2] for q in w_) == sorted(2 * list(PAIRS[x[2]])), (p, x)
    DBP = [int(x) for x in os.environ.get("DBP", "3,10,17,28").split(",")]
    XP = [int(x) for x in os.environ.get("XP", "40,44,42").split(",")]
    G_ = 6
    excl = {}; lastop = {}; ops = []; mreq = {}
    MS = [dict(ic=None, p=p) for p in range(G_ * NP + 200)]
    def op(text, e, l, g, deps=(), w=1, kind="v"):
        d = dict(text=text, e=e, l=l, g=g, deps=list(deps), w=w, kind=kind, at=None, ic=None, n=len(ops)); ops.append(d); return d
    def nxt(p, f): return next(q for q in range(p + 1, p + 2 * NP) if f(SL[q % NP]))
    cnd = None; k32 = {}; gmad = None
    for g in range(G_):
        o0 = g * NP
        for s in range(4):
            s1 = s + 1
            pl = {k: max(p for p, x in enumerate(SL) if x[1] == s and (x[0] == "M" and k in x[2] or x[0] == "Y" and x[2] == k)) for k in range(NSB)}
            for k in range(NSB, 6): pl[k] = S0[s] + DBP[k - NSB]
            if s == 3: pl["G"] = S0[s] + XP[0]; pl["S0"] = S0[s] + XP[1]
            if s == 0: pl["S1"] = S0[s] + XP[2]
            used = []
            for k in sorted(pl, key=lambda k_: (pl[k_], str(k_))):
                p = pl[k]
                while p in used or SL[p][0] != "M": p += 1
                used.append(p)
                excl[o0 + p] = [(x, "lgkm", None) for x in rr(k, s1)]
                if k in ("S0", "S1"): op(sadd(int(k[1])), o0 + S0[s], o0 + p - 1, g, [(gmad, 2)] if gmad else [], kind="mad")
                else: x = op(mad(GI if k == "G" else IX + 6 * (s1 & 3) + k), o0 + S0[s], o0 + p - 1, g, kind="mad")
                if k == "G": gmad = x
            p = max(used) + int(os.environ.get("LLD", "2"))
            while SL[p][0] != "M": p += 1
            assert SL[p][1] == s
            excl[o0 + p] = ([(gl(1600 - AO), "vm", ("X", g * 4 + 4))] if s == 0 else []) + [(x, "vm", ("X", g * 4 + s + 5)) for x in ixl(s1 & 3, (s + 5) * 400 - AO)]
            if s == 3: lastll = p
            lastop[o0 + S0[s] - 1] = [("W", g * 4 + s + 1)]
        init = {}; allf = {j: [] for j in range(4)}
        def fop(sa, src, wr, p, l):
            deps = [(MS[o0 + p], 8)]
            if sa in init: deps.append((init[sa], 0))
            elif (g - 1, sa >> 1) in k32: deps.append((k32[(g - 1, sa >> 1)], 0))
            f = op(f"v_{'fmac' if sa in init else 'mul'}_f32 v{ACC+sa}, v{src}, v{wr}", o0 + p + 1, o0 + l, g, deps, kind="f")
            init.setdefault(sa, f); allf[sa].append(f); return f
        for p, (kd, s, it, ks, tb) in enumerate(SL):
            if kd == "M" and ks == 1 and (it in FT or it == ("G", "G")):
                l = min(nxt(p, lambda y: y[0] == "M" and y[4] == tb) - 1, p + 40)
                for j in range(4): fop(j if it == ("G", "G") else s, tb + j, GGW + j if it == ("G", "G") else WREG[(it, j)], p, l)
            if kd == "Y":
                q = nxt(p, lambda y: y[0] == "Y")
                for h in range(2): fop(s, DG + 2 * (s & 1) + h, WREG[(("G", it), 0)], p, q - 1)
                if it == YO[-1] and "z" not in os.environ.get("ABZ", ""):
                    r_ = DG + 2 * (1 - (s & 1))
                    z = op(f"v_mov_b64 v[{r_}:{r_+1}], 0", o0 + p + 1, o0 + q - 2, g, [(MS[o0 + p], 8)], kind="z")
                    mreq.setdefault(o0 + q, []).append((z, 2))
            if kd == "T":
                q = max(q for q in range(p - 40, p) if SL[q % NP][0] == "M" and SL[q % NP][4] in (ks, ks + 4))
                if o0 + q >= 0: mreq.setdefault(o0 + p, []).append((MS[o0 + q], 8))
                if it == len(PAIRS) - 1:
                    q = nxt(p, lambda y: y[0] == "T" and y[4] == tb)
                    ex = [fop(s, tb + j, CM + j, p, min(q - 3, p + int(os.environ.get("EXL", "14")))) for j in range(4)]
                    for h in range(2 if "z" not in os.environ.get("ABZ", "") else 0):
                        z = op(f"v_mov_b64 v[{tb+2*h}:{tb+2*h+1}], 0", o0 + p + 1, o0 + q - 2, g, [(ex[2 * h], 0), (ex[2 * h + 1], 0)], kind="z")
                        mreq.setdefault(o0 + q, []).append((z, 2))
        RD0 = o0 + NP + int(os.environ.get("RDL", "30"))
        x = op(f"v_permlane32_swap_b32 v{ACC}, v{ACC+1}", 0, o0 + NP - 8, g, [(f, 2) for f in allf[0] + allf[1]] + ([(cnd, 0)] if cnd else []), w=2)
        a0 = op(f"v_add_f32 v{R0}, v{ACC}, v{ACC+1}", 0, o0 + NP - 6, g, [(x, 1)]); k32[(g, 0)] = a0
        x = op(f"v_permlane32_swap_b32 v{ACC+2}, v{ACC+3}", o0 + NP, RD0, g, [(f, 2) for f in allf[2] + allf[3]], w=2)
        a1 = op(f"v_add_f32 v{R1_}, v{ACC+2}, v{ACC+3}", 0, RD0 + 2, g, [(x, 1)]); k32[(g, 1)] = a1
        x = op(f"v_permlane16_swap_b32 v{R0}, v{R1_}", 0, RD0 + 4, g, [(a0, 2), (a1, 2)], w=2)
        x = op(f"v_add_f32 v{R0}, v{R0}, v{R1_}", 0, RD0 + 6, g, [(x, 1)])
        for i, r in enumerate((8, 4, 2, 1) if "r" not in os.environ.get("ABZ", "") else ()):
            x = op(f"v_add_f32_dpp v{R0}, v{R0}, v{R0} row_ror:{r} row_mask:0xf bank_mask:0xf", 0, RD0 + 8 + 2 * i, g, [(x, 2)])
        cnd = op(f"v_cndmask_b32 v{RES}, v{RES}, v{R0}, s[70:71]", 0, RD0 + 16, g, [(x, 1)])
        op("s_lshl_b64 s[70:71], s[70:71], 1", 0, RD0 + 18, g, [(cnd, 1)], kind="s")
        x = op("s_add_u32 s74, s74, 1600", o0 + lastll + 1, o0 + NP - 2, g, kind="c")
        op("s_cmp_lt_u32 s74, s58", 0, o0 + NP - 1, g, [(x, 0)], kind="c")
    for _ in range(3):
        for o in reversed(ops):
            while o["l"] in excl: o["l"] -= 1
            for d, dist in o["deps"]:
                if "l" in d: d["l"] = min(d["l"], o["l"] - (dist + 1) // 2)
    sched = {}; pre = {}; ic = 0
    CAPM = int(os.environ.get("CAPM", "2")); CAPS = int(os.environ.get("CAPS", "1"))
    CPAT = os.environ.get("CPAT", ""); GE0 = 2 * NP
    def short(deps): return max([99 if d["ic"] is None else dist - (ic - d["ic"] - 1) for d, dist in deps] + [0])
    for p in range(G_ * NP):
        n_ = short(mreq.get(p, []))
        assert n_ < 99 or p >= (G_ - 1) * NP, (p, mreq[p])
        pre[p] = n_ if n_ < 99 else 0
        ic += pre[p]; MS[p]["ic"] = ic; ic += 1
        cur = []
        if p in excl: ic += len(excl[p])
        else:
            cap = CAPM if SL[p % NP][0] == "M" else CAPS
            if CPAT and SL[p % NP][0] == "M": cap = int(CPAT[sum(1 for q in range(p % NP) if SL[q][0] == "M" and GE0 + q not in excl) % len(CPAT)])
            wsum = len(lastop.get(p, [])) + (2 if p % NP == NP - 1 else 0)
            while True:
                pend = [o for o in ops if o["at"] is None and o["e"] <= p]
                cand = [o for o in pend if short(o["deps"]) <= 0]
                must = [o for o in pend if o["l"] <= p and 0 < short(o["deps"]) < 99]
                if cand:
                    c = min(cand, key=lambda o: (o["l"], o["n"]))
                    if wsum < cap or c["l"] <= p or must:
                        c["at"] = p; c["ic"] = ic; ic += 1; cur.append(c); wsum += c["w"]; continue
                if not must: break
                cur.append(dict(text="s_nop 0", w=1, g=-1, kind="n")); ic += 1; wsum += 1
        sched[p] = cur
        ic += len(lastop.get(p, [])) + (1 if p % NP == NP - 1 else 0)
        late = [o for o in ops if o["at"] is None and o["l"] <= p and o["g"] < G_ - 1]
        assert not late, (p, [(o["text"], o["e"], o["l"]) for o in late])
    txt = lambda g: [[o["text"] for o in sched[g * NP + p]] + [pre[g * NP + p]] for p in range(NP)]
    GE = G_ - 3
    assert txt(GE) == txt(GE + 1) == txt(GE - 1), "not periodic"
    wt = lambda p: sum(o["w"] for o in sched[p]) + len(excl.get(p, [])) + len(lastop.get(p, [])) + (7 if p % NP == NP - 1 else 0) + pre.get(p + 1, 0)
    bs = lambda p: 8 if SL[p % NP][0] == "M" else 12
    cost = sum(max(16, bs(p) + 4 * wt(GE * NP + p)) for p in range(NP))
    port = sum(bs(p) + 4 * sum(o["w"] for o in sched[GE * NP + p] if o["text"][0] == "v") for p in range(NP))
    print("pnn plan: slots", NP, "group", cost, "per sample", cost / 4, "port", port / 4, "nops", sum(pre[GE * NP + p] for p in range(NP)), sum(o["kind"] == "n" for p in range(NP) for o in sched[GE * NP + p]), file=sys.stderr)
    if os.environ.get("PPL"): print(" ".join(("|" if p in S0 else "") + f"{'n%d' % pre[GE*NP+p] if pre[GE*NP+p] else ''}{SL[p][0]}" + ("x" * len(excl.get(GE * NP + p, []))) + "".join(o["kind"][0] for o in sched[GE * NP + p]) for p in range(NP)), file=sys.stderr)
    vmc = Cnt()
    def body(g, emit):
        ws = []
        for p in range(g * NP, (g + 1) * NP):
            PAB = os.environ.get("PAB", "")
            if emit and MID and p % NP == S0[2]: a.label(f"{name}_mid")
            if emit and pre[p]: a(f"s_nop {pre[p]-1}")
            if emit and not ("m" in PAB and p % 2): a(M_(p % NP))
            if emit and "m" in PAB and p % 2: a("s_nop 1")
            for (x, kind, tag) in excl.get(p, []):
                if emit: a(x if not ("d" in PAB and kind == "lgkm" or "i" in PAB and kind == "vm") else "s_nop 0")
                if kind == "vm": vmc.issue(tag)
            for o in sched[p]:
                if emit: a(o["text"] if not ("f" in PAB and o["kind"] == "f") else "s_nop 0") if not ("i" in PAB and o["kind"] == "mad") else a(f"v_mov_b32 v{VT}, 0")
            if emit and "n" in PAB: a("s_nop 0")
            if emit and "N" in PAB: a("s_nop 0\ns_nop 0\ns_nop 0\ns_nop 0")
            for (_, smp) in lastop.get(p, []):
                n = vmc.after(("X", smp)); ws.append(n)
                PIT = emit and os.environ.get("PIT") and (p % NP == NP - 1 or os.environ.get("PIT") == "2")
                if PIT and os.environ.get("PIT") == "2": a(f"s_memtime s[94:95]\ns_waitcnt lgkmcnt(0)\ns_mov_b32 m0, s101\ns_addk_i32 s101, 1\nv_writelane_b32 v250, s94, m0\ns_waitcnt vmcnt({n})")
                if PIT: a("s_memtime s[94:95]")
                if emit: a(f"s_waitcnt vmcnt({n}) lgkmcnt(0)")
                if PIT and os.environ.get("PIT") == "2": a("s_mov_b32 m0, s101\ns_addk_i32 s101, 1\nv_writelane_b32 v250, s94, m0\ns_cmp_lt_u32 s74, s58")
                elif PIT: a("s_ff1_i32_b32 m0, s70\ns_nop 1\nv_writelane_b32 v250, s94, m0")
        return ws
    for g in range(GE): w1 = body(g, False)
    a("s_barrier")
    fstamp(1); rstamp(10)
    a(f"s_setprio {os.environ.get('MP1', '0')}")
    if os.environ.get("AUXONLY"): a(f"s_waitcnt vmcnt(0) lgkmcnt(0)\ns_branch {name}_k2")
    for i_ in range(6):
        for l in rr(i_, 0): a(re.sub(r", v\d+ offset", f", v{I0+i_} offset", l))
    if MID:
        assert GGS >= 2 and w1[1] == 7, w1
        assert all(o["at"] < GE * NP + S0[2] for o in ops if o["g"] == GE - 1)
        for l in rr("S1", 0) + [x.replace(f"v{GI} ", f"v{GT} ") for x in rr("G", 0)]: a(l)
        a(f"s_waitcnt vmcnt({w1[1]}) lgkmcnt(0)\ns_branch {name}_mid")
    else:
        for l in rr("S0", 0) + rr("G", 0): a(l)
        a(f"s_waitcnt vmcnt({w1[-1]}) lgkmcnt(0)")
    if "i" in os.environ.get("PAB", ""):
        a("s_waitcnt vmcnt(0)")
        for r_ in range(IX, GI + 1): a(mad(r_))
    assert w1[-1] == 6, w1
    if os.environ.get("PIT") == "2": a("s_mov_b32 s101, 1\ns_memtime s[94:95]\ns_waitcnt lgkmcnt(0)\nv_writelane_b32 v250, s94, 0")
    a.label(f"{name}_loop")
    l0 = len(a.lines)
    w2 = body(GE, True); assert w1 == w2
    bl = [l.strip() for l in a.lines[l0:]] + ["s_cbranch"]
    def regs(tok):
        m = re.match(r"v\[(\d+):(\d+)\]", tok)
        if m: return set(range(int(m.group(1)), int(m.group(2)) + 1))
        m = re.match(r"v(\d+)$", tok)
        return {int(m.group(1))} if m else set()
    bl2 = []
    for l in bl + bl:
        if not l or l.endswith(":"): continue
        bl2 += ["s_nop 0"] * (int(l.split()[1]) + 1) if l.startswith("s_nop") else [l]
    seq = [(l.split()[0], [regs(t.strip(",")) for t in l.split()[1:]]) for l in bl2]
    for i, (o_, rs) in enumerate(seq):
        if not o_.startswith("v_"): continue
        wr = rs[0] | (rs[1] if "swap" in o_ else set())
        for d in range(1, 9):
            if i + d >= len(seq): break
            o2, r2 = seq[i + d]
            if o2.startswith("ds_") and "mfma" in o_: assert not (wr & set().union(*r2)), (i, d, bl2[i])
            if not o2.startswith("v_"): continue
            use = set().union(*r2)
            if "mfma" in o_ and "mfma" not in o2: assert not (wr & use), (i, d, bl2[i], bl2[i + d])
            if "mfma" in o_ and "mfma" in o2:
                assert not (wr & (r2[1] | r2[2])), (i, d, bl2[i], bl2[i + d])
                assert not (wr & r2[0]) or wr == r2[0] and o_ == o2, (i, d, bl2[i], bl2[i + d])
            if "mfma" not in o_ and d <= 2 and ("dpp" in o2 or "swap" in o2 or "mfma" in o2): assert not (wr & use), (i, d, bl2[i], bl2[i + d])
    a(f"s_cbranch_scc1 {name}_loop")
    tail = [o["text"] for p in range((GE + 1) * NP, (GE + 2) * NP) for o in sched[p] if o["g"] == GE and o["kind"] in ("f", "v")]
    assert (TA, IX, ACC, RES) == (184, 212, 237, 243)
    fstamp(2); rstamp(11)
    fstamp(3)
    if os.environ.get("PIT"):
        a(f"""
        s_lshl_b32 s94, s2, 3
        s_add_u32 s94, s94, s3
        s_lshl_b32 s94, s94, 11
        s_add_u32 s94, s94, {WS_DBG}
        v_lshlrev_b32 v249, 2, v{LANE}
        buffer_store_dword v250, v249, s[12:15], s94 offen offset:64
        s_waitcnt vmcnt(0)
        """)
    a(f"s_branch {name}_k2m")
    a.label(f"{name}_aux")
    a(f"""
    s_setprio {os.environ.get("AUXPRIO", "0")}
    {BWL}
    v_mov_b32 v8, v{LANE}
    v_mov_b32 v9, v{L16}
    v_mov_b32 v10, v{VF1}
    v_mov_b32 v11, v{VFA}
    s_mov_b32 s51, s2
    s_mov_b32 s64, 0
    s_mov_b32 s65, 0
    """)
    LANE = 8; L16 = 9; VF1 = 10; VFA = 11; VT = 12; ZERO = 13; VST = 14; VRD = 15; ONE = VF1; VPF = 56
    E = 40; VSO = 30; LB = 31; SELQ = 0; OHQ = 16; OWQ = 64; BQ = 72; LU0 = 57; LU1 = 58
    PM = 59; T0 = 60; T1 = 61; FM = 62; OWM = 63; OP = 24; AL = 26; G4 = 27; OUT = 80; HD = 84; CB = 85; OWN = 86; RK = 87
    CT = 116; FA = 120; TA_ = 121; TB_ = 122; TC_ = 123
    K0 = 32; K1 = 33; VW = 34; VWR = 36
    DR = 128; PO = 88; RD = 192; RW = 224; TP = 104
    MT = [32 + 4 * q for q in range(8)] + [88 + 4 * q for q in range(7)] + [124]
    VDA = 35
    a(f"""
    v_mov_b32 v{VDA}, v83
    s_lshr_b32 s72, s2, 3
    s_mul_i32 s72, s72, {NDA}
    s_lshr_b32 s72, s72, 5
    s_lshl_b32 s75, s36, 7
    s_add_u32 s75, s75, {142*7*256}
    s_mov_b32 s76, {142*1008}
    s_lshl_b32 s6, s2, 15
    s_lshl_b32 s7, s56, 13
    s_add_u32 s6, s6, s7
    s_add_u32 s6, s6, {WS_PART}
    s_add_u32 s7, s6, 4096
    s_lshl_b32 s8, s36, 7
    s_add_u32 s8, s8, s37
    s_lshl_b32 s8, s8, 9
    """ + (f"""
    s_bitcmp1_b32 s37, 0
    s_cselect_b32 s9, {16*ASY[0] - 512}, 0
    s_add_u32 s8, s8, s9
    s_add_u32 s8, s8, {WS_PNN}
    """ if ASY else f"s_add_u32 s8, s8, {WS_PNN}").strip() + f"""
    s_and_b32 s9, s2, 63
    s_lshl_b32 s9, s9, 5
    s_lshr_b32 s38, s2, 6
    s_add_u32 s9, s9, s38
    s_lshl_b32 s9, s9, 2
    s_add_u32 s9, s9, {WS_TABR}
    v_mov_b32 v112, 0
    """)
    NB1 = int(os.environ.get("NB1", "8"))
    nd = [0]
    DWIN = int(os.environ.get("DWIN", "99"))
    def nvm(): return sum(1 for l in a.lines if l.strip().startswith("buffer_"))
    lastd = [None]
    def adma(n, restore="-1"):
        n = min(n, NDA - nd[0])
        if n <= 0: return False
        uid[0] += 1
        a(f"s_cmp_lg_u32 s64, 0\ns_cbranch_scc1 {name}_nd{uid[0]}")
        a("s_mov_b64 exec, s[40:41]")
        for c in range(n):
            a(f"""
            s_mul_i32 s73, s72, {4*1008}
            s_mul_i32 s74, s72, {4*7*256}
            s_add_u32 s73, s73, s43
            s_add_u32 s74, s74, s42
            s_min_u32 m0, s73, s76
            s_min_u32 s74, s74, s75
            s_add_u32 s72, s72, 1
            {"s_barrier" if nd[0] + c == NB1 else ""}
            {f"s_waitcnt vmcnt({DWIN-1})" if nd[0] + c >= DWIN else ""}
            buffer_load_dwordx4 v{VDA}, s[20:23], s74 offen lds
            s_cmp_eq_u32 s72, {NDA}
            s_cselect_b32 s72, 0, s72
            """)
        a(f"s_mov_b64 exec, {restore}")
        a.label(f"{name}_nd{uid[0]}")
        nd[0] += n
        lastd[0] = nvm()
        return True
    RLMAP = """
    s_lshl_b32 s57, s51, 2
    s_add_u32 s57, s57, s56
    """
    if os.environ.get("RLM", "1") == "1":
        RLMAP = """
        s_lshr_b32 s38, s51, 4
        s_and_b32 s39, s51, 7
        s_sub_u32 s57, 2, s36
        s_lshl_b32 s57, s39, s57
        s_lshl_b32 s37, s36, 5
        s_add_u32 s57, s57, s37
        s_add_u32 s57, s57, s56
        s_mul_i32 s37, s38, 48
        s_add_u32 s37, s37, s57
        s_lshl_b32 s38, s38, 1
        s_lshr_b32 s39, s39, 2
        s_add_u32 s38, s38, s39
        s_add_u32 s38, s38, 768
        s_and_b32 s57, s57, 7
        s_cmp_eq_u32 s57, 2
        s_cselect_b32 s38, s38, 1000
        s_lshl_b32 s39, s36, 1
        s_and_b32 s39, s39, s56
        s_cselect_b32 s57, s38, s37
        """
    a.label(f"{name}_unit")
    a(f"""
    s_bfe_u32 s36, s51, 0x10003
    {RLMAP}
    s_lshr_b32 s37, s51, 4
    s_lshl_b32 s37, s37, 3
    s_and_b32 s38, s51, 7
    s_or_b32 s37, s37, s38
    s_and_b32 s58, s56, 1
    s_lshl_b32 s59, s37, 1
    s_add_u32 s58, s58, s59
    s_lshr_b32 s59, s56, 1
    s_xor_b32 s60, s36, 1
    s_mul_i32 s46, s60, 13
    s_lshl_b32 s60, s60, 1
    s_add_u32 s59, s59, s60
    s_add_u32 s61, s46, 6
    s_add_u32 s60, s46, 12
    s_bitcmp1_b32 s59, 0
    s_cselect_b32 s46, s60, s46
    s_cselect_b32 s63, -1, 1
    s_cselect_b32 s61, 24, s61
    v_lshrrev_b32 v1, 3, v{LANE}
    v_and_b32 v2, 7, v{LANE}
    v_mul_i32_i24 v7, s63, v2
    v_add_u32 v7, s46, v7
    v_cmp_ge_u32 s[48:49], s61, v7
    s_mul_i32 s60, s58, 25600
    s_movk_i32 s61, 400
    s_lshl_b32 s63, s63, 16
    v_mul_u32_u24 v0, s61, v1
    v_lshl_add_u32 v0, v7, 4, v0
    v_and_b32 v5, 15, v{LANE}
    v_and_b32 v6, 48, v{LANE}
    v_lshl_add_u32 v{VPF}, v5, 8, v6
    s_lshr_b32 s44, s37, 1
    s_lshl_b32 s44, s44, 12
    s_lshl_b32 s38, s36, 1
    s_and_b32 s39, s37, 1
    s_add_u32 s38, s38, s39
    s_lshl_b32 s38, s38, 6
    s_add_u32 s44, s44, s38
    s_lshl_b32 s47, s36, 7
    s_add_u32 s47, s47, s37
    s_lshl_b32 s47, s47, 10
    s_add_u32 s47, s47, {WS_TB2}
    """)
    ETB = True
    a("s_cmp_eq_u32 s56, 0\ns_cselect_b64 s[4:5], -1, 0")
    IDXP = int(os.environ.get("IDXP", "12"))
    IDXM = int(os.environ.get("IDXM", "0"))
    def idxl():
        a("s_mov_b64 exec, s[48:49]")
        for i in range(8):
            a(f"buffer_load_dwordx4 v[{RW+4*i}:{RW+4*i+3}], v0, s[16:19], s60 offen")
            a(f"s_add_u32 s60, s60, 3200")
        a("s_mov_b64 exec, -1")
    def bar_b(n):
        a(f"""
        s_cmp_lg_u32 s64, 0
        s_cbranch_scc1 {name}_nsig
        s_waitcnt vmcnt({n})
        s_barrier
        """)
        a.label(f"{name}_nsig")
        fstamp(5)
        a(f"s_setprio {os.environ.get('AP0', '1')}")
    adma(IDXP)
    if IDXM == 2: idxl()
    a(f"""
    s_lshr_b32 s78, s57, 5
    s_bfe_u32 s79, s57, 0x20003
    s_bfe_u32 s80, s57, 0x20001
    s_and_b32 s81, s57, 1
    s_lshl_b32 s77, s78, 2
    s_lshl_b32 s83, s81, 1
    s_add_u32 s77, s77, s83
    s_lshl_b32 s77, s77, 7
    s_lshl_b32 s83, s79, 5
    s_add_u32 s77, s77, s83
    s_lshl_b32 s83, s80, 3
    s_add_u32 s77, s77, s83
    s_lshl_b32 s77, s77, 10
    s_lshl_b32 s82, s78, 12
    s_lshl_b32 s83, s79, 10
    s_add_u32 s82, s82, s83
    s_lshl_b32 s83, s80, 8
    s_add_u32 s82, s82, s83
    s_lshl_b32 s83, s81, 7
    s_add_u32 s82, s82, s83
    s_mov_b32 s84, {8*SLS}
    v_mul_lo_u32 v{VST}, v1, s84
    v_lshl_add_u32 v{VST}, v2, 4, v{VST}
    s_cmp_ge_u32 s57, 800
    s_cselect_b32 s83, 0x40000000, 0
    v_or_b32 v{VST}, s83, v{VST}
    v_and_b32 v3, 3, v{LANE}
    v_lshlrev_b32 v3, 4, v3
    v_lshl_or_b32 v3, v1, 6, v3
    v_and_b32 v4, 4, v{LANE}
    v_lshl_or_b32 v{VRD}, v4, 15, v3
    s_mov_b32 s84, 0x05040100
    s_mov_b32 s85, 0x07060302
    """)
    adma(NDA - IDXP)
    fstamp(8)
    if IDXM == 0: bar_b(0)
    if IDXM != 2: idxl()
    idx0 = nvm() - 8
    if os.environ.get("SKIPWG", ""):
        a(f"""
        s_cmp_eq_u32 s64, 0
        s_cselect_b32 s45, s2, 1000
        s_and_b32 s45, s45, 31
        s_cmp_eq_u32 s45, 5
        s_cselect_b32 s34, 0, s14
        """)
    rl_loads = []
    for j in range(8):
        for ch in range(2):
            u = [f"buffer_load_dwordx4 v[{DR+32*ch+4*j}:{DR+32*ch+4*j+3}], v{VRD}, s[28:31], s77 offen offset:{(j&3)*1024+ch*512}"]
            if j == 3 and ch: u.append("s_add_u32 s77, s77, 4096")
            rl_loads.append(u)
    rl_st = []
    for p in range(16):
        ch, jj = divmod(p, 8); d = jj >> 1; o = RD + 4 * p
        rl_st.append([f"v_perm_b32 v{o+t}, v{DR+32*ch+8*t+4+d}, v{DR+32*ch+8*t+d}, s{84+(jj&1)}" for t in range(4)] +
                     [f"s_add_u32 s83, s82, {(64*ch+jj)*SLS}", f"buffer_store_dwordx4 v[{o}:{o+3}], v{VST}, s[32:35], s83 offen{STF}"])
    LUT = [sum(1 << i for i in range(32) if bin(i & 15).count("1") != 4 - r) for r in range(3)]
    a(f"""
    s_lshl_b32 s61, s56, 8
    s_add_u32 s61, s61, {CN}
    v_lshlrev_b32 v{OWN}, 2, v{LANE}
    v_add_u32 v{OWN}, s61, v{OWN}
    v_and_b32 v{CB}, 0xffffff80, v{OWN}
    v_lshrrev_b32 v{G4}, 5, v{LANE}
    v_mul_u32_u24 v{G4}, 0x40404, v{G4}
    v_lshl_or_b32 v{G4}, v{G4}, 8, v{G4}
    s_mul_i32 s61, s56, {SCW}
    s_add_u32 s61, s61, {SC}
    v_mul_u32_u24 v{LB}, 72, v{LANE}
    v_add3_u32 v{LB}, s61, v{LB}, -8
    v_mul_u32_u24 v{VW}, 72, v1
    v_lshl_add_u32 v{VW}, v2, 3, v{VW}
    v_add_u32 v{VW}, s61, v{VW}
    v_mul_u32_u24 v3, 52, v7
    v_lshrrev_b32 v3, 8, v3
    v_mad_i32_i24 v2, v3, -5, v7
    v_mov_b32 v{ZERO}, 0
    v_mul_u32_u24 v2, 0x10001, v2
    v_lshlrev_b32 v2, 12, v2
    v_add_u32 v{K0}, {1024 << 16}, v2
    v_add_u32 v{K1}, {2048 | (3072 << 16)}, v2
    s_cmp_eq_u32 s59, 3
    s_cselect_b32 s61, 0x0fffff00, -16
    s_cmp_eq_u32 s59, 1
    s_cselect_b32 s61, 0x0ffffff0, s61
    v_mov_b32 v{PM}, s61
    s_lshr_b32 s62, s58, 7
    s_mul_i32 s62, s62, 25
    s_min_u32 s46, s46, 24
    s_add_u32 s62, s62, s46
    s_lshl_b32 s62, s62, 3
    s_bfe_u32 s61, s58, 0x30004
    s_add_u32 s62, s62, s61
    s_lshl_b32 s62, s62, 13
    s_bfe_u32 s61, s58, 0x30001
    s_lshl_b32 s61, s61, 10
    s_add_u32 s62, s62, s61
    s_and_b32 s61, s58, 1
    s_lshl_b32 s46, s61, 2
    s_add_u32 s46, s46, {FLAG}
    s_lshl_b32 s61, s61, 9
    s_add_u32 s62, s62, s61
    s_add_u32 s62, s62, {WS_SCHED}
    v_and_b32 v{VSO}, 31, v{LANE}
    v_lshrrev_b32 v3, 5, v{LANE}
    v_lshlrev_b32 v{VSO}, 4, v{VSO}
    v_lshl_add_u32 v{VSO}, v3, 3, v{VSO}
    s_movk_i32 s66, 0x7c
    s_mov_b32 s67, 0x03030303
    s_mov_b32 s75, 0x06040200
    v_mov_b32 v{LU0}, 0x08040201
    v_mov_b32 v{LU1}, 0x80402010
    v_mov_b32 v108, {gen2.SENT:#x}
    v_mov_b32 v109, {gen2.SENT:#x}
    v_mov_b32 v110, {gen2.SENT:#x}
    v_mov_b32 v111, {gen2.SENT:#x}
    """)
    if IDXM == 1: bar_b(8)
    if IDXM == 2: a(f"s_cmp_lg_u32 s64, 0\ns_cbranch_scc0 {name}_nw0\ns_waitcnt vmcnt(0)\n{name}_nw0:\ns_waitcnt vmcnt({NDA - IDXP})")
    else: a("s_mov_b64 exec, s[48:49]")
    for i in range(8):
        b = RW + 4 * i
        a(f"""
        {f"s_waitcnt vmcnt({nvm() - idx0 - i - 1})" if IDXM != 2 else ""}
        v_lshl_or_b32 v{b}, v{b+1}, 16, v{b}
        v_lshl_or_b32 v{b+1}, v{b+3}, 16, v{b+2}
        v_add_u32 v{b}, v{K0}, v{b}
        v_add_u32 v{b+1}, v{K1}, v{b+1}
        """)
        if IDXM != 2: a(f"ds_write_b64 v{VW}, v[{b}:{b+1}] offset:{i*8*72}")
    if IDXM == 2:
        bar_b(0)
        a("s_mov_b64 exec, s[48:49]")
        for i in range(8): a(f"ds_write_b64 v{VW}, v[{RW+4*i}:{RW+4*i+1}] offset:{i*8*72}")
    a("s_mov_b64 exec, -1")
    for k in range(8):
        a(f"ds_read_b64 v[{E+2*k}:{E+2*k+1}], v{LB} offset:{8*k+8}")
    for k in range(8):
        a(f"""
        s_waitcnt lgkmcnt({7-k})
        v_perm_b32 v{T0}, v{E+2*k+1}, v{E+2*k}, s75
        v_lshlrev_b32 v{BQ+k}, 2, v{T0}
        """)
        if k or os.environ.get("K2Q") == "0": a(f"""
        v_lshrrev_b32 v{T1}, 3, v{T0}
        v_and_b32 v{T0}, 0x07070707, v{T0}
        v_and_or_b32 v{SELQ+k}, v{T1}, s67, v{G4}
        v_perm_b32 v{OHQ+k}, v{LU1}, v{LU0}, v{T0}
        v_add_u32 v{OWQ+k}, v{LU0}, v{OHQ+k}
        """)
    fstamp(11)
    def relayout():
        a(f"""
        s_cmp_ge_u32 s57, 800
        s_cbranch_scc1 {name}_norl
        s_waitcnt vmcnt(0)
        """)
        if ETB:
            a(f"""
            s_lshl_b32 s39, 1, s2
            s_cmp_eq_u32 s64, 0
            s_cselect_b32 s39, s39, 0
            {"s_cmp_eq_u32 s34, 0" if os.environ.get("SKIPWG") else ""}
            {"s_cselect_b32 s39, 0, s39" if os.environ.get("SKIPWG") else ""}
            s_lshr_b32 s38, s2, 5
            v_mov_b32 v{T0}, s39
            s_lshl_b32 s38, s38, 4
            s_and_b64 exec, s[4:5], 1
            buffer_atomic_or v{T0}, v{ZERO}, s[52:55], s38 offen offset:128
            s_mov_b64 exec, -1
            """)
        a.label(f"{name}_norl")
        a.label(f"{name}_rld")
        stamp(4)
    a(f"ds_write_b32 v{OWN}, v{ZERO}")
    if os.environ.get('AP1'): a(f"s_setprio {os.environ.get('AP1', '0')}")
    APZ = int(os.environ.get("APZ", "4"))
    S3Z = int(os.environ.get("S3Z", "10"))
    DSZ = int(os.environ.get("DSZ", "0"))
    def flush_out():
        a(f"v_lshl_or_b32 v{OP}, v{OUT+1}, 16, v{OUT}")
        a(f"v_lshl_or_b32 v{OP+1}, v{OUT+3}, 16, v{OUT+2}")
        a(f"buffer_store_dwordx2 v[{OP}:{OP+1}], v{VSO}, s[32:35], s62 offen{STF}")
        a(f"s_add_u32 s62, s62, s63")
    RLL = int(os.environ.get("RLL", "4")); RLN = int(os.environ.get("RLN", "2"))
    RL0 = int(os.environ.get("RL0", "12")); RLU = int(os.environ.get("RLU", "2"))
    assert (24 - RL0) * RLU >= 16 and RLL + 16 // RLN <= RL0
    PRI = os.environ.get("PRI", "1000000000000000000001111111")
    assert len(PRI) == 28
    TPZ = int(os.environ.get("TPZ", "10")); tp0 = [None]; TP0 = 5
    assert TP0 < TPZ < RL0 and RL0 >= 12 and RLL >= 4
    CLZ = [int(x) for x in os.environ.get("CLZ", "9,9,10,10,11,11,12,12,13").split(",")]
    assert len(CLZ) == 9 and max(CLZ) < 24 and min(CLZ) > TPZ
    curp = [os.environ.get('AP0', '1')] * 2
    PRI2 = os.environ.get("PRI2", PRI); assert len(PRI2) == 28
    def setp(p, p2=None):
        p2 = p2 or p
        if p == p2 and (p != curp[0] or p != curp[1]): a(f"s_setprio {p}")
        elif p != curp[0] and p2 != curp[1]:
            uid[0] += 1
            a(f"s_setprio {p2}\ns_bitcmp1_b32 s59, 0\ns_cbranch_scc1 {name}_pq{uid[0]}\ns_setprio {p}\n{name}_pq{uid[0]}:")
        elif p != curp[0] or p2 != curp[1]:
            uid[0] += 1
            a(f"s_bitcmp{int(p != curp[0])}_b32 s59, 0\ns_cbranch_scc1 {name}_pq{uid[0]}\ns_setprio {p if p != curp[0] else p2}\n{name}_pq{uid[0]}:")
        curp[:] = [p, p2]
    P4 = [PRI, PRI2, os.environ.get("PRI3", PRI), os.environ.get("PRI4", PRI2)] if os.environ.get("PRI3") or os.environ.get("PRI4") else None
    cur4 = [os.environ.get('AP0', '1')] * 4
    if P4:
        P4[0] = P4[0][:24] + P4[1][24:]; P4[2] = P4[2][:24] + P4[3][24:]
        mk = [int(x[::-1], 2) for x in P4]
        a(f"s_mov_b32 s80, {mk[0]:#x}\ns_mov_b32 s81, {mk[1]:#x}\ns_bitcmp1_b32 s2, 0\ns_cmov_b32 s80, {mk[2]:#x}\ns_cmov_b32 s81, {mk[3]:#x}\ns_bitcmp1_b32 s59, 0\ns_cmov_b32 s80, s81")
    def setp4(z):
        w = [x[z] for x in P4]
        ch = set(w[i] for i in range(4) if w[i] != cur4[i])
        uid[0] += 1; lb = f"{name}_pq{uid[0]}"
        if ch and len(set(w)) == 1: a(f"s_setprio {w[0]}")
        elif len(ch) == 1:
            v = ch.pop(); a(f"s_bitcmp{1-int(v)}_b32 s80, {z}\ns_cbranch_scc1 {lb}\ns_setprio {v}\n{lb}:")
        elif ch: a(f"s_setprio 1\ns_bitcmp1_b32 s80, {z}\ns_cbranch_scc1 {lb}\ns_setprio 0\n{lb}:")
        cur4[:] = w
    EBL = f"buffer_load_dword v{TP}, v{L16}, s[52:55], 0 offen offset:128 sc1"
    TWIN = int(os.environ.get("TWIN", "4"))
    TBD = os.environ.get("TBD", ""); TW2 = int(os.environ.get("TW2", str(TWIN)))
    def tb2(mid=None, TBD=TBD):
        a(f"""
        s_xor_b32 s44, s50, 1
        s_lshl_b32 s44, s44, 3
        {"s_lshl1_add_u32 s47, s48, s44" if TBD else ""}
        s_add_u32 s44, s44, s56
        s_lshl_b32 s44, s44, 14
        s_add_u32 s44, s44, {WS_TB2}
        {"s_lshl_b32 s47, s47, 14" if TBD else ""}
        {f"s_add_u32 s47, s47, {WS_TB2 + 65536}" if TBD else "s_add_u32 s47, s44, 65536"}
        """)
        for q in range(48 if TBD == "1" else 16 if TBD == "0" else 32):
            o, qq = min(q // 16, 1), q % 16
            d = 88 if o == 1 else 128 + 16 * (qq >> 1) + 8 + 4 * (qq & 1)
            if q == min(TWIN, 16) and mid: mid()
            if q == 16 and TBD == "1": a(f"s_cmp_ge_u32 s48, 2\ns_cbranch_scc1 {name}_tbe")
            w = TWIN if q < 16 else TW2
            if q >= w: a(f"s_waitcnt vmcnt({w-1})")
            a(f"buffer_load_dwordx4 v[{d}:{d+3}], v{L16}, s[12:15], s{47 if o else 44} offen offset:{(q&3)*1024}{os.environ.get('TSF' + str(o), ' sc1')}")
            if q & 3 == 3: a(f"s_add_u32 s{47 if o else 44}, s{47 if o else 44}, 4096")
        if TBD == "0" and TWIN >= 16 and mid: mid()
        if TBD == "1": a.label(f"{name}_tbe")
    REP = 2
    STR = int(os.environ.get("STR", "128")); assert 8192 + 64 * STR <= WS_TB2 - WS_TABR
    mark0 = len(a.lines)
    K2Q = int(os.environ.get("K2Q", "5"))
    a(f"s_cmp_eq_u32 s59, 3\ns_cbranch_scc1 {name}_sk1")
    for k in range(7):
        if k == 1: a.label(f"{name}_sk1"); curp[1] = None; cur4[1] = cur4[3] = None
        if k: a(f"v_lshrrev_b32 v{PM}, 4, v{PM}")
        if k >= K2Q: a(f"v_add_u32 v{OWM}, v{LU1}, v{OHQ+k}")
        if k == 5:
            a(f"""
            s_bitcmp0_b32 s59, 0
            s_cbranch_scc1 {name}_mg2
            v_mov_b32 v{T0}, s46
            v_subrev_u32 v{T1}, 512, v{OWN}
            """)
            a.label(f"{name}_mg1")
            a(f"""
            ds_read_b32 v{VT}, v{T0}
            ds_read_b32 v{FA}, v{T1}
            s_waitcnt lgkmcnt(0)
            v_readfirstlane_b32 s45, v{VT}
            s_cmp_lg_u32 s45, 0
            s_cbranch_scc1 {name}_mg3
            s_sleep 2
            s_branch {name}_mg1
            """)
            a.label(f"{name}_mg3")
            a(f"""
            ds_write_b32 v{T0}, v{ZERO}
            s_mov_b32 s45, 0xff00
            v_lshl_or_b32 v{FA}, v{FA}, 8, v{FA}
            v_and_or_b32 v{PM}, v{FA}, s45, v{PM}
            """)
            a.label(f"{name}_mg2")
        for r in range(4):
            z = 4 * k + r
            if z == RL0:
                if os.environ.get("RLP", "1"): setp(os.environ.get("RLP", "1"))
                if not os.environ.get("IST"): fstamp(9)
                relayout()
                if not os.environ.get("IST"): fstamp(10)
            if P4: setp4(z)
            else: setp(PRI[z] if z < 24 else PRI2[z], PRI2[z])
            fstamp(100 + z)
            a(f"v_ffbl_b32 v{HD}, v{PM}")
            frc = 1 <= k <= 5
            if z < 27:
                a(f"v_perm_b32 v{T0}, v{BQ+k}, v{BQ+max(k-1,0)}, v{HD}")
                if k == 6:
                    a(f"""
                    v_cmp_lt_u32 vcc, 7, v{HD}
                    v_alignbyte_b32 v{T1}, v{BQ+7}, v{BQ+7}, v{HD}
                    s_nop 0
                    v_cndmask_b32 v{T0}, v{T0}, v{T1}, vcc
                    """)
                a(f"v_and_or_b32 v{T0}, v{T0}, s66, v{CB}")
                if frc:
                    a(f"""
                    v_cmpx_ge_u32 vcc, {r}, v{HD}
                    ds_add_u32 v{T0}, v{ONE}
                    s_not_b64 s[70:71], vcc
                    s_mov_b64 exec, s[70:71]
                    ds_add_rtn_u32 v{RK}, v{T0}, v{ONE}
                    s_mov_b64 exec, -1
                    """)
                else:
                    a(f"ds_add_rtn_u32 v{RK}, v{T0}, v{ONE}")
                a(f"ds_wrxchg_rtn_b32 v{CT}, v{OWN}, v{ZERO}")
                fill = []
                if z == 4: fill += [["s_and_b32 s45, s2, 63", f"s_mul_i32 s45, s45, {STR - 128}", "s_add_u32 s45, s45, 8192", f"v_mul_u32_u24 v{TP}, s45, v{LANE}", "s_cmp_eq_u32 s64, 0", "s_cselect_b32 s45, s4, 0", f"s_and_b32 exec_lo, s45, {(1 << REP) - 1}", "s_mov_b32 exec_hi, 0", f"buffer_store_dword v{ZERO}, v{TP}, s[12:15], s9 offen sc1", "s_mov_b64 exec, -1"]]
                if z >= RLL: fill += rl_loads[(z - RLL) * RLN:(z - RLL + 1) * RLN]
                if z >= RL0 and rl_st[(z - RL0) * RLU:(z - RL0 + 1) * RLU]:
                    fill += [["s_cmp_ge_u32 s57, 800", f"s_cbranch_scc1 {name}_nr{z}"]] + rl_st[(z - RL0) * RLU:(z - RL0 + 1) * RLU] + [[f"{name}_nr{z}:"]]
                for ci, cz in enumerate(CLZ):
                    if cz != z: continue
                    if ci < 8: fill += [[f"buffer_store_dwordx4 v[108:111], v{L16}, s[12:15], s{6+(ci>>2)} offen offset:{(ci&3)*1024} sc1"]]
                    elif ASY: fill += [["s_bitcmp1_b32 s2, 0", f"s_cselect_b32 s45, {ASY[1]}, {ASY[0]}", "s_bfm_b64 exec, s45, 0", f"buffer_store_dwordx4 v[108:111], v{L16}, s[12:15], s8 offen sc1", "s_mov_b64 exec, -1"]]
                    else: fill += [[f"buffer_store_dwordx2 v[108:109], v{VSO}, s[12:15], s8 offen sc1"]]
                if z == TP0:
                    fill = [["s_mov_b64 exec, s[4:5]", f"buffer_load_dwordx4 v[{TP}:{TP+3}], v{VPF}, s[20:23], s44 offen", "s_mov_b64 exec, -1"]] + fill
                    tp0[0] = nvm() + 1
                if z == TPZ:
                    fill = [[f"s_waitcnt vmcnt({nvm() - tp0[0]})", "s_mov_b64 exec, s[4:5]", f"buffer_store_dwordx4 v[{TP}:{TP+3}], v{L16}, s[32:35], s47 offen{STF}", "s_mov_b64 exec, -1"]] + fill
                if ETB and z == int(os.environ.get("EBZ", "23")):
                    fill += [["s_mov_b64 exec, 0xff", EBL, "s_mov_b64 exec, -1"]]
                if str(z) == os.environ.get("EINV", ""):
                    assert z < TP0 or z > TPZ
                    fill += [["s_cmp_lg_u32 s56, 0", f"s_cbranch_scc1 {name}_ninv", "buffer_inv sc1", f"{name}_ninv:"]]
                XA = os.environ.get("XA", "")
                for u in fill:
                    for l in u:
                        if "s" in XA and f"v{VST}," in l: l = "s_nop 0"
                        if "l" in XA and "s[28:31]" in l: l = l.replace("s77 offen", "0 offen")
                        if "k" in XA and "v[108:" in l: l = "s_nop 0"
                        a(l)
                a(f"""
                s_waitcnt lgkmcnt(0)
                v_cmp_gt_u32 s[68:69], 2, v{CT}
                """)
                ETN = os.environ.get("ETN", "0000")
                etn = k < 6 and ETN[r] == "1"
                if etn: a(f"v_cmp_eq_u32 s[72:73], 0, v{CT}")
                if r == 0 and k > 0:
                    if k == 1: a(f"s_cmp_eq_u32 s59, 3\ns_cbranch_scc1 {name}_nf1")
                    flush_out()
                    if k == 1: a.label(f"{name}_nf1")
                a(f"s_mov_b64 exec, s[70:71]" if frc else "s_nop 0")
                a(f"v_cmpx_le_u32 vcc, 2, v{RK}")
                a(f"v_mov_b32 v{FM}, s69")
                qs = [k + 1, k, k - 1] if k == 6 else [k + 1, k] if k >= K2Q and r < 3 else [k + 1]
                tm = [TA_, TB_, TC_]
                if etn: a(f"v_mov_b32 v{TC_}, s73")
                if etn and r == 3:
                    a(f"""
                    v_perm_b32 v{TB_}, v{TC_}, s72, v{SELQ+k+1}
                    v_and_b32 v{TB_}, v{TB_}, v{OHQ+k+1}
                    v_msad_u8 v{TB_}, v{OWQ+k+1}, v{TB_}, 0
                    v_and_b32_sdwa v{TB_}, v{TB_}, v{PM} dst_sel:BYTE_1 dst_unused:UNUSED_PAD src0_sel:DWORD src1_sel:BYTE_1
                    """)
                for i, q in enumerate(qs): a(f"v_perm_b32 v{tm[i]}, v{TC_}, s72, v{SELQ+q}" if etn and q == k else f"v_perm_b32 v{tm[i]}, v{FM}, s68, v{SELQ+q}")
                for i, q in enumerate(qs): a(f"v_and_b32 v{tm[i]}, v{tm[i]}, v{OHQ+q}")
                for i, q in enumerate(qs):
                    a(f"v_msad_u8 v{FA}, v{OWM if q == k else OWQ+q}, v{tm[i]}, {'0' if i == 0 else f'v{FA}'}")
                    if i == 0 and len(qs) > 1: a(f"v_lshlrev_b32 v{FA}, 8, v{FA}")
                if len(qs) > 1: a(f"v_and_b32 v{FA}, v{FA}, v{PM}")
                else: a(f"v_and_b32_sdwa v{FA}, v{FA}, v{PM} dst_sel:BYTE_1 dst_unused:UNUSED_PAD src0_sel:DWORD src1_sel:BYTE_1\n" + (f"v_ffbl_b32 v{TB_}, v{TB_}" if etn else "s_nop 0"))
                a(f"""
                v_ffbl_b32 v{FA}, v{FA}
                {f"v_max3_i32 v{HD}, v{HD}, v{FA}, v{TB_}" if etn and r == 3 else f"v_max_i32 v{HD}, v{HD}, v{FA}"}
                s_mov_b64 exec, -1
                v_lshl_add_u32 v{PM}, -1, v{HD}, v{PM}
                """)
            a(f"v_lshl_add_u32 v{T1}, v{HD}, 1, v{LB}")
            off = k * 8
            a(f"ds_read_u16 v{OUT+r}, v{T1} offset:{off}")
        if k == 5:
            a(f"""
            s_bitcmp1_b32 s59, 0
            s_cbranch_scc1 {name}_sk6
            v_mov_b32 v{T0}, s46
            ds_write_b32 v{OWN}, v{PM}
            ds_write_b32 v{T0}, v{ONE}
            s_branch {name}_sdone
            """)
            a.label(f"{name}_sk6")
    a.label(f"{name}_sdone")
    a("s_waitcnt lgkmcnt(0)")
    flush_out()
    if os.environ.get("NOSCH"):
        keep = []
        for l in a.lines[mark0:]:
            t = l.strip()
            if t.startswith("v_") or t.startswith("ds_") or t.startswith("buffer_store_dwordx"): continue
            keep.append(l)
        a.lines[mark0:] = keep
    a.label(f"{name}_udone")
    a("s_setprio 0")
    fstamp(1)
    SKIP = os.environ.get("SKIPWG", "")
    PLIM = int(os.environ.get("PLIM", "200"))
    NG = int(os.environ.get("NG", "8")); GSH = int(os.environ.get("GSH", "0"))
    OH = os.environ.get("OH", ""); LG = NG.bit_length() - 1; NR = min(64 // NG, int(os.environ.get("NR", "64")))
    if OH == "1":
        a(f"""
        v_mul_u32_u24 v0, {STR * NG}, v{LANE}
        s_and_b32 s46, s2, {NG - 1}
        s_mul_i32 s46, s46, {STR}
        s_add_u32 s46, s46, {WS_TABR + 8192}
        """)
    OH3 = OH == "3"
    if OH3: OH = "2"
    if OH == "2":
        assert NG == 4
        NR = int(os.environ.get("NR", "32"))
        a(f"""
        v_mul_u32_u24 v0, {STR}, v{LANE}
        v_mov_b32 v1, 1
        s_and_b32 s47, s2, {NG - 1}
        s_mul_i32 s46, s47, {STR}
        s_add_u32 s46, s46, {WS_TABR + 8192}
        s_lshl_b32 s47, s47, 2
        s_add_u32 s39, s47, {WS_TABR + 8192 + 32 * STR}
        """)
    a(f"""
    s_waitcnt vmcnt(0)
    """)
    fstamp(2)
    SLD = "buffer_load_dwordx4 v[4:7], v0, s[12:15], s44 offen sc1"
    a(f"""
    s_mov_b64 exec, 1
    ds_add_rtn_u32 v{VT}, v{VFA}, v{VF1} offset:20
    s_mov_b32 s49, 0
    s_waitcnt lgkmcnt(0)
    v_readfirstlane_b32 s48, v{VT}
    s_and_b32 s48, s48, 3
    """)
    a("s_mov_b64 exec, 0xff")
    a.label(f"{name}_ec1")
    a(f"""
    v_cmp_ne_u32 vcc, -1, v{TP}
    s_cbranch_vccz {name}_tbl
    {EBL}
    s_add_u32 s49, s49, 1
    s_waitcnt vmcnt(0)
    s_cmp_lt_u32 s49, {int(os.environ.get("ELIM", "12"))}
    s_cbranch_scc1 {name}_ec1
    s_branch {name}_enx
    """)
    a.label(f"{name}_hset")
    a(f"""
    s_lshl_b32 s39, 1, s51
    s_lshr_b32 s38, s51, 5
    v_mov_b32 v1, s39
    s_lshl_b32 s38, s38, 4
    s_mov_b64 exec, 1
    buffer_atomic_or v1, v{ZERO}, s[52:55], s38 offen offset:132
    s_mov_b64 exec, -1
    s_waitcnt vmcnt(0)
    s_branch {name}_slow
    """)
    a.label(f"{name}_tbl")
    def sgn(n):
        a(f"""
        s_waitcnt vmcnt({n})
        v_cmp_eq_u32 vcc, {256 // NG - 1}, v1
        """)
        if os.environ.get("EST"): fstamp(8)
        a(f"""
        s_cbranch_vccz {name}_nsg
        s_mov_b64 exec, {(1 << NR) - 1 if NR else 1:#x}
        {f"buffer_store_dword v{VF1}, v0, s[12:15], s39 offen sc1" if NR else f"buffer_store_dword v{VF1}, v0, s[52:55], s47 offen sc1"}
        {"s_mov_b64 exec, -1" if OH3 else ""}
        """)
        a.label(f"{name}_nsg")
    if OH == "2":
        a(f"""
        s_cmp_eq_u32 s48, 3
        s_cselect_b32 s45, s64, 1
        s_cmp_lg_u32 s45, 0
        s_cbranch_scc1 {name}_{"nat" if OH3 else "nsg"}
        s_mov_b64 exec, 1
        buffer_atomic_add v1, v{ZERO}, s[12:15], s46 offen sc0
        """)
        if OH3: assert NR; a.label(f"{name}_nat")
        else: sgn(0)
    if OH == "1":
        a(f"""
        s_cmp_eq_u32 s48, 3
        s_cselect_b32 s45, s64, 1
        s_cmp_lg_u32 s45, 0
        s_cbranch_scc1 {name}_nsg
        s_mov_b64 exec, {(1 << NR) - 1:#x}
        buffer_atomic_add v{VF1}, v0, s[12:15], s46 offen
        """)
        if os.environ.get("EST"): a("s_waitcnt vmcnt(0)"); fstamp(8)
        a.label(f"{name}_nsg")
    a("s_mov_b64 exec, -1")
    if os.environ.get("EST"): a("s_mov_b32 s100, s49")
    a("s_mov_b32 s49, -1")
    tb2((lambda: sgn(min(TWIN, 16))) if OH3 else None)
    if os.environ.get("EST"): fstamp(10)
    a.label(f"{name}_enx")
    gen2.aux_pre(a, LANE)
    HOP = os.environ.get("HOP", "")
    if HOP:
        a(f"s_mov_b64 exec, 0\ns_branch {name}_hop0")
        a.label(f"{name}_hopx")
    a(f"""
    s_cmp_lg_u32 s48, 0
    s_cbranch_scc1 {name}_wdec
    s_mov_b64 exec, -1
    v_lshlrev_b32 v0, 7, v{LANE}
    v_lshrrev_b32 v2, 5, v{LANE}
    v_lshlrev_b32 v2, 4, v2
    v_mul_u32_u24 v3, {STR if OH == "1" else 4}, v{LANE}
    s_mov_b32 s44, {WS_TABR}
    s_bfe_u32 s46, s2, {(NG.bit_length() - 1) << 16 | GSH if not OH else (max(NR, 1).bit_length() - 1) << 16 | (LG if OH == "1" else int(os.environ.get("RSH", "0")))}
    s_mul_i32 s47, s46, {STR if OH != "1" else STR * NG}
    s_add_u32 s47, s47, {WS_TABR + 8192 + (32 * STR if OH == "2" else 0)}
    s_lshl_b32 s46, s46, 2
    s_mov_b32 s38, {3 << 30}
    """)
    a.label(f"{name}_p0")
    a(f"""
    ds_read_b32 v{VT}, v{VFA} offset:20
    s_waitcnt lgkmcnt(0)
    v_readfirstlane_b32 s45, v{VT}
    s_and_b32 s45, s45, 3
    s_cbranch_scc0 {name}_p1s
    s_sleep 1
    s_branch {name}_p0
    """)
    a.label(f"{name}_p1s")
    a(f"""
    s_cmp_lg_u32 s64, 0
    s_cbranch_scc1 {name}_hset
    {"s_cmp_eq_u32 s34, 0" if SKIP else ""}
    {f"s_cbranch_scc1 {name}_slow" if SKIP else ""}
    s_mov_b64 exec, 1
    s_cmp_lg_u32 s49, -1
    s_cbranch_scc1 {name}_nfp
    """)
    if OH: a(f"buffer_store_dword v{VF1}, v{ZERO}, s[12:15], s9 offen sc1")
    else: a(f"""
    v_mov_b32 v1, 1
    buffer_atomic_add v1, v{ZERO}, s[12:15], s47 offen sc0
    buffer_store_dword v{VF1}, v{ZERO}, s[12:15], s9 offen sc1
    s_waitcnt vmcnt(1)
    v_cmpx_eq_u32 vcc, {256 // NG - 1}, v1
    buffer_store_dword v{VF1}, v{ZERO}, s[52:55], s46 offen sc1
    """)
    a(f"s_mov_b64 exec, {(1 << NG) - 1:#x}")
    if os.environ.get("EST") and not OH: fstamp(8)
    a.label(f"{name}_p1")
    a(f"""
    {"buffer_load_dword v1, v3, s[52:55], 0 offen sc1" if not OH or NR == 0 else "buffer_load_dword v1, v3, s[12:15], s47 offen sc1"}
    s_add_u32 s65, s65, 1
    s_waitcnt vmcnt(0)
    {"v_cmp_eq_u32 vcc, 0, v1" if OH != "1" else f"v_cmp_ne_u32 vcc, {256 // NG}, v1"}
    s_cbranch_vccz {name}_dec
    {f"s_sleep {os.environ['PSL']}" if os.environ.get("PSL") else ""}
    s_cmp_lt_u32 s65, {PLIM}
    s_cbranch_scc1 {name}_p1
    s_mov_b64 exec, 1
    """)
    a.label(f"{name}_nfp")
    a(f"""
    buffer_store_dword v{VF1}, v{ZERO}, s[12:15], s9 offen sc1
    s_mov_b64 exec, -1
    """)
    a.label(f"{name}_slow")
    for j in range(4): a(f"buffer_load_dwordx2 v[{16+2*j}:{17+2*j}], v2, s[52:55], 0 offen offset:{128+32*j} sc1")
    a(f"""
    s_waitcnt vmcnt(0)
    {SLD}
    s_add_u32 s65, s65, 1
    s_waitcnt vmcnt(0)
    """)
    for j in range(4):
        a(f"""
        v_bfe_u32 v{16+2*j}, v{16+2*j}, v{LANE}, 1
        v_bfe_u32 v{17+2*j}, v{17+2*j}, v{LANE}, 1
        v_and_b32 v{4+j}, v{4+j}, v{16+2*j}
        v_or_b32 v{17+2*j}, v{17+2*j}, v{4+j}
        """)
    a(f"""
    v_min3_u32 v1, v4, v5, v6
    v_min_u32 v1, v1, v7
    v_cmp_eq_u32 vcc, 0, v1
    s_mov_b32 s38, {3 << 30}
    s_cbranch_vccz {name}_dec
    v_min3_u32 v1, v17, v19, v21
    v_min_u32 v1, v1, v23
    v_cmp_eq_u32 vcc, 0, v1
    s_mov_b32 s38, {2 << 30}
    s_cbranch_vccz {name}_dec
    s_cmp_lt_u32 s65, {PLIM}
    s_cbranch_scc1 {name}_slow
    """)
    for j in range(4):
        a(f"v_cmp_eq_u32 vcc, 0, v{17+2*j}\ns_movk_i32 s38, {64*j}")
        if j < 3: a(f"s_cbranch_vccnz {name}_fnd")
    a.label(f"{name}_fnd")
    a(f"""
    s_ff1_i32_b64 s39, vcc
    s_add_u32 s38, s38, s39
    s_andn2_b32 s39, s64, 255
    s_add_u32 s39, s39, 256
    s_or_b32 s38, s38, s39
    """)
    a.label(f"{name}_dec")
    a(f"""
    s_mov_b64 exec, 1
    v_mov_b32 v1, s38
    ds_write_b32 v{VFA}, v1 offset:24
    """)
    a.label(f"{name}_wdec")
    a(f"""
    s_mov_b64 exec, -1
    ds_read_b32 v{VT}, v{VFA} offset:24
    s_waitcnt lgkmcnt(0)
    v_readfirstlane_b32 s45, v{VT}
    s_cmp_lg_u32 s45, s64
    s_cbranch_scc1 {name}_gotd
    s_sleep 2
    s_branch {name}_wdec
    """)
    a.label(f"{name}_hlp")
    a(f"s_waitcnt vmcnt(0)\ns_branch {name}_unit")
    a.label(f"{name}_gotd")
    a(f"""
    s_mov_b32 s64, s45
    s_and_b32 s51, s45, 255
    {"s_mov_b32 s98, s65" if os.environ.get("EST") else ""}
    s_mov_b32 s65, {PLIM}
    s_bitcmp0_b32 s45, 31
    s_cbranch_scc1 {name}_hlp
    """)
    fstamp(3)
    a(f"s_cmp_eq_u32 s49, -1\ns_cbranch_scc1 {name}_k2")
    tb2(None, "0" if TBD else "")
    def fstamp2(k):
        fstamp(k)
        if os.environ.get("RTX") == "2" and k in (6, 4): rstamp(10 if k == 6 else 11)
    gen2.gen_k2(a, name, fstamp2, fstamp_out, tail)
    if HOP:
        l0, l1, per = HOP.split(",")
        i0 = a.lines.index(f"{name}_{l0}:"); i1 = a.lines.index(f"{name}_{l1}:")
        out = []; n = 0; h = 0
        for l in a.lines[i0:i1]:
            out.append(l)
            if l.strip() and not l.endswith(":"):
                n += 1
                if n % int(per) == 0 and not l.strip().startswith(("s_branch", "s_mov_b64 exec, s", "buffer_store")):
                    out += [f"{name}_hop{h}:", f"    s_cbranch_execz {name}_hop{h+1}"]; h += 1
        k = max(i for i, l in enumerate(out) if "s_cbranch_execz" in l)
        out[k] = f"    s_cbranch_execz {name}_hopx"
        a.lines[i0:i1] = out
    a.label(f"{name}_end")
    a("s_endpgm")
    return (256, 256)

def gen_k3(a, name):
    kernel_header(a, name)
    a(f"""
    s_cmp_ge_u32 s2, 256
    s_cbranch_scc1 {name}_end
    {"s_memrealtime s[44:45]" if os.environ.get("DK3") else ""}
    s_load_dwordx4 s[4:7], s[0:1], 48
    s_load_dwordx2 s[8:9], s[0:1], 72
    v_and_b32 v1, 15, v0
    v_lshrrev_b32 v2, 4, v0
    v_lshlrev_b32 v3, 4, v1
    v_lshl_add_u32 v3, v2, 19, v3
    s_lshl_b32 s3, s2, 8
    s_add_u32 s20, s3, {WS_PART}
    s_waitcnt lgkmcnt(0)
    """)
    srd(a, 12, 8, WS_BYTES)
    srd(a, 16, 6, B * 2)
    srd(a, 24, 4, 2)
    for i in range(8):
        a(f"buffer_load_dwordx4 v[{8+4*i}:{11+4*i}], v3, s[12:15], s20 offen")
        a(f"s_add_u32 s20, s20, 65536")
    a(f"""
    v_lshlrev_b32 v4, 2, v0
    s_add_u32 s21, s3, {WS_PNN}
    s_add_u32 s22, s21, 65536
    v_mov_b32 v5, 0
    buffer_load_dword v40, v4, s[12:15], s21 offen
    buffer_load_dword v41, v4, s[12:15], s22 offen
    buffer_load_ushort v42, v5, s[24:27], 0 offen
    v_lshlrev_b32 v6, 4, v0
    """)
    for i in range(1, 8):
        a(f"s_waitcnt vmcnt({10-i})")
        for r in range(4): a(f"v_add_f32 v{8+r}, v{8+r}, v{8+4*i+r}")
    a(f"""
    ds_write_b128 v6, v[8:11]
    s_waitcnt lgkmcnt(0)
    s_barrier
    v_cmp_gt_u32 vcc, 64, v0
    s_and_saveexec_b64 s[30:31], vcc
    s_cbranch_execz {name}_end
    """)
    for i in range(16):
        a(f"ds_read_b32 v{12+i}, v4 offset:{i*256}")
    a("s_waitcnt lgkmcnt(0)")
    for st in (8, 4, 2, 1):
        for i in range(st): a(f"v_add_f32 v{12+i}, v{12+i}, v{12+i+st}")
    a(f"""
    s_waitcnt vmcnt(0)
    v_add_f32 v40, v40, v41
    v_cvt_pk_bf16_f32 v12, v12, v40
    v_lshlrev_b32 v42, 16, v42
    v_lshlrev_b32 v13, 16, v12
    v_and_b32 v14, 0xffff0000, v12
    v_add_f32 v13, v13, v42
    v_cvt_pk_bf16_f32 v13, v13, v13
    v_lshlrev_b32 v13, 16, v13
    v_add_f32 v13, v13, v14
    v_cvt_pk_bf16_f32 v13, v13, v13
    v_lshlrev_b32 v4, 1, v0
    s_lshl_b32 s3, s2, 7
    buffer_store_short v13, v4, s[16:19], s3 offen
    """)
    if os.environ.get("DK3"):
        sel = [tuple(int(y) for y in x.split(".")) for x in os.environ["DK3"].split(",")]
        assert len(sel) <= 15
        RT = bool(os.environ.get("RT"))
        a(f"""
        s_cmp_lg_u32 s2, 0
        s_cbranch_scc1 {name}_end
        s_load_dwordx2 s[36:37], s[0:1], 64
        s_waitcnt lgkmcnt(0)
        """)
        srd(a, 36, 36, 256)
        a("s_mov_b64 exec, 0xffff\nv_mov_b32 v1, 0\nv_mov_b32 v2, 0")
        for i, (w, k) in enumerate(sel):
            a(f"s_movk_i32 s40, {w*2048+4*k}\ns_movk_i32 s41, {w*2048}\ns_nop 0\nv_writelane_b32 v1, s40, {i}\nv_writelane_b32 v2, s41, {i}")
        a(f"""
        s_mov_b32 s40, {WS_DBG}
        v_mov_b32 v8, 0
        buffer_load_dword v7, v8, s[12:15], s40 offen
        v_mov_b32 v5, 0
        v_mov_b32 v6, 0
        v_mov_b32 v9, 0
        s_mov_b32 s41, 0
        """)
        a.label(f"{name}_dl")
        a(f"""
        buffer_load_dword v3, v1, s[12:15], s40 offen
        buffer_load_dword v4, v2, s[12:15], s40 offen
        s_waitcnt vmcnt(0)
        v_sub_u32 v3, v3, v{7 if RT else 4}
        v_sub_u32 v4, v4, v7
        v_add_u32 v5, v5, v3
        v_min_i32 v6, v6, v4
        v_max_i32 v9, v9, v3
        s_add_u32 s40, s40, 16384
        s_add_u32 s41, s41, 1
        s_cmp_lt_u32 s41, 256
        s_cbranch_scc1 {name}_dl
        v_ashrrev_i32 v5, 8, v5
        """)
        if os.environ.get("DMAX"): a("v_mov_b32 v5, v9")
        if RT:
            a(f"""
            v_sub_u32 v5, v5, v6
            v_sub_u32 v7, s44, v7
            v_sub_u32 v7, v7, v6
            v_cmp_eq_u32 vcc, 15, v0
            v_cndmask_b32 v5, v5, v7, vcc
            """)
        a(f"""
        v_lshlrev_b32 v4, 2, v0
        buffer_store_dword v5, v4, s[36:39], 0 offen
        """)
        if os.environ.get("SPIN"):
            sp = int(os.environ["SPIN"])
            a(f"""
            s_nop 4
            v_readlane_b32 s40, v5, {max(sp, 0)}
            s_lshl_b32 s40, s40, 2
            {"s_mov_b32 s40, 0" if sp < 0 else ""}
            s_min_u32 s40, s40, 40000
            s_add_u32 s40, s40, 20000
            """)
            a.label(f"{name}_sp")
            a(f"""
            s_memrealtime s[42:43]
            s_waitcnt lgkmcnt(0)
            s_sub_u32 s42, s42, s44
            s_cmp_lt_u32 s42, s40
            s_cbranch_scc1 {name}_sp
            """)
    a.label(f"{name}_end")
    a("s_endpgm")
    return 48

if __name__ == "__main__":
    out = sys.argv[1]
    which = sys.argv[2] if len(sys.argv) > 2 else "all"
    if len(sys.argv) > 3 and sys.argv[3] == "stamp": STAMP1 = True
    k1 = ("k1_kernel", gen_k1, 256, 512, K1_LDS)
    k3 = ("k3_kernel", gen_k3, 256, 256, 4096)
    s = build({"all": [k1], "k1": [k1], "dk": [k1, k3]}[which])
    if os.environ.get("ATID"):
        h, t = s.split("k1_kernel_k2j:\n")
        t = re.sub(r"(buffer_load_dwordx4 v\[\d+:\d+\]), v69, s\[12:15\], (s\d+) offen", r"\1, off, s[48:51], \2", t)
        s = h + "k1_kernel_k2j:\n    s_mov_b32 s48, s12\n    s_or_b32 s49, s13, 0x100000\n    s_mov_b32 s50, s14\n    s_mov_b32 s51, 0x00800000\n" + t
    open(out, "w").write(s)
```
